```python
import torch

def _softmax(x, axis=-1):
    return torch.softmax(x, dim=axis)
def _gelu(x):
    return torch.nn.functional.gelu(x, approximate="tanh")
def _silu(x):
    return torch.nn.functional.silu(x)
def _sigmoid(x):
    return torch.sigmoid(x)
def _layernorm(x, axis=-1, eps=1e-5):
    m = x.mean(dim=axis, keepdim=True)
    v = x.var(dim=axis, keepdim=True, unbiased=False)
    return (x - m) / torch.sqrt(v + eps)
def _scatter_add(tgt, idx, src, axis=0):
    return tgt.clone().index_add_(axis, idx, src)
def _segment_sum(src, seg, n):
    out = torch.zeros((n,) + src.shape[1:], dtype=src.dtype)
    return out.index_add_(0, seg, src)
def _pad(x, pw):
    flat = tuple(v for pair in reversed(pw) for v in pair)
    return torch.nn.functional.pad(x, flat)

kernel_name = 'recurrent_scan__gqa_block_cached__glu_gated_geglu__decode'

def setup_inputs():

    _w = (lambda a: (lambda t: t.to(torch.bfloat16) if t.is_floating_point() else t)(torch.as_tensor(a)))
    def _A_setup():
        B, Sq, D = 1, 1, 1024
        Hq, Hkv, Sk, Dh = 32, 4, 65536, 128
        assert Hq % Hkv == 0, (Hq, Hkv)
        return {
            "x": _w((lambda *s: torch.randn(*s, dtype=torch.bfloat16) * 0.4)(B, Sq, D)),
            "k_cache": _w((lambda *s: torch.randn(*s, dtype=torch.bfloat16) * 1.6)(B, Hkv, Sk, Dh)),
            "v_cache": _w((lambda *s: torch.randn(*s, dtype=torch.bfloat16) * 1.6)(B, Hkv, Sk, Dh)),
            "wq": _w((lambda *s: torch.randn(*s, dtype=torch.bfloat16) * 1.6)(D, Hq * Dh) * (D ** -0.5)),
            "wo": _w((lambda *s: torch.randn(*s, dtype=torch.bfloat16) * 1.6)(Hq * Dh, D) * ((Hq * Dh) ** -0.5)),
        }
    _A_in = _A_setup()

    def _B_setup():
        B, S, Dm, Df = 1, 1, 1024, 3584
        return {
            "x": _w((lambda *s: torch.randn(*s, dtype=torch.bfloat16) * 0.4)(B, S, Dm)),
            "w_gate": _w((lambda *s: torch.randn(*s, dtype=torch.bfloat16) * 1.6)(Dm, Df) * (Dm ** -0.5)),
            "w_up": _w((lambda *s: torch.randn(*s, dtype=torch.bfloat16) * 1.6)(Dm, Df) * (Dm ** -0.5)),
            "w_down": _w((lambda *s: torch.randn(*s, dtype=torch.bfloat16) * 1.6)(Df, Dm) * (Df ** -0.5)),
        }
    _B_in = _B_setup()

    return {
        "A_x": _A_in["x"],
        "A_k_cache": _A_in["k_cache"],
        "A_v_cache": _A_in["v_cache"],
        "A_wq": _A_in["wq"],
        "A_wo": _A_in["wo"],
        "B_x": _B_in["x"],
        "B_w_gate": _B_in["w_gate"],
        "B_w_up": _B_in["w_up"],
        "B_w_down": _B_in["w_down"],
    }

def reference(A_x, A_k_cache, A_v_cache, A_wq, A_wo, B_x, B_w_gate, B_w_up, B_w_down):
    def _A_ref(x, k_cache, v_cache, wq, wo):
        B, Sq, D = x.shape
        Hq, Dh = 32, 128
        Hkv = k_cache.shape[1]
        rep = Hq // Hkv
        q = (lambda x, *d: x.permute(*d))((x @ wq).reshape(B, Sq, Hq, Dh), 0, 2, 1, 3)
        k = (lambda x, n, axis: torch.repeat_interleave(x, n, dim=axis))(k_cache, rep, axis=1)
        v = (lambda x, n, axis: torch.repeat_interleave(x, n, dim=axis))(v_cache, rep, axis=1)
        scores = torch.einsum("bhqd,bhkd->bhqk", q, k) * (Dh ** -0.5)
        p = _softmax(scores, axis=-1)
        o = torch.einsum("bhqk,bhkd->bhqd", p, v)
        return (lambda x, *d: x.permute(*d))(o, 0, 2, 1, 3).reshape(B, Sq, Hq * Dh) @ wo

    def _B_ref(x, w_gate, w_up, w_down):
        g = torch.einsum("bsd,df->bsf", x, w_gate)
        u = torch.einsum("bsd,df->bsf", x, w_up)
        h = _gelu(g) * u
        return torch.einsum("bsf,fd->bsd", h, w_down)

    x = A_x
    xn = _layernorm(x, axis=-1)
    s = _A_ref(xn, A_k_cache, A_v_cache, A_wq, A_wo)
    g = _silu(_B_ref(xn, B_w_gate, B_w_up, B_w_down))
    return x + s * g
```

```python
import re

def regs_of(op):
    op = op.strip()
    op = re.sub(r"^-", "", op)
    m = re.match(r"^(?:abs\(|\|)(.*?)(?:\)|\|)$", op)
    if m: op = m.group(1)
    m = re.match(r"^([vsa])(\d+)$", op)
    if m: return {(m.group(1), int(m.group(2)))}
    m = re.match(r"^([vsa])\[(\d+):(\d+)\]$", op)
    if m: return {(m.group(1), i) for i in range(int(m.group(2)), int(m.group(3)) + 1)}
    if op in ("vcc", "vcc_lo", "vcc_hi"): return {("vcc", 0)}
    if op in ("exec", "exec_lo", "exec_hi"): return {("exec", 0)}
    if op == "m0": return {("m0", 0)}
    return set()

TRANS = ("v_exp_f32", "v_log_f32", "v_rcp_f32", "v_rsq_f32", "v_sqrt_f32", "v_sin_f32", "v_cos_f32")

class Ins:
    def __init__(self, text):
        self.text = text
        t = text.split(";")[0].strip()
        self.is_label = t.endswith(":")
        self.is_dir = t.startswith(".") or t == ""
        self.mn = ""; self.w = set(); self.r = set(); self.ops = []
        self.kind = None
        if self.is_label or self.is_dir: return
        parts = t.split(None, 1)
        mn = parts[0]; self.mn = mn
        rest = parts[1] if len(parts) > 1 else ""
        ops = []; depth = 0; cur = ""
        for ch in rest:
            if ch in "[(": depth += 1
            if ch in "])": depth -= 1
            if ch == "," and depth == 0: ops.append(cur.strip()); cur = ""
            else: cur += ch
        if cur.strip(): ops.append(cur.strip())
        mods = ""
        if ops:
            sp = ops[-1].split(None, 1)
            ops[-1] = sp[0]
            if len(sp) > 1: mods = sp[1]
        self.ops = ops; self.mods = mods
        R = [regs_of(o) for o in ops]
        allr = lambda lst: set().union(*lst) if lst else set()
        self.dpp = mn.endswith("_dpp") or "quad_perm" in mods or "row_" in mods
        self.sdwa = mn.endswith("_sdwa")
        base = re.sub(r"_(e32|e64|dpp|sdwa)$", "", mn)
        self.base = base
        if mn.startswith("v_mfma"):
            self.kind = "mfma"; self.w = R[0]; self.A = R[1]; self.B = R[2]; self.C = R[3]; self.r = R[1] | R[2] | R[3]
            self.passes = 4 if "16x16x32" in mn or "16x16x16" in mn else 8
            if "16x16x4_f32" in mn: self.passes = 8
        elif mn.startswith("v_cmpx"):
            self.kind = "valu"; self.w = R[0] | {("exec", 0)}; self.r = allr(R[1:])
        elif mn.startswith("v_cmp"):
            self.kind = "valu"; self.w = R[0]; self.r = allr(R[1:])
        elif base in ("v_readlane_b32", "v_readfirstlane_b32"):
            self.kind = "valu"; self.w = R[0]; self.r = allr(R[1:])
        elif base in ("v_permlane32_swap_b32", "v_permlane16_swap_b32"):
            self.kind = "valu"; self.w = R[0] | R[1]; self.r = R[0] | R[1]
        elif base in ("v_add_co_u32", "v_sub_co_u32", "v_addc_co_u32", "v_subb_co_u32"):
            self.kind = "valu"; self.w = R[0] | R[1]; self.r = allr(R[2:])
        elif mn.startswith("v_"):
            self.kind = "valu"; self.w = R[0]; self.r = allr(R[1:])
            if base in ("v_fmac_f32", "v_dot2c_f32_bf16", "v_writelane_b32") or self.dpp or self.sdwa: self.r |= R[0]
            if base == "v_cndmask_b32" and len(ops) == 3: self.r |= {("vcc", 0)}
            if base == "v_nop": self.w = set()
        elif mn.startswith("ds_"):
            self.kind = "ds"
            if mn.startswith("ds_read") or mn.startswith("ds_bpermute") or mn.startswith("ds_permute") or mn.startswith("ds_swizzle") or "_rtn" in mn:
                self.w = R[0]; self.r = allr(R[1:])
            else:
                self.r = allr(R)
        elif mn.startswith("global_") or mn.startswith("buffer_"):
            self.kind = "vmem"
            self.lds = ("_lds_" in mn) or bool(re.search(r"\blds\b", mods))
            if mn in ("buffer_wbl2", "buffer_inv"): pass
            elif self.lds: self.r = allr(R) | {("m0", 0)}
            elif "_load_" in mn: self.w = R[0]; self.r = allr(R[1:])
            elif "atomic" in mn and "sc0" in mods and mn.startswith("global_"):
                self.w = R[0]; self.r = allr(R[1:])
            else:
                self.r = allr(R)
                if "store" in mn:
                    d = R[1] if mn.startswith("global_") else R[0]
                    self.sdata = d if len(d) >= 3 else set()
        elif mn.startswith("s_"):
            self.kind = "salu"
            if mn.startswith(("s_cmp", "s_cbranch", "s_branch", "s_waitcnt", "s_barrier", "s_nop", "s_sleep", "s_wakeup", "s_setprio", "s_endpgm", "s_bitcmp", "s_setpc")):
                self.r = allr(R)
            else:
                self.w = R[0] if R else set(); self.r = allr(R[1:])
                if "saveexec" in mn: self.w |= {("exec", 0)}
        else:
            raise ValueError("unknown instr " + text)
    def states(self):
        if self.is_label or self.is_dir: return 0
        if self.mn == "s_nop": return int(self.ops[0], 0) + 1
        return 1

def vonly(s): return {x for x in s if x[0] in ("v", "a")}
def sonly(s): return {x for x in s if x[0] in ("s", "vcc")}

def need(p, c):
    n = 0
    if p.kind == "valu":
        vw = vonly(p.w); sw = sonly(p.w)
        if c.kind == "mfma" and vw & c.r: n = max(n, 2)
        if c.kind == "valu":
            if c.dpp and vw & vonly(c.r): n = max(n, 2)
            if c.base.startswith("v_permlane") and vw & c.r: n = max(n, 2)
            if c.base in ("v_readlane_b32", "v_readfirstlane_b32") and vw & c.r: n = max(n, 1)
            if sw & c.r:
                n = max(n, 2)
                if c.base in ("v_readlane_b32", "v_writelane_b32"): n = max(n, 4)
                if c.base == "v_div_fmas_f32": n = max(n, 4)
            if p.base in TRANS and c.base not in TRANS and vw & (c.r): n = max(n, 1)
            if (p.sdwa or ("op_sel" in p.mods and not p.mn.startswith("v_pk_"))) and vw & (c.r | c.w): n = max(n, 1)
            if ("exec", 0) in p.w:
                if c.dpp: n = max(n, 5)
                if c.base.startswith(("v_readlane", "v_readfirstlane", "v_writelane", "v_permlane")): n = max(n, 4)
                if ("exec", 0) in c.r: n = max(n, 2)
        if c.kind == "mfma" and ("exec", 0) in p.w: n = max(n, 4)
        if c.kind == "vmem" and sw & c.r: n = max(n, 5)
    if p.kind in ("ds", "vmem") and c.kind == "valu" and c.dpp and vonly(p.w) & c.r: n = max(n, 0)
    if p.kind == "salu" and ("m0", 0) in p.w and c.kind == "vmem" and getattr(c, "lds", False): n = max(n, 1)
    if p.kind == "vmem" and getattr(p, "sdata", None):
        if p.sdata & c.w: n = max(n, 2 if c.kind in ("valu", "mfma") else 1)
    if p.kind == "mfma":
        P = p.passes
        tab = {4: (0, 6, 8, 8, 3), 8: (0, 10, 12, 12, 7)}[P]
        if c.kind == "mfma":
            if p.w & c.C:
                n = max(n, tab[0] if (p.w == c.C and c.passes == P) else tab[1])
            if p.w & (c.A | c.B): n = max(n, tab[2])
            if p.w & c.w and not (p.w & c.C): n = max(n, tab[1])
        elif c.kind == "valu":
            if p.w & (c.r | c.w): n = max(n, tab[3])
            if p.C & c.w: n = max(n, tab[4])
        elif c.kind in ("ds", "vmem"):
            if p.w & (c.r | c.w): n = max(n, tab[3])
    return n

class Asm:
    def __init__(self):
        self.L = []
    def __call__(self, s):
        for line in s.strip("\n").split("\n"):
            line = line.strip()
            if line: self.L.append(line)
    def finish(self):
        ins = [Ins(t) if not t.startswith(";") else None for t in self.L]
        out = []
        def window(seq):
            d = 0
            for x in reversed(seq):
                if isinstance(x, str): continue
                if x.is_label or x.is_dir: continue
                if x.mn in ("s_branch", "s_endpgm", "s_setpc_b64"): return
                yield x, d
                d += x.states()
                if d > 20: return
        for t, i in zip(self.L, ins):
            if i is None: out.append(t); continue
            if not (i.is_label or i.is_dir):
                miss = 0
                for p, d in window(out):
                    miss = max(miss, need(p, i) - d)
                while miss > 0:
                    k = min(miss, 16)
                    out.append(Ins(f"s_nop {k-1}")); miss -= k
            out.append(i)
        labels = {}
        for idx, x in enumerate(out):
            if not isinstance(x, str) and x.is_label: labels[x.text.split(":")[0].strip()] = idx
        for idx, x in enumerate(out):
            if isinstance(x, str) or x.is_label or x.is_dir: continue
            if x.mn.startswith("s_cbranch") or x.mn == "s_branch":
                tgt = labels.get(x.ops[0])
                if tgt is None: raise ValueError("unknown label " + x.ops[0])
                pre = out[:idx]
                d0 = 1
                j = tgt
                while j < len(out) and d0 <= 20:
                    c = out[j]; j += 1
                    if isinstance(c, str) or c.is_label or c.is_dir: continue
                    for p, d in window(pre):
                        if need(p, c) > d + d0:
                            raise ValueError(f"hazard across branch {x.text}: {p.text} -> {c.text} need {need(p,c)} have {d+d0}")
                    d0 += c.states()
                    if c.mn in ("s_branch", "s_endpgm", "s_setpc_b64"): break
        res = []
        for x in out:
            t = x if isinstance(x, str) else x.text
            if not isinstance(x, str) and (x.is_label or x.is_dir): res.append(t)
            elif isinstance(x, str): res.append(t)
            else: res.append("    " + t)
        return "\n".join(res) + "\n"
```

```python
import sys, struct, re
from asmlib import Asm
KN = "recurrent_scan__gqa_block_cached__glu_gated_geglu__decode_kernel"

def f2u(x): return struct.unpack("<I", struct.pack("<f", x))[0]

CNT, QP, NF, FP, AP, GP, STAMPS = 0x8000, 0x10000, 0x40000, 0x80000, 0x100000, 0x280000, 0x400000
PART = 131072
MLL  = PART + 12288
QL   = MLL + 1536
SCR  = QL + 2048
OS   = SCR + 4096
HS   = OS + 128
FLG  = HS + 128
LDS_TOTAL = FLG + 64
LOG2E = 1.4426950408889634
DPP = "row_mask:0xf bank_mask:0xf"

def gen(pk="nt", pv="nt", pw="nt", stamps=False, diag=None, warm=True, W=6, WA_=4, WT=None, WL=None, kdelay=16, qsleep=45,
        sleep=1, hsleep=1, hintsleep=1, hx=6, S=6, hoff=72, early_down=False, ssleep=0):
    E = Asm()
    WT = W if WT is None else WT
    def stamp(i):
        if stamps: E(f"s_memrealtime s[{64+2*i}:{65+2*i}]\ns_waitcnt lgkmcnt(0)")
    nls = [0]
    def lstamp(i, t):
        if stamps:
            nls[0] += 1
            E(f"s_cmp_eq_u32 s33, {t}\ns_cbranch_scc0 L_ls{nls[0]}"); stamp(i); E(f"L_ls{nls[0]}:")
    def dump_stamps(role, n):
        E(f"s_mov_b64 exec, 1\ns_lshl_b32 s58, s2, 8\ns_add_u32 s58, s58, {STAMPS + role*128}\nv_mov_b32 v1, s58")
        for i in range(n):
            E(f"v_mov_b32 v2, s{64+2*i}\nglobal_store_dword v1, v2, s[26:27] offset:{4*i}")
    def row_allreduce(regs, op, rs=(8, 4, 2, 1)):
        for r in rs:
            for v in regs: E(f"{op}_dpp v{v}, v{v}, v{v} row_ror:{r} {DPP}")
    def cross_rows(v, t, op):
        E(f"v_mov_b32 v{t}, v{v}\nv_permlane32_swap_b32 v{t}, v{v}\n{op} v{v}, v{v}, v{t}")
        E(f"v_mov_b32 v{t}, v{v}\nv_permlane16_swap_b32 v{t}, v{v}\n{op} v{v}, v{v}, v{t}")
    def wave_allreduce(v, t, op):
        row_allreduce([v], op); cross_rows(v, t, op)
    def fold4(*aa):
        for a in aa: E(f"v_permlane32_swap_b32 v{a}, v{a+2}\nv_permlane32_swap_b32 v{a+1}, v{a+3}")
        for a in aa: E(f"v_add_f32 v{a}, v{a}, v{a+2}\nv_add_f32 v{a+1}, v{a+1}, v{a+3}")
        for a in aa: E(f"v_permlane16_swap_b32 v{a}, v{a+1}")
        for a in aa: E(f"v_add_f32 v{a}, v{a}, v{a+1}")
    def rnd_bf16(v):
        E(f"v_cvt_pk_bf16_f32 v{v}, v{v}, v{v}\nv_and_b32 v{v}, 0xffff0000, v{v}")
    def unpack(dst, src, n):
        for i in range(n): E(f"v_lshlrev_b32 v{dst+2*i}, 16, v{src+i}\nv_and_b32 v{dst+2*i+1}, 0xffff0000, v{src+i}")
    def pack(dst, src, n):
        for i in range(n): E(f"v_cvt_pk_bf16_f32 v{dst+i}, v{src+2*i}, v{src+2*i+1}")
    def make_sel(SEL, t):
        E(f"""
v_and_b32 v{t}, 1, v0
v_cmp_eq_u32 vcc, 1, v{t}
v_mov_b32 v{t+1}, 0x0c0c0100
v_mov_b32 v{t+2}, 0x01000c0c
v_cndmask_b32 v{t+1}, v{t+1}, v{t+2}, vcc
v_mov_b32 v{t+2}, 0x0c0c0302
v_mov_b32 v{t+3}, 0x03020c0c
v_cndmask_b32 v{t+2}, v{t+2}, v{t+3}, vcc
v_bfe_u32 v{t}, v0, 1, 2
v_mov_b32 v{t+3}, 0x0c0c0c0c
""")
        for k in range(4):
            E(f"v_cmp_eq_u32 vcc, {k}, v{t}\nv_cndmask_b32 v{SEL+2*k}, v{t+3}, v{t+1}, vcc\nv_cndmask_b32 v{SEL+2*k+1}, v{t+3}, v{t+2}, vcc")
    def build_A1(dst, pk_, SEL, i):
        for k in range(4):
            E(f"v_perm_b32 v{dst+4*i+k}, v{pk_+i//2}, v{pk_+i//2}, v{SEL+2*k+(i&1)}")
    def build_A(dst, pk_, SEL):
        for i in range(8): build_A1(dst, pk_, SEL, i)
    def mm1(d, a, b, i):
        c = "0" if i == 0 else f"v[{d}:{d+3}]"
        E(f"v_mfma_f32_16x16x32_bf16 v[{d}:{d+3}], v[{a+4*i}:{a+4*i+3}], v[{b+4*i}:{b+4*i+3}], {c}")
    def mm(d, a, b, wait=None):
        for i in range(8):
            if wait: E(wait(i))
            mm1(d, a, b, i)
    def calc_cl():
        E("""
s_and_b32 s59, s2, 7
s_lshl3_add_u32 s31, s28, s59
s_sub_u32 s59, s59, s28
s_sub_u32 s59, s59, s28
s_sub_u32 s59, s59, 2
s_and_b32 s59, s59, 7
s_mul_i32 s58, s28, 6
s_add_u32 s58, s58, s59
s_add_u32 s58, s58, 32
s_cmp_lt_u32 s59, 6
s_cselect_b32 s58, s58, 63
s_bitcmp1_b32 s2, 5
s_cselect_b32 s31, s58, s31
""")

    E(f'.amdgcn_target "amdgcn-amd-amdhsa--gfx950"\n.text\n.p2align 12\n.globl {KN}\n.p2align 8\n.type {KN},@function\n{KN}:')
    E(f"""
s_cmp_ge_u32 s2, 256
s_cbranch_scc1 L_end0
v_mov_b32 v2, {FLG}
v_mov_b32 v4, 0
v_mov_b32 v5, 0
ds_write2_b64 v2, v[4:5], v[4:5] offset1:1
v_lshrrev_b32 v1, 6, v0
v_and_b32 v0, 63, v0
s_waitcnt lgkmcnt(0)
s_load_dwordx16 s[4:19], s[0:1], 0
s_load_dwordx8 s[20:27], s[0:1], 64
""")
    if stamps: E("s_memrealtime s[64:65]")
    E("""
s_barrier
v_readfirstlane_b32 s3, v1
s_bfe_u32 s29, s2, 0x20003
s_lshr_b32 s28, s2, 6
s_bfe_u32 s58, s2, 0x10005
s_and_b32 s59, s2, 7
s_lshl3_add_u32 s30, s58, s59
s_and_b32 s32, s2, 63
s_cmp_lt_u32 s3, 4
s_cbranch_scc1 L_str
""")
    XF, XR, WF, AX, WG_, WU_, SELA, TG, G = 8, 16, 20, 52, 84, 116, 148, 156, 160
    E(f"""
s_setprio 3
s_sub_u32 s3, s3, 4
v_lshlrev_b32 v1, 5, v0
v_lshrrev_b32 v2, 3, v0
v_and_b32 v4, 7, v0
v_lshlrev_b32 v4, 4, v4
v_lshl_add_u32 v4, v2, 16, v4
s_lshl2_add_u32 s58, s29, s3
s_lshl_b32 s59, s58, 7
v_lshl_add_u32 v3, v2, 4, s59
s_lshl_b32 s58, s58, 19
s_lshl4_add_u32 s59, s28, s30
s_lshl_b32 s59, s59, 7
s_add_u32 s58, s58, s59
s_or_b32 s59, s32, s3
s_waitcnt lgkmcnt(0)
s_cbranch_scc1 L_noinit
s_lshl_b32 s59, s28, 11
s_add_u32 s59, s59, {CNT}
v_lshl_add_u32 v6, v0, 8, s59
s_mov_b64 exec, 15
v_mov_b32 v5, {64*S}
s_mov_b64 exec, 31
global_store_dword v6, v5, s[26:27] sc1
s_mov_b64 exec, -1
L_noinit:
global_load_dwordx4 v[{XF}:{XF+3}], v1, s[4:5]
global_load_dwordx4 v[{XF+4}:{XF+7}], v1, s[4:5] offset:16
global_load_dwordx4 v[{XR}:{XR+3}], v3, s[4:5]
s_add_u32 s10, s10, s58
s_addc_u32 s11, s11, 0
""")
    for i in range(8):
        E(f"global_load_dwordx4 v[{WF+4*i}:{WF+4*i+3}], v4, s[10:11] {pw}")
        if i < 7: E("v_add_u32 v4, 0x2000, v4")
    E("s_load_dword s36, s[26:27], 0\ns_branch L_aux\nL_end0:\ns_endpgm")

    LDA, LDB, LDA2, LDB2, VW, LL = 2, 3, 4, 5, 6, 7
    KA, VA = 8, 12
    VM, VL, T0, T1 = 20, 21, 22, 23
    QF, KF, VF, S_, F, P, O, WD, WO, SELS = 24, 40, 72, 104, 112, 120, 124, 156, 188, 220
    TGA, TGB, FAS, FAD, OSA, APA, NFA, FLA, ONE, MSK, ORD = 228, 229, 230, 231, 232, 233, 234, 235, 236, 237, 238
    E("L_str:")
    if warm:
        E("s_mov_b64 exec, 0")
        for w in range(3): E(f"s_cmp_eq_u32 s3, {w}\ns_cbranch_scc1 L_ret1 ;;W1_{w}")
        E("s_branch L_ret1 ;;W1_3\nL_ret1:\ns_mov_b64 exec, -1")
    def tile_off():
        E("s_lshl2_add_u32 s63, s62, s38\ns_and_b32 s63, s63, 2047\ns_lshl_b32 s63, s63, 13")
    def set_ptr(which):
        d, b = (6, 54) if which == "K" else (8, 56)
        E(f"s_add_u32 s{d}, s{b}, s63\ns_addc_u32 s{d+1}, s{b+1}, 0")
    E(f"""
v_lshrrev_b32 v1, 4, v0
v_and_b32 v{LDA}, 15, v0
v_lshlrev_b32 v{LDB}, 1, v1
v_xor_b32 v{LDA}, v{LDA}, v{LDB}
v_lshlrev_b32 v{LDA}, 4, v{LDA}
v_lshl_add_u32 v{LDA}, v1, 8, v{LDA}
v_xor_b32 v{LDB}, 0x80, v{LDA}
v_add_u32 v{LDA2}, 0x1000, v{LDA}
v_add_u32 v{LDB2}, 0x1000, v{LDB}
s_mul_i32 s38, s28, {hoff}
s_add_u32 s38, s38, s3
s_mov_b32 s62, s32
""")
    tile_off()
    E("""
s_lshl_b32 s59, s28, 24
s_lshl_b32 s34, s3, 15
s_add_u32 s35, s34, 0x4000
s_waitcnt lgkmcnt(0)
s_add_u32 s54, s6, s59
s_addc_u32 s55, s7, 0
s_add_u32 s56, s8, s59
s_addc_u32 s57, s9, 0
""")
    set_ptr("K"); set_ptr("V")
    def ld_kv(which, js, win):
        base, slot, pol = (6, 34, pk) if which == "K" else (8, 35, pv)
        cur = None
        for j in js:
            if cur != j >> 2:
                cur = j >> 2
                E(f"s_mov_b32 m0, s{slot}" if cur == 0 else f"s_add_u32 m0, s{slot}, 0x1000")
            if win: E(f"s_waitcnt vmcnt({win-1})")
            v = [[LDA, LDB], [LDA2, LDB2]][j >> 2][j & 1]
            E(f"global_load_lds_dwordx4 v{v}, s[{base}:{base+1}] offset:{(j&3)*1024} {pol}")
            if j == 7: E(f"s_xor_b32 s{slot}, s{slot}, 0x2000")
    def ld_w(srd, dst, js, win):
        for i in js:
            so = "0" if i < 2 else f"s{50 + i//2}"
            if win: E(f"s_waitcnt vmcnt({win-1})")
            E(f"buffer_load_dwordx4 v[{dst+4*i}:{dst+4*i+3}], v{VW}, s[{srd}:{srd+3}], {so} offen offset:{(i&1)*2048} {pw}")
    if kdelay: E(f"s_sleep {kdelay}")
    ld_kv("K", range(W), None)
    E("s_load_dword s36, s[26:27], 0")
    stamp(1)
    if warm:
        E("s_mov_b64 exec, 0")
        for w in range(3): E(f"s_cmp_eq_u32 s3, {w}\ns_cbranch_scc1 L_ret2 ;;W2_{w}")
        E("s_branch L_ret2 ;;W2_3\nL_ret2:\ns_mov_b64 exec, -1")
    calc_cl()
    E(f"""
s_cmp_lt_u32 s31, 56
s_cselect_b32 s42, {64*2048}, 0
s_lshl2_add_u32 s59, s29, s3
s_lshl_b32 s59, s59, 7
s_lshl_b32 s58, s31, 17
s_add_u32 s58, s58, s59
s_add_u32 s40, s20, s58
s_addc_u32 s41, s21, 0
s_mov_b32 s43, 0x20000
s_lshl4_add_u32 s58, s28, s30
s_lshl_b32 s58, s58, 17
s_add_u32 s58, s58, s59
s_add_u32 s44, s12, s58
s_addc_u32 s45, s13, 0
s_mov_b32 s46, {64*2048}
s_mov_b32 s47, 0x20000
s_movk_i32 s51, 0x1000
s_movk_i32 s52, 0x2000
s_movk_i32 s53, 0x3000
v_lshrrev_b32 v{T0}, 3, v0
v_and_b32 v{T1}, 7, v0
v_lshlrev_b32 v{T1}, 4, v{T1}
v_lshl_add_u32 v{VW}, v{T0}, 14, v{T1}
v_lshlrev_b32 v{OSA}, 4, v{T0}
v_add_u32 v{OSA}, {OS}, v{OSA}
s_lshl_b32 s58, s3, 15
v_and_b32 v{T0}, 15, v0
v_and_b32 v{T1}, 7, v0
v_lshlrev_b32 v{T1}, 1, v{T1}
v_xor_b32 v{T1}, v{T1}, v1
v_lshlrev_b32 v{T1}, 4, v{T1}
v_lshl_add_u32 v{KA}, v{T0}, 8, v{T1}
v_add_u32 v{KA}, s58, v{KA}
v_xor_b32 v{KA+1}, 64, v{KA}
v_xor_b32 v{KA+2}, 0x80, v{KA}
v_xor_b32 v{KA+3}, 0xc0, v{KA}
s_add_u32 s58, s58, 0x4000
v_lshrrev_b32 v{T0}, 2, v0
v_and_b32 v{T1}, 7, v{T0}
v_lshlrev_b32 v{T1}, 5, v{T1}
v_lshl_add_u32 v{VA}, v{T0}, 8, v{T1}
v_and_b32 v{T1}, 3, v0
v_lshl_add_u32 v{VA}, v{T1}, 3, v{VA}
v_add_u32 v{VA}, s58, v{VA}
""")
    for db in range(1, 8): E(f"v_xor_b32 v{VA+db}, {db*32}, v{VA}")
    ld_kv("K", range(W, 8), W)
    E(f"v_mov_b32 v{VM}, 0xff7f0000\nv_mov_b32 v{VL}, 0")
    for i in range(32): E(f"v_mov_b32 v{O+i}, 0")
    ld_kv("V", range(0, 2), W)
    make_sel(SELS, F)
    ld_kv("V", range(2, 4), W)
    E(f"""
v_lshlrev_b32 v{LL}, 4, v0
v_add_u32 v{LL}, {PART}, v{LL}
v_and_b32 v{T0}, 7, v0
v_bfe_u32 v{T1}, v0, 3, 1
v_lshl_add_u32 v{T0}, v{T0}, 1, v{T1}
v_mul_u32_u24 v{APA}, {64*384}, v{T0}
v_lshl_add_u32 v{APA}, v1, 4, v{APA}
s_lshl_b32 s58, s28, 10
s_add_u32 s58, s58, s32
s_mul_i32 s58, s58, 384
s_add_u32 s58, s58, {AP}
v_add_u32 v{APA}, s58, v{APA}
s_lshl_b32 s58, s28, 13
s_add_u32 s58, s58, {NF}
v_lshl_add_u32 v{NFA}, v0, 7, s58
v_mov_b32 v{FLA}, {FLG}
v_mov_b32 v{ONE}, 1
v_mov_b32 v{MSK}, 0xffffff00
s_lshl3_add_u32 s58, s28, s3
s_lshl_b32 s58, s58, 8
s_add_u32 s58, s58, {CNT}
s_add_u32 s48, s26, s58
s_addc_u32 s49, s27, 0
s_lshl_b32 s58, s28, 11
s_add_u32 s58, s58, {CNT + 1024}
s_add_u32 s14, s26, s58
s_addc_u32 s15, s27, 0
s_lshl2_add_u32 s58, s29, s3
s_lshl_b32 s58, s58, 15
s_add_u32 s58, s58, {FP}
v_bfe_u32 v{T0}, v0, 2, 1
v_lshl_add_u32 v{FAS}, v{T0}, 14, s58
v_and_b32 v{T0}, 3, v0
v_lshl_add_u32 v{FAS}, v{T0}, 5, v{FAS}
v_bfe_u32 v{T0}, v0, 4, 1
v_lshl_add_u32 v{FAS}, v{T0}, 4, v{FAS}
v_lshrrev_b32 v{T0}, 5, v0
v_lshl_add_u32 v{FAS}, v{T0}, 3, v{FAS}
s_add_u32 s59, s31, 64
s_lshl_b32 s59, s59, 7
v_add_u32 v{FAD}, s59, v{FAS}
s_lshl4_add_u32 s58, s28, s30
s_lshl_b32 s58, s58, 7
v_add_u32 v{FAS}, s58, v{FAS}
s_mov_b32 s37, 0xffffff00
v_lshlrev_b32 v{T0}, 4, v{T0}
s_waitcnt lgkmcnt(0)
s_add_u32 s36, s36, 0x01010101
s_lshr_b32 s16, s36, 8
s_lshr_b32 s17, s36, 16
s_lshr_b32 s18, s36, 24
v_lshrrev_b32 v{TGA}, v{T0}, s36
v_bfe_u32 v{TGB}, v{TGA}, 8, 8
v_and_b32 v{TGA}, 0xff, v{TGA}
v_and_b32 v{T0}, 7, v0
v_lshlrev_b32 v{T0}, 8, v{T0}
v_lshl_add_u32 v{T0}, v1, 4, v{T0}
v_add_u32 v{T0}, {QL}, v{T0}
s_mov_b32 s33, 1
s_mov_b32 s60, {f2u(128 ** -0.5):#x}
s_mov_b32 s61, {f2u(LOG2E):#x}
s_mov_b32 s20, 0xff00ff00
s_mov_b32 s21, 0xff00ff00
""")
    ld_kv("V", range(4, 8), W)
    if early_down: ld_w(40, WD, range(8), W)
    E("s_add_u32 s62, s62, 64"); tile_off(); set_ptr("K"); set_ptr("V")
    ld_kv("K", range(8), W); ld_kv("V", range(W), W)
    E("s_add_u32 s62, s62, 64")
    stamp(2)
    E("s_barrier")
    stamp(3)
    for j in range(4): E(f"ds_read_b128 v[{QF+4*j}:{QF+4*j+3}], v{T0} offset:{64*j}")
    def qk_softmax(issue):
        pend = list(range(W, 8)) if issue else []
        def point():
            if pend: ld_kv("V", [pend.pop(0)], W)
        for s in range(2):
            for j in range(4):
                r = KF + (s*4+j)*4
                E(f"ds_read_b128 v[{r}:{r+3}], v{KA+j} offset:{s*4096}")
        for s in range(2):
            for j in range(4):
                r = KF + (s*4+j)*4
                E(f"s_waitcnt lgkmcnt({7-(s*4+j)})")
                c = "0" if j == 0 else f"v[{S_+4*s}:{S_+4*s+3}]"
                E(f"v_mfma_f32_16x16x32_bf16 v[{S_+4*s}:{S_+4*s+3}], v[{r}:{r+3}], v[{QF+4*j}:{QF+4*j+3}], {c}")
        for i in range(4): E(f"v_xor_b32 v{KA+i}, 0x2000, v{KA+i}")
        point()
        pack(P, S_, 4); unpack(F, P, 4)
        for i in range(8): E(f"v_mul_f32 v{F+i}, s60, v{F+i}")
        pack(P, F, 4); unpack(F, P, 4)
        E(f"""
v_max3_f32 v{T0}, v{F}, v{F+1}, v{F+2}
v_max3_f32 v{T1}, v{F+3}, v{F+4}, v{F+5}
v_max3_f32 v{T0}, v{T0}, v{F+6}, v{F+7}
v_max_f32 v{T0}, v{T0}, v{T1}
""")
        cross_rows(T0, T1, "v_max_f32")
        if len(pend) > 1: point()
        E(f"""
v_max_f32 v{T0}, v{T0}, v{VM}
v_sub_f32 v{T1}, v{VM}, v{T0}
v_mul_f32 v{T1}, s61, v{T1}
v_exp_f32 v{T1}, v{T1}
v_mov_b32 v{VM}, v{T0}
""")
        for i in range(8): E(f"v_sub_f32 v{F+i}, v{F+i}, v{T0}")
        for i in range(8): E(f"v_mul_f32 v{F+i}, s61, v{F+i}")
        for i in range(8): E(f"v_exp_f32 v{F+i}, v{F+i}")
        point()
        if issue:
            for i in range(32): E(f"v_mul_f32 v{O+i}, v{O+i}, v{T1}")
        pack(P, F, 4)
        E(f"""
v_add_f32 v{F}, v{F}, v{F+1}
v_add_f32 v{F+2}, v{F+2}, v{F+3}
v_add_f32 v{F+4}, v{F+4}, v{F+5}
v_add_f32 v{F+6}, v{F+6}, v{F+7}
v_add_f32 v{F}, v{F}, v{F+2}
v_add_f32 v{F+4}, v{F+4}, v{F+6}
v_add_f32 v{F}, v{F}, v{F+4}
v_fma_f32 v{VL}, v{VL}, v{T1}, v{F}
""")
        while pend: point()
    def pv_():
        for db in range(8):
            for s in range(2):
                r = VF + db*4 + s*2
                E(f"ds_read_b64_tr_b16 v[{r}:{r+1}], v{VA+db} offset:{s*4096}")
        for db in range(8):
            r = VF + db*4
            E(f"s_waitcnt lgkmcnt({14-2*db})")
            E(f"v_mfma_f32_16x16x32_bf16 v[{O+4*db}:{O+4*db+3}], v[{r}:{r+3}], v[{P}:{P+3}], v[{O+4*db}:{O+4*db+3}]")
            E(f"v_xor_b32 v{VA+db}, 0x2000, v{VA+db}")
    qk_softmax(False)
    pv_()
    E("s_branch L_qk\nL_e0:\n.p2align 12\nL_loop:")
    lstamp(11, 4); lstamp(12, 5)
    E(f"""
s_add_u32 s62, s62, 64
s_cmp_lt_u32 s33, {S-1}
s_cbranch_scc1 L_static
s_mov_b32 s62, 1
s_atomic_add s62, s[48:49], 0 glc
L_static:
""")
    ld_kv("K", range(W, 8), W)
    set_ptr("V")
    ld_kv("V", range(W), W)
    E("L_qk:")
    qk_softmax(True)
    E("s_cmp_ge_u32 s62, 512\ns_cbranch_scc1 L_wk")
    tile_off(); set_ptr("K")
    ld_kv("K", range(W), W)
    E("L_pv:")
    pv_()
    E("s_add_u32 s33, s33, 1\ns_cmp_lt_u32 s62, 512\ns_cbranch_scc1 L_loop\ns_branch L_stail")
    E("L_wk:")
    cross_rows(VL, T1, "v_add_f32")
    if early_down: ld_w(44, WO, range(W), W)
    else: ld_w(40, WD, range(W), W)
    E(f"s_mov_b64 exec, 1\nds_add_rtn_u32 v{ORD}, v{FLA}, v{ONE} offset:4\ns_mov_b64 exec, -1\ns_branch L_pv")

    def embed(r, n=4):
        for i in range(n): E(f"v_and_or_b32 v{r+i}, v{r+i}, s37, v{TG+i%4}")
    def strip(r, n=4):
        for i in range(n): E(f"v_and_b32 v{r+i}, s37, v{r+i}")
    npoll = [0]
    def poll(loads, grs, t, slp):
        n = npoll[0]; npoll[0] += 1
        MK = 40
        if len(loads) == 1:
            r = grs[0]
            E(f"L_poll{n}:\n{loads[0]}\ns_waitcnt vmcnt(0)")
            E(f"v_perm_b32 v{t+1}, v{r+1}, v{r}, s38\nv_perm_b32 v{t+2}, v{r+3}, v{r+2}, s39\nv_or_b32 v{t+1}, v{t+1}, v{t+2}")
            E(f"v_cmp_ne_u32 vcc, s36, v{t+1}\ns_cbranch_vccz L_pok{n}\ns_mov_b64 exec, vcc\ns_sub_u32 s62, s62, 1")
        else:
            for l in loads: E(l)
            E(f"s_branch L_chk{n}\nL_poll{n}:")
            for k, l in enumerate(loads):
                E(f"s_mov_b64 exec, s[{MK+2*k}:{MK+2*k+1}] ;nopad\ns_cbranch_execz L_pl{n}_{k} ;nopad\n{l} ;nopad\nL_pl{n}_{k}:")
            E(f"s_mov_b64 exec, -1 ;nopad\nL_chk{n}:\ns_waitcnt vmcnt(0)")
            for k, r in enumerate(grs):
                E(f"v_perm_b32 v{t+1}, v{r+1}, v{r}, s38\nv_perm_b32 v{t+2}, v{r+3}, v{r+2}, s39\nv_or_b32 v{t+1}, v{t+1}, v{t+2}")
                E(f"v_cmp_ne_u32 s[{MK+2*k}:{MK+2*k+1}], s36, v{t+1}")
            E(f"s_or_b64 vcc, s[{MK}:{MK+1}], s[{MK+2}:{MK+3}]")
            for k in range(2, len(loads)): E(f"s_or_b64 vcc, vcc, s[{MK+2*k}:{MK+2*k+1}]")
            E(f"s_cbranch_scc0 L_pok{n}\ns_sub_u32 s62, s62, 1")
        if slp: E(f"s_sleep {slp}")
        E(f"s_cbranch_scc0 L_poll{n}\nL_pok{n}:")
        if len(loads) == 1: E("s_mov_b64 exec, -1")

    E("L_e1:\n.p2align 12\nL_aux:")
    E("s_mov_b32 s37, 0xffffff00\ns_mov_b32 s38, 0x0c0c0400\ns_mov_b32 s39, 0x04000c0c\ns_mov_b32 s62, 400000")
    make_sel(SELA, 4)
    calc_cl()
    E(f"""
s_lshl_b32 s58, s3, 10
s_add_u32 s58, s58, {SCR}
v_lshl_add_u32 v2, v0, 4, s58
v_bfe_u32 v3, v0, 1, 3
v_and_b32 v1, 1, v0
v_lshl_add_u32 v3, v1, 4, v3
v_lshlrev_b32 v3, 4, v3
v_add_u32 v3, {SCR}, v3
s_waitcnt vmcnt(9)
""")
    unpack(G, XF, 8)
    E(f"v_add_f32 v1, v{G}, v{G+1}\nv_add_f32 v5, v{G+2}, v{G+3}")
    for i in range(4, 16, 2): E(f"v_add_f32 v1, v1, v{G+i}\nv_add_f32 v5, v5, v{G+i+1}")
    E("v_add_f32 v1, v1, v5")
    wave_allreduce(1, 5, "v_add_f32")
    E(f"v_mul_f32 v1, {f2u(1/1024):#x}, v1")
    for i in range(16): E(f"v_sub_f32 v{G+i}, v{G+i}, v1")
    E(f"v_mul_f32 v6, v{G}, v{G}\nv_mul_f32 v5, v{G+1}, v{G+1}")
    for i in range(2, 16, 2): E(f"v_fmac_f32 v6, v{G+i}, v{G+i}\nv_fmac_f32 v5, v{G+i+1}, v{G+i+1}")
    E("v_add_f32 v6, v6, v5")
    wave_allreduce(6, 5, "v_add_f32")
    E(f"v_mul_f32 v6, {f2u(1/1024):#x}, v6")
    rnd_bf16(1); rnd_bf16(6)
    E(f"v_add_f32 v6, {f2u(1e-5):#x}, v6")
    rnd_bf16(6)
    E("v_sqrt_f32 v6, v6")
    rnd_bf16(6)
    E("v_rcp_f32 v6, v6\ns_waitcnt vmcnt(8)")
    unpack(G, XR, 4)
    for i in range(8): E(f"v_sub_f32 v{G+i}, v{G+i}, v1")
    pack(XR, G, 4); unpack(G, XR, 4)
    for i in range(8): E(f"v_mul_f32 v{G+i}, v{G+i}, v6")
    pack(XR, G, 4)
    build_A(AX, XR, SELA)
    stamp(1)
    mm(G, AX, WF, wait=lambda i: f"s_waitcnt vmcnt({7-i})")
    E(f"""
s_waitcnt lgkmcnt(0)
s_add_u32 s36, s36, 0x01010101
s_and_b32 s58, s36, 0xff
v_mov_b32 v{TG}, s58
s_bfe_u32 s58, s36, 0x80008
v_mov_b32 v{TG+1}, s58
s_bfe_u32 s58, s36, 0x80010
v_mov_b32 v{TG+2}, s58
s_lshr_b32 s58, s36, 24
v_mov_b32 v{TG+3}, s58
v_mov_b32 v5, {FLG}
v_mov_b32 v6, 1
ds_write_b128 v2, v[{G}:{G+3}]
s_mov_b64 exec, 1
ds_add_u32 v5, v6
s_mov_b64 exec, -1
""")
    stamp(2)
    E(f"""
s_cmp_lg_u32 s3, 0
s_cbranch_scc1 L_qpub
L_xw:
ds_read_b32 v6, v5
s_waitcnt lgkmcnt(0)
v_cmp_ne_u32 vcc, 4, v6
s_cbranch_vccnz L_xw
""")
    for k in range(8):
        E(f"ds_read_b128 v[{G+4*k}:{G+4*k+3}], v3 offset:{(k // 2) * 1024 + (k % 2) * 640}")
    E(f"""
s_lshl4_add_u32 s58, s28, s30
s_lshl2_add_u32 s58, s58, s29
s_lshl_b32 s58, s58, 8
s_add_u32 s58, s58, {QP}
v_lshl_add_u32 v1, v0, 4, s58
s_waitcnt lgkmcnt(0)
""")
    for st in (16, 8, 4):
        for i in range(st): E(f"v_add_f32 v{G+i}, v{G+i}, v{G+st+i}")
    embed(G)
    E(f"s_mov_b64 exec, 0xffff\nglobal_store_dwordx4 v1, v[{G}:{G+3}], s[26:27] sc1\ns_mov_b64 exec, -1\nL_qpub:")
    stamp(3)
    E(f"""
s_lshl2_add_u32 s58, s28, s3
s_lshl_b32 s58, s58, 12
s_add_u32 s58, s58, {QP}
v_lshrrev_b32 v1, 4, v0
v_and_b32 v4, 15, v0
v_lshl_add_u32 v4, v4, 4, s58
v_lshl_add_u32 v4, v1, 10, v4
s_sleep {qsleep}
""")
    poll([f"global_load_dwordx4 v[{G+4*k}:{G+4*k+3}], v4, s[26:27] offset:{256*k} sc1" for k in range(4)],
         [G+4*k for k in range(4)], 5, 4)
    strip(G, 16)
    for st in (8, 4):
        for i in range(st): E(f"v_add_f32 v{G+i}, v{G+i}, v{G+st+i}")
    pack(G, G, 2)
    E(f"""
s_lshl_b32 s58, s3, 9
s_add_u32 s58, s58, {QL}
v_lshl_add_u32 v1, v0, 3, s58
ds_write_b64 v1, v[{G}:{G+1}]
s_waitcnt lgkmcnt(0)
""")
    stamp(4)
    E(f"""
s_cmp_lt_u32 s31, 56
s_cbranch_scc1 L_ffn
s_barrier
s_branch L_noffn
L_ffn:
s_lshl2_add_u32 s58, s29, s3
s_mul_i32 s59, s58, {64*7168}
s_lshl_b32 s63, s31, 7
s_add_u32 s59, s59, s63
s_add_u32 s16, s16, s59
s_addc_u32 s17, s17, 0
s_add_u32 s18, s18, s59
s_addc_u32 s19, s19, 0
v_lshrrev_b32 v1, 3, v0
v_and_b32 v4, 7, v0
v_lshlrev_b32 v5, 4, v4
v_mul_u32_u24 v1, {8*7168}, v1
v_add_u32 v1, v1, v5
""")
    for i in range(8):
        if 2*i == WA_: E("s_barrier")
        if 2*i >= WA_: E(f"s_waitcnt vmcnt({WA_-1})")
        E(f"global_load_dwordx4 v[{WG_+4*i}:{WG_+4*i+3}], v1, s[16:17] {pw}")
        if 2*i >= WA_: E(f"s_waitcnt vmcnt({WA_-1})")
        E(f"global_load_dwordx4 v[{WU_+4*i}:{WU_+4*i+3}], v1, s[18:19] {pw}")
        if i < 7: E("v_add_u32 v1, 7168, v1")
    E(f"""
s_lshl4_add_u32 s58, s31, s58
s_lshl_b32 s58, s58, 9
s_add_u32 s58, s58, {GP}
v_lshl_add_u32 v5, v4, 5, s58
v_bfe_u32 v4, v0, 4, 1
v_lshl_add_u32 v5, v4, 4, v5
v_lshrrev_b32 v4, 5, v0
v_lshl_add_u32 v5, v4, 8, v5
s_waitcnt vmcnt(0)
""")
    mm(G, AX, WG_); mm(G+4, AX, WU_)
    for i in range(4): E(f"v_permlane32_swap_b32 v{G+i}, v{G+4+i}")
    for i in range(4): E(f"v_add_f32_dpp v{G+i}, v{G+4+i}, v{G+i} row_ror:8 {DPP}")
    embed(G)
    E(f"""
s_mov_b32 exec_lo, 0x00ff00ff
s_mov_b32 exec_hi, 0x00ff00ff
global_store_dwordx4 v5, v[{G}:{G+3}], s[26:27] sc1
s_mov_b64 exec, -1
s_cmp_lg_u32 s3, 0
s_cbranch_scc1 L_noffn
s_lshl_b32 s58, s31, 13
s_add_u32 s58, s58, {GP + 4096}
v_and_b32 v4, 15, v0
v_lshl_add_u32 v5, v4, 4, s58
v_lshrrev_b32 v1, 4, v0
v_lshl_add_u32 v5, v1, 9, v5
s_sleep 100
""")
    poll([f"global_load_dwordx4 v[{G+8*k+4*u}:{G+8*k+4*u+3}], v5, s[26:27] offset:{2048*k - 4096 + 256*u} sc1" for k in range(4) for u in range(2)],
         [G+4*k for k in range(8)], G+32, 30)
    strip(G, 32)
    for st in (16, 8):
        for i in range(st): E(f"v_add_f32 v{G+i}, v{G+i}, v{G+st+i}")
    fold4(G, G+4)
    rnd_bf16(G); rnd_bf16(G+4)
    c1 = -2 * 0.7978845608028654 * LOG2E
    E(f"""
v_mul_f32 v{G+1}, v{G}, v{G}
v_mov_b32 v{G+2}, {f2u(c1):#x}
v_mul_f32 v{G+1}, {f2u(c1*0.044715):#x}, v{G+1}
v_add_f32 v{G+1}, v{G+1}, v{G+2}
v_mul_f32 v{G+1}, v{G+1}, v{G}
v_exp_f32 v{G+1}, v{G+1}
v_add_f32 v{G+1}, 1.0, v{G+1}
v_rcp_f32 v{G+1}, v{G+1}
v_mul_f32 v{G}, v{G}, v{G+1}
""")
    rnd_bf16(G)
    E(f"""
v_mul_f32 v{G}, v{G}, v{G+4}
v_cvt_pk_bf16_f32 v{G}, v{G}, v{G}
v_lshl_add_u32 v4, v4, 2, v1
v_lshlrev_b32 v4, 1, v4
v_add_u32 v4, {HS}, v4
ds_write_b16 v4, v{G}
v_mov_b32 v4, {FLG}
v_mov_b32 v5, 1
ds_write_b32 v4, v5 offset:8
s_branch L_noffn
""")
    E("L_e2:\n.p2align 12\nL_noffn:")
    if warm: E("s_mov_b64 exec, 0\ns_branch L_ret3 ;;W3_0\nL_ret3:\ns_mov_b64 exec, -1")
    stamp(5)
    CA, CB, CM, OW, FS, FD, XO, OA = 8, 9, 10, 11, 12, 13, 14, 15
    E(f"""
s_lshl4_add_u32 s58, s28, s30
s_mul_i32 s58, s58, {64*384}
s_add_u32 s58, s58, {AP}
v_lshrrev_b32 v5, 2, v0
v_mul_u32_u24 v5, 384, v5
v_add_u32 v5, s58, v5
v_and_b32 v4, 3, v0
v_mul_u32_u24 v6, 6144, v4
v_add_u32 v{CM}, v5, v6
s_lshl_b32 s58, s3, 6
s_add_u32 s58, s58, 3072
v_lshl_add_u32 v{CA}, v4, 4, v5
v_add_u32 v{CA}, s58, v{CA}
v_add_u32 v{CB}, {2*6144}, v{CA}
v_lshrrev_b32 v1, 4, v0
v_lshl_add_u32 v5, v4, 2, v1
s_lshl_b32 s58, s3, 5
s_add_u32 s58, s58, {OS}
v_lshl_add_u32 v{OW}, v5, 1, s58
s_and_b32 s58, s2, 7
s_lshl_b32 s58, s58, 5
s_lshr_b32 s59, s2, 3
s_add_u32 s63, s58, s59
s_lshr_b32 s58, s63, 3
s_lshl_b32 s58, s58, 14
s_and_b32 s59, s63, 7
s_lshl4_add_u32 s58, s59, s58
s_add_u32 s58, s58, {FP}
v_lshl_add_u32 v{FS}, v0, 7, s58
s_add_u32 s58, s58, {64*128}
v_min_u32 v5, 55, v0
v_lshl_add_u32 v{FD}, v5, 7, s58
s_lshl_b32 s63, s63, 3
v_lshl_add_u32 v{OA}, v1, 1, s63
global_load_ushort v{XO}, v{OA}, s[4:5]
s_lshl_b32 s58, s2, 7
s_add_u32 s58, s58, {NF}
s_add_u32 s34, s26, s58
s_addc_u32 s35, s27, 0
s_mov_b32 s61, {f2u(LOG2E):#x}
v_mov_b32 v5, {FLG}
L_aw:
s_sleep 4
ds_read_b32 v6, v5 offset:4
s_waitcnt lgkmcnt(0)
v_cmp_eq_u32 vcc, 0, v6
s_cbranch_vccnz L_aw
""")
    stamp(6)
    E(f"""
L_hint:
s_load_dword s58, s[34:35], 0 glc
s_waitcnt lgkmcnt(0)
s_cmp_eq_u32 s58, s36
s_cbranch_scc1 L_hinted
s_sleep {hintsleep}
s_sub_u32 s62, s62, 1
s_cbranch_scc0 L_hint
L_hinted:
""")
    stamp(7)
    M_ = G + 16
    poll([f"global_load_dwordx4 v[{M_}:{M_+3}], v{CM}, s[26:27] offset:256 sc1"] +
         [f"global_load_dwordx4 v[{G+4*k}:{G+4*k+3}], v{CA if k < 2 else CB}, s[26:27] offset:{6144*(k&1)-3072} sc1" for k in range(4)],
         [M_] + [G+4*k for k in range(4)], 5, hsleep)
    stamp(8)
    E(f"v_and_b32 v{M_}, s37, v{M_}\nv_and_b32 v{M_+1}, s37, v{M_+1}")
    strip(G, 1)
    E(f"v_max_f32_dpp v6, v{M_}, v{M_} row_ror:8 {DPP}")
    strip(G+1, 2)
    E(f"v_max_f32_dpp v6, v6, v6 row_ror:4 {DPP}")
    strip(G+3, 2)
    E(f"v_max_f32_dpp v6, v6, v6 row_ror:2 {DPP}")
    strip(G+5, 2)
    E(f"v_max_f32_dpp v6, v6, v6 row_ror:1 {DPP}\nv_mov_b32 v7, v6")
    strip(G+7, 2)
    E(f"v_permlane32_swap_b32 v7, v6\nv_max_f32 v6, v6, v7\nv_mov_b32 v7, v6")
    strip(G+9, 2)
    E(f"v_permlane16_swap_b32 v7, v6\nv_max_f32 v6, v6, v7")
    E(f"v_sub_f32 v5, v{M_}, v6\nv_mul_f32 v5, s61, v5\nv_exp_f32 v5, v5")
    strip(G+11, 5)
    E(f"v_mul_f32 v7, v5, v{M_+1}")
    for k in range(4):
        op = "v_mul_f32_dpp" if k == 0 else "v_fmac_f32_dpp"
        for i in range(4): E(f"{op} v{G+i}, v5, v{G+4*k+i} quad_perm:[{k},{k},{k},{k}] {DPP}")
        E(f"v_add_f32_dpp v7, v7, v7 row_ror:{8 >> k} {DPP}")
    E(f"""
v_permlane32_swap_b32 v{G}, v{G+2}
v_permlane32_swap_b32 v{G+1}, v{G+3}
v_mov_b32 v6, v7
v_add_f32 v{G}, v{G}, v{G+2}
v_add_f32 v{G+1}, v{G+1}, v{G+3}
v_permlane32_swap_b32 v6, v7
v_add_f32 v7, v7, v6
v_permlane16_swap_b32 v{G}, v{G+1}
v_mov_b32 v6, v7
v_add_f32 v{G}, v{G}, v{G+1}
v_permlane16_swap_b32 v6, v7
v_add_f32_dpp v{G}, v{G}, v{G} row_ror:8 {DPP}
v_add_f32 v7, v7, v6
v_rcp_f32 v7, v7
v_add_f32_dpp v{G}, v{G}, v{G} row_ror:4 {DPP}
v_mul_f32 v{G}, v{G}, v7
v_cvt_pk_bf16_f32 v{G}, v{G}, v{G}
ds_write_b16 v{OW}, v{G}
s_waitcnt lgkmcnt(0)
s_barrier
s_cmp_lg_u32 s3, 0
s_cbranch_scc1 L_end
""")
    stamp(9)
    poll([f"global_load_dwordx4 v[{G+4}:{G+7}], v{FD}, s[26:27] sc1"], [G+4], 5, sleep)
    strip(G+4, 4)
    E("v_cmp_gt_u32 vcc, 56, v0")
    for i in range(4): E(f"v_cndmask_b32 v{G+4+i}, 0, v{G+4+i}, vcc")
    fold4(G+4)
    row_allreduce([G+4], "v_add_f32")
    rnd_bf16(G+4)
    E(f"""
v_mul_f32 v21, {f2u(-LOG2E):#x}, v{G+4}
v_exp_f32 v21, v21
v_add_f32 v21, 1.0, v21
v_rcp_f32 v21, v21
v_mul_f32 v21, v21, v{G+4}
v_lshlrev_b32 v{XO}, 16, v{XO}
""")
    rnd_bf16(21)
    stamp(10)
    if ssleep: E(f"s_sleep {ssleep}")
    poll([f"global_load_dwordx4 v[{G}:{G+3}], v{FS}, s[26:27] sc1"], [G], 5, sleep)
    stamp(11)
    strip(G, 4)
    fold4(G)
    row_allreduce([G], "v_add_f32")
    rnd_bf16(G)
    E(f"v_mul_f32 v5, v21, v{G}")
    rnd_bf16(5)
    E(f"""
v_add_f32 v5, v5, v{XO}
v_cvt_pk_bf16_f32 v5, v5, v5
s_mov_b32 exec_lo, 0x00010001
s_mov_b32 exec_hi, 0x00010001
global_store_short v{OA}, v5, s[22:23]
s_cmp_lg_u32 s2, 0
s_cbranch_scc1 L_fin
s_mov_b64 exec, 1
v_mov_b32 v5, 0
v_mov_b32 v6, s36
global_store_dword v5, v6, s[26:27] sc1
L_fin:
""")
    if stamps:
        stamp(12); dump_stamps(1, 13)
    if diag is not None:
        k, cond = diag
        E(f"s_sub_u32 s58, s{64+2*k}, s64\ns_lshl_b32 s58, s58, 2")
        if cond is not None: E(cond + "\ns_cselect_b32 s58, s58, 0")
        E("s_add_u32 s58, s58, 6000\nL_spin:\ns_memrealtime s[60:61]\ns_waitcnt lgkmcnt(0)\ns_sub_u32 s59, s60, s64\ns_cmp_lt_u32 s59, s58\ns_cbranch_scc1 L_spin")
    E("L_end:\ns_endpgm")

    def rest_w(win):
        if early_down: ld_w(44, WO, range(W, 8), win)
        else:
            ld_w(40, WD, range(W, 8), win); ld_w(44, WO, range(8), win)
    E("L_stail:")
    stamp(4)
    if stamps: E("s_mul_i32 s84, s33, 100\ns_add_u32 s84, s84, s64")
    E(f"v_readfirstlane_b32 s39, v{ORD}\ns_cmp_eq_u32 s39, 3\ns_cbranch_scc1 L_last")
    for j in range(16): E(f"v_cndmask_b32 v{O+j}, v{O+j}, v{O+16+j}, s[20:21]")
    E(f"s_lshl_b32 s58, s39, 12\nv_add_u32 v{T0}, s58, v{LL}\ns_lshl_b32 s58, s39, 9\ns_add_u32 s58, s58, {MLL}\nv_lshl_add_u32 v{T1}, v0, 3, s58")
    for d in range(4): E(f"ds_write_b128 v{T0}, v[{O+4*d}:{O+4*d+3}] offset:{1024*d}")
    E(f"ds_write_b64 v{T1}, v[{VM}:{VL}]\ns_mov_b64 exec, 1\nds_add_u32 v{FLA}, v{ONE} offset:12\ns_mov_b64 exec, -1")
    rest_w(WT)
    E("s_branch L_wd")
    E("L_last:")
    R = KF
    E(f"v_lshlrev_b32 v{T1}, 3, v0\nv_add_u32 v{T1}, {MLL}, v{T1}\nL_pw:\nds_read_b32 v{T0}, v{FLA} offset:12")
    for k in range(3): E(f"ds_read_b64 v[{F+2*k}:{F+2*k+1}], v{T1} offset:{512*k}")
    for k in range(3):
        for d in range(4):
            E(f"ds_read_b128 v[{R+16*k+4*d}:{R+16*k+4*d+3}], v{LL} offset:{4096*k + 1024*d}")
    E(f"s_waitcnt lgkmcnt(12)\nv_cmp_ne_u32 vcc, 3, v{T0}\ns_cbranch_vccz L_pw2\ns_waitcnt lgkmcnt(0)\ns_branch L_pw\nL_pw2:")
    E(f"v_max3_f32 v{S_}, v{F}, v{F+2}, v{F+4}\nv_max_f32 v{S_}, v{S_}, v{VM}")
    E(f"v_sub_f32 v{VM}, v{VM}, v{S_}")
    for k in range(3): E(f"v_sub_f32 v{F+2*k}, v{F+2*k}, v{S_}")
    E(f"v_mul_f32 v{VM}, s61, v{VM}")
    for k in range(3): E(f"v_mul_f32 v{F+2*k}, s61, v{F+2*k}")
    E(f"v_exp_f32 v{VM}, v{VM}")
    for k in range(3): E(f"v_exp_f32 v{F+2*k}, v{F+2*k}")
    for j in range(16): E(f"v_cndmask_b32 v{O+j}, v{O+j}, v{O+16+j}, s[20:21]")
    for j in range(16): E(f"v_mul_f32 v{O+j}, v{O+j}, v{VM}")
    tagS = ["s36", "s16", "s17", "s18"]
    for k in range(2):
        E(f"s_waitcnt lgkmcnt({8 - 4*k})")
        for j in range(16): E(f"v_fmac_f32 v{O+j}, v{R+16*k+j}, v{F+2*k}")
    E("s_waitcnt lgkmcnt(0)")
    for d in range(4):
        for e in range(4): E(f"v_fmac_f32 v{O+4*d+e}, v{R+32+4*d+e}, v{F+4}")
        for e in range(4): E(f"v_bfi_b32 v{O+4*d+e}, v{MSK}, v{O+4*d+e}, {tagS[e]}")
        E(f"global_store_dwordx4 v{APA}, v[{O+4*d}:{O+4*d+3}], s[26:27] offset:{64*d} sc1")
    E(f"v_mul_f32 v{S_+1}, v{VM}, v{VL}")
    for k in range(3): E(f"v_fmac_f32 v{S_+1}, v{F+2*k}, v{F+2*k+1}")
    E(f"""
v_bfi_b32 v{S_}, v{MSK}, v{S_}, s36
v_bfi_b32 v{S_+1}, v{MSK}, v{S_+1}, s16
v_mov_b32 v{S_+2}, s17
v_mov_b32 v{S_+3}, s18
s_mov_b64 exec, 0xffff
global_store_dwordx4 v{APA}, v[{S_}:{S_+3}], s[26:27] offset:256 sc1
s_mov_b64 exec, -1
s_mov_b32 s58, 1
s_atomic_add s58, s[14:15], 0 glc
""")
    if stamps: E("s_memrealtime s[74:75]")
    rest_w(WL)
    E(f"""
s_waitcnt lgkmcnt(0)
s_cmp_lg_u32 s58, {63 - hx}
s_cbranch_scc1 L_wd
v_mov_b32 v{T0}, s36
global_store_dword v{NFA}, v{T0}, s[26:27] sc1
s_waitcnt vmcnt(0)
L_wd:
""")
    def g2_publish(addr):
        E(f"v_permlane32_swap_b32 v{S_}, v{S_+2}\nv_permlane32_swap_b32 v{S_+1}, v{S_+3}")
        for i in range(2): E(f"v_add_f32_dpp v{S_+i}, v{S_+2+i}, v{S_+i} row_ror:8 {DPP}")
        E(f"v_and_or_b32 v{S_}, v{S_}, s37, v{TGA}\nv_and_or_b32 v{S_+1}, v{S_+1}, s37, v{TGB}")
        E(f"s_mov_b32 exec_lo, 0x00ff00ff\ns_mov_b32 exec_hi, 0x00ff00ff\nglobal_store_dwordx2 v{addr}, v[{S_}:{S_+1}], s[26:27] sc1\ns_mov_b64 exec, -1")
    E(f"""
s_cmp_ge_u32 s31, 56
s_cbranch_scc1 L_nod
L_hw:
ds_read_b32 v{T1}, v{FLA} offset:8
ds_read_b128 v[{P}:{P+3}], v{OSA} offset:128
s_waitcnt lgkmcnt(0)
v_cmp_eq_u32 vcc, 0, v{T1}
s_cbranch_vccnz L_hw
""")
    build_A(KF, P, SELS)
    E("s_waitcnt vmcnt(8)")
    mm(S_, KF, WD)
    g2_publish(FAD)
    E("s_waitcnt vmcnt(1)\ns_branch L_x2\nL_nod:\ns_waitcnt vmcnt(0)\nL_x2:")
    stamp(6)
    E("s_barrier")
    stamp(7)
    E(f"ds_read_b128 v[{P}:{P+3}], v{OSA}\ns_waitcnt lgkmcnt(0)")
    build_A1(KF, P, SELS, 0)
    for i in range(8):
        if i < 7: build_A1(KF, P, SELS, i + 1)
        mm1(S_, KF, WO, i)
    g2_publish(FAS)
    if stamps:
        stamp(9)
        E("s_cmp_lg_u32 s39, 3\ns_cbranch_scc1 L_end2")
        dump_stamps(0, 13)
        E("L_end2:")
    E("s_endpgm")
    NV = 240
    E(f'''.section .rodata,"a"
.p2align 6
.amdhsa_kernel {KN}
.amdhsa_next_free_vgpr {NV}
.amdhsa_next_free_sgpr 102
.amdhsa_accum_offset {NV}
.amdhsa_group_segment_fixed_size 0
.amdhsa_kernarg_size 96
.amdhsa_user_sgpr_count 2
.amdhsa_user_sgpr_kernarg_segment_ptr 1
.amdhsa_system_sgpr_workgroup_id_x 1
.amdhsa_float_denorm_mode_32 3
.end_amdhsa_kernel''')
    hdr = f"; fused decode block: LN -> (GQA attention -> wo) * silu(GEGLU FFN) + x ; generated by dev/gen.py\n; @launch grid=(256,1,1) block=(512,1,1) lds={LDS_TOTAL}\n"
    text = hdr + E.finish()
    if warm:
        import pads
        text, cnt = pads.place(text, [(KN, "L_e0", "PS", False), ("L_loop", "L_e1", "PL", True), ("L_aux", "L_e2", "PA", True), ("L_noffn", None, "PT", False)])
        names = lambda p: [f"{p}{i}" for i in range(cnt[p])]
        PS, PL, PA, PT = names("PS"), names("PL"), names("PA"), names("PT")
        early = PA[:2] + PS[:2]
        rest = PA[2:] + PL + PS[2:]
        chains = {"W1": [[x] for x in early] + [[]] * (4 - len(early)), "W2": [rest[i::4] for i in range(4)], "W3": [PT]}
        for ph, ret in (("W1", "L_ret1"), ("W2", "L_ret2"), ("W3", "L_ret3")):
            for w, ch in enumerate(chains[ph]):
                seq = ch + [ret]
                text = re.sub(rf"{ret} ;;{ph}_{w}\b", seq[0], text)
                for a_, b_ in zip(seq, seq[1:]): text = text.replace(f"@{a_}@", b_)
        assert "@P" not in text
    return text

if __name__ == "__main__":
    import json
    kw = json.loads(sys.argv[2]) if len(sys.argv) > 2 else {}
    open(sys.argv[1], "w").write(gen(**kw))
```

```python
import sys, struct, re
from asmlib import Asm
KN = "recurrent_scan__gqa_block_cached__glu_gated_geglu__decode_kernel"

def f2u(x): return struct.unpack("<I", struct.pack("<f", x))[0]

CNT, QP, NF, FP, AP, GP, STAMPS = 0x8000, 0x10000, 0x40000, 0x80000, 0x100000, 0x280000, 0x400000
PART = 131072
MLL  = PART + 4096
QL   = MLL + 512
SCR  = QL + 2048
OS   = SCR + 4096
HS   = OS + 1024 + 32
FLG  = HS + 128
LDS_TOTAL = FLG + 64
LOG2E = 1.4426950408889634
DPP = "row_mask:0xf bank_mask:0xf"

def gen(pk="nt", pv="nt", pw="nt", stamps=False, diag=None, warm=True, X=4, XW=8, qsleep=45, sleep=1, hsleep=1,
        S=5, gsleep=100, hx=4, hintsleep=1, tk=12, seq=False, wlead=1, F_=64, lastearly=False, dearly=False, exp=(), wk=False, tsl=1, cc=32, blk=256, hoff=72, ssleep=0, c1thr=1, kdelay=0):
    E = Asm()
    XW = X if XW is None else XW
    def stamp(i):
        if stamps: E(f"s_memrealtime s[{64+2*i}:{65+2*i}]\ns_waitcnt lgkmcnt(0)")
    nls = [0]
    def lstamp(i, t):
        if stamps:
            nls[0] += 1
            E(f"s_cmp_eq_u32 s33, {t}\ns_cbranch_scc0 L_ls{nls[0]}"); stamp(i); E(f"L_ls{nls[0]}:")
    def dump_stamps(role, n):
        E(f"s_mov_b64 exec, 1\ns_lshl_b32 s58, s2, 8\ns_add_u32 s58, s58, {STAMPS + role*128}\nv_mov_b32 v1, s58")
        for i in range(n):
            E(f"v_mov_b32 v2, s{64+2*i}\nglobal_store_dword v1, v2, s[26:27] offset:{4*i}")
    def row_allreduce(regs, op, rs=(8, 4, 2, 1)):
        for r in rs:
            for v in regs: E(f"{op}_dpp v{v}, v{v}, v{v} row_ror:{r} {DPP}")
    def cross_rows(v, t, op):
        E(f"v_mov_b32 v{t}, v{v}\nv_permlane32_swap_b32 v{t}, v{v}\n{op} v{v}, v{v}, v{t}")
        E(f"v_mov_b32 v{t}, v{v}\nv_permlane16_swap_b32 v{t}, v{v}\n{op} v{v}, v{v}, v{t}")
    def wave_allreduce(v, t, op):
        row_allreduce([v], op); cross_rows(v, t, op)
    def fold4(*aa):
        for a in aa: E(f"v_permlane32_swap_b32 v{a}, v{a+2}\nv_permlane32_swap_b32 v{a+1}, v{a+3}")
        for a in aa: E(f"v_add_f32 v{a}, v{a}, v{a+2}\nv_add_f32 v{a+1}, v{a+1}, v{a+3}")
        for a in aa: E(f"v_permlane16_swap_b32 v{a}, v{a+1}")
        for a in aa: E(f"v_add_f32 v{a}, v{a}, v{a+1}")
    def rnd_bf16(v):
        E(f"v_cvt_pk_bf16_f32 v{v}, v{v}, v{v}\nv_and_b32 v{v}, 0xffff0000, v{v}")
    def unpack(dst, src, n):
        for i in range(n): E(f"v_lshlrev_b32 v{dst+2*i}, 16, v{src+i}\nv_and_b32 v{dst+2*i+1}, 0xffff0000, v{src+i}")
    def pack(dst, src, n):
        for i in range(n): E(f"v_cvt_pk_bf16_f32 v{dst+i}, v{src+2*i}, v{src+2*i+1}")
    def make_sel(SEL, t):
        E(f"""
v_and_b32 v{t}, 1, v0
v_cmp_eq_u32 vcc, 1, v{t}
v_mov_b32 v{t+1}, 0x0c0c0100
v_mov_b32 v{t+2}, 0x01000c0c
v_cndmask_b32 v{t+1}, v{t+1}, v{t+2}, vcc
v_mov_b32 v{t+2}, 0x0c0c0302
v_mov_b32 v{t+3}, 0x03020c0c
v_cndmask_b32 v{t+2}, v{t+2}, v{t+3}, vcc
v_bfe_u32 v{t}, v0, 1, 2
v_mov_b32 v{t+3}, 0x0c0c0c0c
""")
        for k in range(4):
            E(f"v_cmp_eq_u32 vcc, {k}, v{t}\nv_cndmask_b32 v{SEL+2*k}, v{t+3}, v{t+1}, vcc\nv_cndmask_b32 v{SEL+2*k+1}, v{t+3}, v{t+2}, vcc")
    def build_A1(dst, pk_, SEL, i):
        for k in range(4):
            E(f"v_perm_b32 v{dst+4*i+k}, v{pk_+i//2}, v{pk_+i//2}, v{SEL+2*k+(i&1)}")
    def build_A(dst, pk_, SEL):
        for i in range(8): build_A1(dst, pk_, SEL, i)
    def mm1(d, a, b, i):
        c = "0" if i == 0 else f"v[{d}:{d+3}]"
        E(f"v_mfma_f32_16x16x32_bf16 v[{d}:{d+3}], v[{a+4*i}:{a+4*i+3}], v[{b+4*i}:{b+4*i+3}], {c}")
    def mm(d, a, b, wait=None):
        for i in range(8):
            if wait: E(wait(i))
            mm1(d, a, b, i)
    def calc_cl():
        E("""
s_and_b32 s59, s2, 7
s_lshl3_add_u32 s31, s28, s59
s_sub_u32 s59, s59, s28
s_sub_u32 s59, s59, s28
s_sub_u32 s59, s59, 2
s_and_b32 s59, s59, 7
s_mul_i32 s58, s28, 6
s_add_u32 s58, s58, s59
s_add_u32 s58, s58, 32
s_cmp_lt_u32 s59, 6
s_cselect_b32 s58, s58, 63
s_bitcmp1_b32 s2, 5
s_cselect_b32 s31, s58, s31
""")

    E(f'.amdgcn_target "amdgcn-amd-amdhsa--gfx950"\n.text\n.p2align 12\n.globl {KN}\n.p2align 8\n.type {KN},@function\n{KN}:')
    E(f"""
s_cmp_ge_u32 s2, 256
s_cbranch_scc1 L_end0
v_and_b32 v2, 28, v0
v_add_u32 v2, {FLG}, v2
v_mov_b32 v5, 0
ds_write_b32 v2, v5
v_lshrrev_b32 v1, 6, v0
v_and_b32 v0, 63, v0
s_waitcnt lgkmcnt(0)
s_load_dwordx16 s[4:19], s[0:1], 0
s_load_dwordx8 s[20:27], s[0:1], 64
""")
    if stamps: E("s_memrealtime s[64:65]")
    E("""
s_barrier
v_readfirstlane_b32 s3, v1
s_bfe_u32 s29, s2, 0x20003
s_lshr_b32 s28, s2, 6
s_bfe_u32 s58, s2, 0x10005
s_and_b32 s59, s2, 7
s_lshl3_add_u32 s30, s58, s59
s_and_b32 s32, s2, 63
s_cmp_lt_u32 s3, 4
s_cbranch_scc1 L_str
""")
    XF, XR, WF, AX, WG_, WU_, SELA, TG, G = 8, 16, 20, 52, 84, 116, 148, 156, 160
    E(f"""
s_setprio 3
s_sub_u32 s3, s3, 4
v_lshlrev_b32 v1, 5, v0
v_lshrrev_b32 v2, 3, v0
v_and_b32 v4, 7, v0
v_lshlrev_b32 v4, 4, v4
v_lshl_add_u32 v4, v2, 16, v4
s_lshl2_add_u32 s58, s29, s3
s_lshl_b32 s59, s58, 7
v_lshl_add_u32 v3, v2, 4, s59
s_lshl_b32 s58, s58, 19
s_lshl4_add_u32 s59, s28, s30
s_lshl_b32 s59, s59, 7
s_add_u32 s58, s58, s59
s_or_b32 s59, s32, s3
s_waitcnt lgkmcnt(0)
s_cbranch_scc1 L_noinit
s_lshl_b32 s59, s28, 11
s_add_u32 s59, s59, {CNT}
v_lshl_add_u32 v6, v0, 8, s59
s_mov_b64 exec, 15
v_mov_b32 v5, {64*S}
s_mov_b64 exec, 31
global_store_dword v6, v5, s[26:27] sc1
s_mov_b64 exec, -1
L_noinit:
global_load_dwordx4 v[{XF}:{XF+3}], v1, s[4:5]
global_load_dwordx4 v[{XF+4}:{XF+7}], v1, s[4:5] offset:16
global_load_dwordx4 v[{XR}:{XR+3}], v3, s[4:5]
s_add_u32 s10, s10, s58
s_addc_u32 s11, s11, 0
""")
    for i in range(8):
        E(f"global_load_dwordx4 v[{WF+4*i}:{WF+4*i+3}], v4, s[10:11] {pw}")
        if i < 7: E("v_add_u32 v4, 0x2000, v4")
    E("s_load_dword s36, s[26:27], 0\ns_branch L_aux\nL_end0:\ns_endpgm")

    LDA, LDB, LDA2, LDB2, VW, LL = 2, 3, 4, 5, 6, 7
    KA, VA = 8, 12
    VM, VL, T0, T1 = 20, 21, 22, 23
    QF, KF, VF, S_, F, P, O, WD, WO, SELS = 24, 40, 72, 104, 112, 120, 124, 156, 188, 220
    TGA, TGB, FAS, FAD, OSA, APA, APM, FLA, ONE, MSK, ORD, HSA, APB, NFA, MLW, MLR, PR = 228, 229, 230, 231, 232, 233, 234, 235, 236, 237, 238, 239, 240, 241, 242, 243, 246
    E("L_str:")
    if warm:
        E("s_mov_b64 exec, 0")
        for w in range(3): E(f"s_cmp_eq_u32 s3, {w}\ns_cbranch_scc1 L_ret1 ;;W1_{w}")
        E("s_branch L_ret1 ;;W1_3\nL_ret1:\ns_mov_b64 exec, -1")
    def tile_off():
        if cc == 32:
            E("s_lshl2_add_u32 s63, s62, s38\ns_and_b32 s63, s63, 2047\ns_lshl_b32 s63, s63, 13")
        else:
            lc = cc.bit_length() - 1
            E(f"s_lshl2_add_u32 s63, s62, s38\ns_and_b32 s58, s63, {2048 - blk}\ns_lshl_b32 s58, s58, 13\ns_and_b32 s63, s63, {blk-1}\ns_lshl_b32 s63, s63, {8+lc}\ns_add_u32 s63, s63, s58")
    def set_ptr(which):
        d, b = (6, 54) if which == "K" else (8, 56)
        E(f"s_add_u32 s{d}, s{b}, s63\ns_addc_u32 s{d+1}, s{b+1}, 0")
    E(f"""
v_lshrrev_b32 v1, 4, v0
v_and_b32 v{LDA}, 15, v0
v_lshlrev_b32 v{LDB}, 1, v1
v_xor_b32 v{LDA}, v{LDA}, v{LDB}
v_lshlrev_b32 v{LDA}, 4, v{LDA}
v_lshl_add_u32 v{LDA}, v1, 8, v{LDA}
v_xor_b32 v{LDB}, 0x80, v{LDA}
""")
    LDJ = [2, 3, 4, 5, 243, 244, 245, 246]
    for j in range(7, 0, -1):
        cj = ((4*j) // cc * (blk * cc) + (4*j) % cc) * 256 - (j & 3) * 1024
        if j >= 2 or cj: E(f"v_add_u32 v{LDJ[j]}, {cj}, v{LDA if j % 2 == 0 else LDB}")
    E(f"""
s_mul_i32 s38, s28, {hoff}
s_add_u32 s38, s38, s3
s_mov_b32 s62, s32
""")
    tile_off()
    E("""
s_lshl_b32 s59, s28, 24
s_lshl_b32 s34, s3, 15
s_add_u32 s35, s34, 0x4000
s_waitcnt lgkmcnt(0)
s_add_u32 s54, s6, s59
s_addc_u32 s55, s7, 0
s_add_u32 s56, s8, s59
s_addc_u32 s57, s9, 0
""")
    def ld_kv(which):
        base, slot, pol = (6, 34, pk) if which == "K" else (8, 35, pv)
        for j in range(8):
            if j % 4 == 0: E(f"s_mov_b32 m0, s{slot}" if j == 0 else f"s_add_u32 m0, s{slot}, 0x1000")
            v = LDJ[j]
            E(f"global_load_lds_dwordx4 v{v}, s[{base}:{base+1}] offset:{(j&3)*1024} {pol}")
        E(f"s_xor_b32 s{slot}, s{slot}, 0x2000")
    def ld_w(srd, dst):
        for i in range(8):
            so = "0" if i < 2 else f"s{50 + i//2}"
            E(f"buffer_load_dwordx4 v[{dst+4*i}:{dst+4*i+3}], v{VW}, s[{srd}:{srd+3}], {so} offen offset:{(i&1)*2048} {pw}")
    def tok_wait(lbl, fin, fla, t):
        if seq:
            E(f"""
{lbl}:
ds_read_b96 v[{t}:{t+2}], v{fla}
s_waitcnt lgkmcnt(0)
v_add_u32 v{t+2}, -1, v{t+2}
v_min_i32 v{t}, v{t}, v{t+2}
v_cmp_gt_i32 vcc, s39, v{t}
v_cmp_gt_u32 s[58:59], {fin}, v{t+1}
s_and_b64 vcc, vcc, s[58:59]
s_cbranch_scc1 {lbl}
""")
        else:
            E(f"""
s_branch {lbl}_c
{lbl}:
s_sleep {tsl}
{lbl}_c:
ds_read_b64 v[{t}:{t+1}], v{fla}
s_waitcnt lgkmcnt(0)
v_cmp_gt_i32 vcc, s39, v{t}
v_cmp_gt_u32 s[58:59], {fin}, v{t+1}
s_and_b64 vcc, vcc, s[58:59]
s_cbranch_scc1 {lbl}
""")
    def issued(fla, one):
        if seq: E(f"s_mov_b64 exec, 1\nds_add_u32 v{fla}, v{one} offset:8\ns_mov_b64 exec, -1")
    def tok_pass(fla, one):
        E(f"s_mov_b64 exec, 1\nds_add_u32 v{fla}, v{one}\ns_mov_b64 exec, -1")
        if wk: E("s_wakeup")
    E("s_load_dword s36, s[26:27], 0")
    if warm:
        E("s_mov_b64 exec, 0")
        for w in range(3): E(f"s_cmp_eq_u32 s3, {w}\ns_cbranch_scc1 L_ret2 ;;W2_{w}")
        E("s_branch L_ret2 ;;W2_3\nL_ret2:\ns_mov_b64 exec, -1")
    E(f"""
v_mov_b32 v{FLA}, {FLG}
v_mov_b32 v{ONE}, 1
s_lshr_b32 s39, s2, 3
s_add_u32 s39, s39, s3
s_and_b32 s39, s39, 3
s_sub_u32 s39, s39, 1
""")
    if kdelay: E(f"s_sleep {kdelay}")
    tok_wait("L_t0", 1, FLA, S_+4)
    set_ptr("K"); set_ptr("V"); ld_kv("K"); ld_kv("V"); issued(FLA, ONE)
    stamp(1)
    calc_cl()
    E(f"""
s_cmp_lt_u32 s31, 56
s_cselect_b32 s42, {64*2048}, 0
s_lshl2_add_u32 s59, s29, s3
s_lshl_b32 s59, s59, 7
s_lshl_b32 s58, s31, 17
s_add_u32 s58, s58, s59
s_add_u32 s40, s20, s58
s_addc_u32 s41, s21, 0
s_mov_b32 s43, 0x20000
s_lshl4_add_u32 s58, s28, s30
s_lshl_b32 s58, s58, 17
s_add_u32 s58, s58, s59
s_add_u32 s44, s12, s58
s_addc_u32 s45, s13, 0
s_mov_b32 s46, {64*2048}
s_mov_b32 s47, 0x20000
s_movk_i32 s51, 0x1000
s_movk_i32 s52, 0x2000
s_movk_i32 s53, 0x3000
v_lshrrev_b32 v{T0}, 3, v0
v_and_b32 v{T1}, 7, v0
v_lshlrev_b32 v{T1}, 4, v{T1}
v_lshl_add_u32 v{VW}, v{T0}, 14, v{T1}
v_lshlrev_b32 v{OSA}, 5, v{T0}
v_add_u32 v{OSA}, {OS}, v{OSA}
v_lshlrev_b32 v{HSA}, 4, v{T0}
v_add_u32 v{HSA}, {HS}, v{HSA}
s_lshl_b32 s58, s3, 15
v_and_b32 v{T0}, 15, v0
v_and_b32 v{T1}, 7, v0
v_lshlrev_b32 v{T1}, 1, v{T1}
v_xor_b32 v{T1}, v{T1}, v1
v_lshlrev_b32 v{T1}, 4, v{T1}
v_lshl_add_u32 v{KA}, v{T0}, 8, v{T1}
v_add_u32 v{KA}, s58, v{KA}
v_xor_b32 v{KA+1}, 64, v{KA}
v_xor_b32 v{KA+2}, 0x80, v{KA}
v_xor_b32 v{KA+3}, 0xc0, v{KA}
s_add_u32 s58, s58, 0x4000
v_lshrrev_b32 v{T0}, 2, v0
v_and_b32 v{T1}, 7, v{T0}
v_lshlrev_b32 v{T1}, 5, v{T1}
v_lshl_add_u32 v{VA}, v{T0}, 8, v{T1}
v_and_b32 v{T1}, 3, v0
v_lshl_add_u32 v{VA}, v{T1}, 3, v{VA}
v_add_u32 v{VA}, s58, v{VA}
""")
    for db in range(1, 8): E(f"v_xor_b32 v{VA+db}, {db*32}, v{VA}")
    E(f"v_mov_b32 v{VM}, 0xff7f0000\nv_mov_b32 v{VL}, 0")
    for i in range(32): E(f"v_mov_b32 v{O+i}, 0")
    E(f"s_add_u32 s62, s62, 64\ns_add_u32 s39, s39, 4")
    tile_off()
    E(f"s_waitcnt vmcnt({X})")
    tok_pass(FLA, ONE)
    make_sel(SELS, F)
    E(f"""
v_lshlrev_b32 v{LL}, 4, v0
v_add_u32 v{LL}, {PART}, v{LL}
v_lshlrev_b32 v{MLW}, 3, v0
v_add_u32 v{MLW}, {MLL}, v{MLW}
s_lshl_b32 s58, s28, 10
s_add_u32 s58, s58, s32
s_mul_i32 s58, s58, 384
s_add_u32 s58, s58, {AP}
v_and_b32 v{T0}, 7, v0
v_bfe_u32 v{T1}, v0, 3, 1
v_mul_u32_u24 v{APA}, {2*64*384}, v{T0}
v_add_u32 v{APA}, s58, v{APA}
v_mul_u32_u24 v{APM}, {64*384}, v{T1}
v_add_u32 v{APM}, v{APM}, v{APA}
v_lshl_add_u32 v{APA}, v{T1}, 6, v{APA}
v_lshl_add_u32 v{APA}, v1, 4, v{APA}
v_add_u32 v{APB}, {64*384}, v{APA}
s_lshl_b32 s58, s28, 13
s_add_u32 s58, s58, {NF}
v_lshl_add_u32 v{NFA}, v0, 7, s58
s_lshl_b32 s58, s28, 11
s_add_u32 s58, s58, {CNT + 1024}
s_add_u32 s14, s26, s58
s_addc_u32 s15, s27, 0
v_mov_b32 v{MSK}, 0xffffff00
s_lshl3_add_u32 s58, s28, s3
s_lshl_b32 s58, s58, 8
s_add_u32 s58, s58, {CNT}
s_add_u32 s48, s26, s58
s_addc_u32 s49, s27, 0
s_lshl2_add_u32 s58, s29, s3
s_lshl_b32 s58, s58, 15
s_add_u32 s58, s58, {FP}
v_bfe_u32 v{T0}, v0, 2, 1
v_lshl_add_u32 v{FAS}, v{T0}, 14, s58
v_and_b32 v{T0}, 3, v0
v_lshl_add_u32 v{FAS}, v{T0}, 5, v{FAS}
v_bfe_u32 v{T0}, v0, 4, 1
v_lshl_add_u32 v{FAS}, v{T0}, 4, v{FAS}
v_lshrrev_b32 v{T0}, 5, v0
v_lshl_add_u32 v{FAS}, v{T0}, 3, v{FAS}
s_add_u32 s59, s31, 64
s_lshl_b32 s59, s59, 7
v_add_u32 v{FAD}, s59, v{FAS}
s_lshl4_add_u32 s58, s28, s30
s_lshl_b32 s58, s58, 7
v_add_u32 v{FAS}, s58, v{FAS}
s_mov_b32 s37, 0xffffff00
v_lshlrev_b32 v{T0}, 4, v{T0}
s_add_u32 s36, s36, 0x01010101
s_lshr_b32 s16, s36, 8
s_lshr_b32 s17, s36, 16
s_lshr_b32 s18, s36, 24
v_lshrrev_b32 v{TGA}, v{T0}, s36
v_bfe_u32 v{TGB}, v{TGA}, 8, 8
v_and_b32 v{TGA}, 0xff, v{TGA}
s_mov_b32 s33, 0
s_mov_b32 s60, {f2u(128 ** -0.5):#x}
s_mov_b32 s61, {f2u(LOG2E):#x}
s_mov_b32 s10, 0
s_mov_b32 s93, 0
s_mov_b32 s20, 0xff00ff00
s_mov_b32 s21, 0xff00ff00
""")
    tok_wait("L_t1", 1, FLA, S_+4)
    set_ptr("K"); set_ptr("V"); ld_kv("K"); ld_kv("V"); issued(FLA, ONE)
    E(f"""
s_add_u32 s62, s62, {64 if tk else -64}
s_cmp_lt_u32 s31, 56
s_cselect_b32 s58, 8, 4
s_add_u32 s39, s39, s58
v_and_b32 v{T0}, 7, v0
v_lshlrev_b32 v{T0}, 8, v{T0}
v_lshl_add_u32 v{T0}, v1, 4, v{T0}
v_add_u32 v{T0}, {QL}, v{T0}
s_waitcnt vmcnt({X})
""")
    tok_pass(FLA, ONE)
    stamp(2)
    E(f"L_qw:\ns_sleep 1\nds_read_b32 v{T1}, v{FLA} offset:16\ns_waitcnt lgkmcnt(0)\nv_cmp_ne_u32 vcc, 4, v{T1}\ns_cbranch_vccnz L_qw")
    stamp(3)
    for j in range(4): E(f"ds_read_b128 v[{QF+4*j}:{QF+4*j+3}], v{T0} offset:{64*j}")
    E("s_branch L_qk\nL_e0:\n.p2align 12\nL_loop:")
    lstamp(11, 4); lstamp(12, 5)
    tile_off(); set_ptr("K"); set_ptr("V")
    if stamps: E("s_memrealtime s[96:97]")
    tok_wait("L_tw", 1, FLA, S_+4)
    if stamps: E("s_memrealtime s[98:99]\ns_waitcnt lgkmcnt(0)\ns_sub_u32 s96, s98, s96\ns_cmp_lt_u32 s96, 8\ns_cselect_b32 s97, 1, 0\ns_add_u32 s93, s93, s97")
    if stamps: E("s_memrealtime s[90:91]\ns_mov_b32 s92, s62")
    if dearly:
        E("s_cmp_lg_u32 s33, 3\ns_cbranch_scc1 L_nodn"); ld_w(40, WD); E("L_nodn:")
    ld_kv("K"); ld_kv("V"); issued(FLA, ONE)
    E("s_add_u32 s39, s39, 4")
    TKT = f"""
s_add_u32 s62, s62, 64
s_cmp_lt_u32 s33, {S-1}
s_cbranch_scc1 L_static
s_mov_b32 s62, 1
s_atomic_add s62, s[48:49], 0 glc
L_static:
"""
    if tk:
        E(f"s_waitcnt vmcnt({tk})"); E(TKT)
    if X >= 8:
        E(f"s_waitcnt vmcnt({X})"); tok_pass(FLA, ONE)
    E("s_waitcnt vmcnt(8)\nL_qk:")
    for s in range(2):
        for j in range(4):
            r = KF + (s*4+j)*4
            E(f"ds_read_b128 v[{r}:{r+3}], v{KA+j} offset:{s*4096}")
    if tk: E(f"ds_read_b32 v{ORD}, v{FLA}")
    for s in range(2):
        for j in range(4):
            r = KF + (s*4+j)*4
            E(f"s_waitcnt lgkmcnt({7-(s*4+j) + (1 if tk else 0)})")
            c = "0" if j == 0 else f"v[{S_+4*s}:{S_+4*s+3}]"
            E(f"v_mfma_f32_16x16x32_bf16 v[{S_+4*s}:{S_+4*s+3}], v[{r}:{r+3}], v[{QF+4*j}:{QF+4*j+3}], {c}")
    if not tk: E(TKT)
    if X < 8:
        E(f"s_cmp_lt_u32 s33, 2\ns_cbranch_scc1 L_nopass\ns_waitcnt vmcnt({X})"); tok_pass(FLA, ONE); E("L_nopass:")
    for i in range(4): E(f"v_xor_b32 v{KA+i}, 0x2000, v{KA+i}")
    pack(P, S_, 4); unpack(F, P, 4)
    for i in range(8): E(f"v_mul_f32 v{F+i}, s60, v{F+i}")
    pack(P, F, 4); unpack(F, P, 4)
    E(f"""
v_max3_f32 v{T0}, v{F}, v{F+1}, v{F+2}
v_max3_f32 v{T1}, v{F+3}, v{F+4}, v{F+5}
v_max3_f32 v{T0}, v{T0}, v{F+6}, v{F+7}
v_max_f32 v{T0}, v{T0}, v{T1}
""")
    cross_rows(T0, T1, "v_max_f32")
    E(f"""
v_max_f32 v{T1}, v{T0}, v{VM}
v_sub_f32 v{T0}, v{VM}, v{T1}
v_mul_f32 v{T0}, s61, v{T0}
v_exp_f32 v{T0}, v{T0}
v_mov_b32 v{VM}, v{T1}
""")
    for i in range(8): E(f"v_sub_f32 v{F+i}, v{F+i}, v{T1}")
    for i in range(8): E(f"v_mul_f32 v{F+i}, s61, v{F+i}")
    for i in range(8): E(f"v_exp_f32 v{F+i}, v{F+i}")
    for i in range(0, 32, 2): E(f"v_pk_mul_f32 v[{O+i}:{O+i+1}], v[{O+i}:{O+i+1}], v[{T0}:{T0+1}] op_sel_hi:[1,0]")
    pack(P, F, 4)
    E(f"""
v_add_f32 v{F}, v{F}, v{F+1}
v_add_f32 v{F+2}, v{F+2}, v{F+3}
v_add_f32 v{F+4}, v{F+4}, v{F+5}
v_add_f32 v{F+6}, v{F+6}, v{F+7}
v_add_f32 v{F}, v{F}, v{F+2}
v_add_f32 v{F+4}, v{F+4}, v{F+6}
v_add_f32 v{F}, v{F}, v{F+4}
v_fma_f32 v{VL}, v{VL}, v{T0}, v{F}
""")
    if stamps: E("s_getreg_b32 s94, hwreg(HW_REG_SHADER_CYCLES)" if False else "s_memrealtime s[94:95]")
    E(f"""
s_waitcnt lgkmcnt(0)
s_cmp_lt_u32 s62, 512
s_cbranch_scc1 L_pv
""")
    if stamps: E("s_memrealtime s[80:81]\ns_waitcnt lgkmcnt(0)\ns_mov_b32 s72, s80")
    R = KF
    def rd_part():
        E(f"ds_read_b32 v{S_+4}, v{FLA} offset:12\nds_read_b64 v[{F}:{F+1}], v{MLW}")
        for d in range(4): E(f"ds_read_b128 v[{R+4*d}:{R+4*d+3}], v{LL} offset:{1024*d}")
    E(f"s_mov_b64 exec, 1\nds_add_rtn_u32 v{ORD}, v{FLA}, v{ONE} offset:4\ns_mov_b64 exec, -1")
    rd_part()
    if F_ < 64:
        E(f"s_cmp_lt_u32 s62, {512 + F_}\ns_cbranch_scc1 L_pv")
        if not lastearly:
            E(f"s_waitcnt lgkmcnt(6)\nv_readfirstlane_b32 s63, v{ORD}\ns_cmp_eq_u32 s63, 3\ns_cbranch_scc1 L_pv")
        (None if dearly else ld_w(40, WD)); ld_w(44, WO)
        E(f"s_mov_b32 s10, 1\ns_waitcnt vmcnt({8 if dearly else 16})\ns_branch L_pv2")
    E("L_pv:\ns_waitcnt vmcnt(0)\nL_pv2:")
    for db in range(8):
        for s in range(2):
            r = VF + db*4 + s*2
            E(f"ds_read_b64_tr_b16 v[{r}:{r+1}], v{VA+db} offset:{s*4096}")
    E(f"ds_read_b32 v{S_+5}, v{FLA}")
    for db in range(8):
        r = VF + db*4
        E(f"s_waitcnt lgkmcnt({min(14, 15-2*db)})")
        E(f"v_mfma_f32_16x16x32_bf16 v[{O+4*db}:{O+4*db+3}], v[{r}:{r+3}], v[{P}:{P+3}], v[{O+4*db}:{O+4*db+3}]")
        E(f"v_xor_b32 v{VA+db}, 0x2000, v{VA+db}")
        if db == 0:
            E(f"""
s_cmp_lt_u32 s62, 512
s_cbranch_scc1 L_noat
v_readfirstlane_b32 s63, v{ORD}
s_cmp_lg_u32 s63, 3
s_cbranch_scc1 L_noat
s_mov_b32 s19, 1
s_atomic_add s19, s[14:15], 0 glc
L_noat:
""")
    E("""
s_add_u32 s33, s33, 1
s_cmp_ge_u32 s62, 512
s_cbranch_scc1 L_stail
s_cmp_eq_u32 s33, 1
s_cbranch_scc0 L_loop
s_branch L_qk
""")

    def embed(r, n=4):
        for i in range(n): E(f"v_and_or_b32 v{r+i}, v{r+i}, s37, v{TG+i%4}")
    def strip(r, n=4):
        for i in range(n): E(f"v_and_b32 v{r+i}, s37, v{r+i}")
    npoll = [0]
    def poll(loads, grs, t, slp, staged=False):
        n = npoll[0]; npoll[0] += 1
        MK = 40
        if len(loads) == 1:
            r = grs[0]
            E(f"L_poll{n}:\n{loads[0]}\ns_waitcnt vmcnt(0)")
            E(f"v_perm_b32 v{t+1}, v{r+1}, v{r}, s38\nv_perm_b32 v{t+2}, v{r+3}, v{r+2}, s39\nv_or_b32 v{t+1}, v{t+1}, v{t+2}")
            E(f"v_cmp_ne_u32 vcc, s36, v{t+1}\ns_cbranch_vccz L_pok{n}\ns_mov_b64 exec, vcc\ns_add_u32 s62, s62, 1\ns_cmp_ge_u32 s62, 0x80000")
        else:
            if not staged:
                for l in loads: E(l)
                E(f"s_branch L_chk{n}")
            E(f"L_poll{n}:")
            for k, l in enumerate(loads):
                E(f"s_mov_b64 exec, s[{MK+2*k}:{MK+2*k+1}] ;nopad\ns_cbranch_execz L_pl{n}_{k} ;nopad\n{l} ;nopad\nL_pl{n}_{k}:")
            E(f"s_mov_b64 exec, -1 ;nopad\nL_chk{n}:\ns_waitcnt vmcnt(0)")
            for k, r in enumerate(grs):
                E(f"v_perm_b32 v{t+1}, v{r+1}, v{r}, s38\nv_perm_b32 v{t+2}, v{r+3}, v{r+2}, s39\nv_or_b32 v{t+1}, v{t+1}, v{t+2}")
                E(f"v_cmp_ne_u32 s[{MK+2*k}:{MK+2*k+1}], s36, v{t+1}")
            E(f"s_or_b64 vcc, s[{MK}:{MK+1}], s[{MK+2}:{MK+3}]")
            for k in range(2, len(loads)): E(f"s_or_b64 vcc, vcc, s[{MK+2*k}:{MK+2*k+1}]")
            E(f"s_cbranch_scc0 L_pok{n}")
            if staged:
                E(f"""
s_cmp_eq_u32 s60, 0
s_cbranch_scc1 L_st2
s_mov_b32 s60, 0
L_hint2:
s_load_dword s58, s[34:35], 64 glc
s_waitcnt lgkmcnt(0)
s_cmp_eq_u32 s58, s36
s_cbranch_scc1 L_poll{n}
s_sleep {hintsleep}
s_add_u32 s62, s62, 1
s_cmp_ge_u32 s62, 0x80000
s_cbranch_scc0 L_hint2
L_st2:
""")
            E("s_add_u32 s62, s62, 1\ns_cmp_ge_u32 s62, 0x80000")
        if slp: E(f"s_sleep {slp}")
        E(f"s_cbranch_scc0 L_poll{n}\nL_pok{n}:")
        if len(loads) == 1: E("s_mov_b64 exec, -1")

    E("L_e1:\n.p2align 12\nL_aux:")
    E("s_mov_b32 s37, 0xffffff00\ns_mov_b32 s38, 0x0c0c0400\ns_mov_b32 s39, 0x04000c0c\ns_mov_b32 s62, 0")
    make_sel(SELA, 4)
    calc_cl()
    E(f"""
s_lshl_b32 s58, s3, 10
s_add_u32 s58, s58, {SCR}
v_lshl_add_u32 v2, v0, 4, s58
v_bfe_u32 v3, v0, 1, 3
v_and_b32 v1, 1, v0
v_lshl_add_u32 v3, v1, 4, v3
v_lshlrev_b32 v3, 4, v3
v_add_u32 v3, {SCR}, v3
s_waitcnt vmcnt(9)
""")
    unpack(G, XF, 8)
    E(f"v_add_f32 v1, v{G}, v{G+1}\nv_add_f32 v5, v{G+2}, v{G+3}")
    for i in range(4, 16, 2): E(f"v_add_f32 v1, v1, v{G+i}\nv_add_f32 v5, v5, v{G+i+1}")
    E("v_add_f32 v1, v1, v5")
    wave_allreduce(1, 5, "v_add_f32")
    E(f"v_mul_f32 v1, {f2u(1/1024):#x}, v1")
    for i in range(16): E(f"v_sub_f32 v{G+i}, v{G+i}, v1")
    E(f"v_mul_f32 v6, v{G}, v{G}\nv_mul_f32 v5, v{G+1}, v{G+1}")
    for i in range(2, 16, 2): E(f"v_fmac_f32 v6, v{G+i}, v{G+i}\nv_fmac_f32 v5, v{G+i+1}, v{G+i+1}")
    E("v_add_f32 v6, v6, v5")
    wave_allreduce(6, 5, "v_add_f32")
    E(f"v_mul_f32 v6, {f2u(1/1024):#x}, v6")
    rnd_bf16(1); rnd_bf16(6)
    E(f"v_add_f32 v6, {f2u(1e-5):#x}, v6")
    rnd_bf16(6)
    E("v_sqrt_f32 v6, v6")
    rnd_bf16(6)
    E("v_rcp_f32 v6, v6\ns_waitcnt vmcnt(8)")
    unpack(G, XR, 4)
    for i in range(8): E(f"v_sub_f32 v{G+i}, v{G+i}, v1")
    pack(XR, G, 4); unpack(G, XR, 4)
    for i in range(8): E(f"v_mul_f32 v{G+i}, v{G+i}, v6")
    pack(XR, G, 4)
    build_A(AX, XR, SELA)
    stamp(1)
    mm(G, AX, WF, wait=lambda i: f"s_waitcnt vmcnt({7-i})")
    E(f"""
s_waitcnt lgkmcnt(0)
s_add_u32 s36, s36, 0x01010101
s_and_b32 s58, s36, 0xff
v_mov_b32 v{TG}, s58
s_bfe_u32 s58, s36, 0x80008
v_mov_b32 v{TG+1}, s58
s_bfe_u32 s58, s36, 0x80010
v_mov_b32 v{TG+2}, s58
s_lshr_b32 s58, s36, 24
v_mov_b32 v{TG+3}, s58
v_mov_b32 v5, {FLG}
v_mov_b32 v6, 1
ds_write_b128 v2, v[{G}:{G+3}]
s_mov_b64 exec, 1
ds_add_u32 v5, v6 offset:20
s_mov_b64 exec, -1
""")
    stamp(2)
    E(f"""
s_cmp_lg_u32 s3, 0
s_cbranch_scc1 L_qpub
L_xw:
ds_read_b32 v6, v5 offset:20
s_waitcnt lgkmcnt(0)
v_cmp_ne_u32 vcc, 4, v6
s_cbranch_vccnz L_xw
""")
    for k in range(8):
        E(f"ds_read_b128 v[{G+4*k}:{G+4*k+3}], v3 offset:{(k // 2) * 1024 + (k % 2) * 640}")
    E(f"""
s_lshl4_add_u32 s58, s28, s30
s_lshl2_add_u32 s58, s58, s29
s_lshl_b32 s58, s58, 8
s_add_u32 s58, s58, {QP}
v_lshl_add_u32 v1, v0, 4, s58
s_waitcnt lgkmcnt(0)
""")
    for st in (16, 8, 4):
        for i in range(st): E(f"v_add_f32 v{G+i}, v{G+i}, v{G+st+i}")
    embed(G)
    E(f"s_mov_b64 exec, 0xffff\nglobal_store_dwordx4 v1, v[{G}:{G+3}], s[26:27] sc1\ns_mov_b64 exec, -1\nL_qpub:")
    stamp(3)
    E(f"""
s_lshl2_add_u32 s58, s28, s3
s_lshl_b32 s58, s58, 12
s_add_u32 s58, s58, {QP}
v_lshrrev_b32 v1, 4, v0
v_and_b32 v4, 15, v0
v_lshl_add_u32 v4, v4, 4, s58
v_lshl_add_u32 v4, v1, 10, v4
s_sleep {qsleep}
""")
    poll([f"global_load_dwordx4 v[{G+4*k}:{G+4*k+3}], v4, s[26:27] offset:{256*k} sc1" for k in range(4)],
         [G+4*k for k in range(4)], 5, 4)
    strip(G, 16)
    for st in (8, 4):
        for i in range(st): E(f"v_add_f32 v{G+i}, v{G+i}, v{G+st+i}")
    pack(G, G, 2)
    E(f"""
s_lshl_b32 s58, s3, 9
s_add_u32 s58, s58, {QL}
v_lshl_add_u32 v1, v0, 3, s58
ds_write_b64 v1, v[{G}:{G+1}]
v_mov_b32 v5, {FLG}
v_mov_b32 v6, 1
s_mov_b64 exec, 1
ds_add_u32 v5, v6 offset:16
s_mov_b64 exec, -1
""")
    stamp(4)
    E(f"""
s_cmp_ge_u32 s31, 56
s_cbranch_scc1 L_noffn
s_lshl2_add_u32 s58, s29, s3
s_mul_i32 s59, s58, {64*7168}
s_lshl_b32 s63, s31, 7
s_add_u32 s59, s59, s63
s_add_u32 s16, s16, s59
s_addc_u32 s17, s17, 0
s_add_u32 s18, s18, s59
s_addc_u32 s19, s19, 0
v_lshrrev_b32 v1, 3, v0
v_and_b32 v4, 7, v0
v_lshlrev_b32 v5, 4, v4
v_mul_u32_u24 v1, {8*7168}, v1
v_add_u32 v1, v1, v5
""")
    E(f"v_mov_b32 v19, {FLG}\nv_mov_b32 v20, 1\ns_mov_b32 s63, s39\ns_mov_b32 s60, s58\ns_add_u32 s39, s3, 7")
    tok_wait("L_gw", 1, 19, 22)
    E("s_mov_b32 s39, s63\ns_mov_b32 s58, s60")
    for i in range(0 if "nogu" in exp else 8):
        E(f"global_load_dwordx4 v[{WG_+4*i}:{WG_+4*i+3}], v1, s[16:17] {pw}")
        E(f"global_load_dwordx4 v[{WU_+4*i}:{WU_+4*i+3}], v1, s[18:19] {pw}")
        if i < 7: E("v_add_u32 v1, 7168, v1")
    issued(19, 20)
    E(f"s_waitcnt vmcnt({X})")
    tok_pass(19, 20)
    E(f"""
s_lshl4_add_u32 s58, s31, s58
s_lshl_b32 s58, s58, 9
s_add_u32 s58, s58, {GP}
v_lshl_add_u32 v5, v4, 5, s58
v_bfe_u32 v4, v0, 4, 1
v_lshl_add_u32 v5, v4, 4, v5
v_lshrrev_b32 v4, 5, v0
v_lshl_add_u32 v5, v4, 8, v5
s_waitcnt vmcnt(0)
""")
    mm(G, AX, WG_); mm(G+4, AX, WU_)
    for i in range(4): E(f"v_permlane32_swap_b32 v{G+i}, v{G+4+i}")
    for i in range(4): E(f"v_add_f32_dpp v{G+i}, v{G+4+i}, v{G+i} row_ror:8 {DPP}")
    embed(G)
    E(f"""
s_mov_b32 exec_lo, 0x00ff00ff
s_mov_b32 exec_hi, 0x00ff00ff
global_store_dwordx4 v5, v[{G}:{G+3}], s[26:27] sc1
s_mov_b64 exec, -1
s_cmp_lg_u32 s3, 0
s_cbranch_scc1 L_noffn
s_lshl_b32 s58, s31, 13
s_add_u32 s58, s58, {GP + 4096}
v_and_b32 v4, 15, v0
v_lshl_add_u32 v5, v4, 4, s58
v_lshrrev_b32 v1, 4, v0
v_lshl_add_u32 v5, v1, 9, v5
s_sleep {gsleep}
""")
    poll([f"global_load_dwordx4 v[{G+8*k+4*u}:{G+8*k+4*u+3}], v5, s[26:27] offset:{2048*k - 4096 + 256*u} sc1" for k in range(4) for u in range(2)],
         [G+4*k for k in range(8)], G+32, 30)
    strip(G, 32)
    for st in (16, 8):
        for i in range(st): E(f"v_add_f32 v{G+i}, v{G+i}, v{G+st+i}")
    fold4(G, G+4)
    rnd_bf16(G); rnd_bf16(G+4)
    c1 = -2 * 0.7978845608028654 * LOG2E
    E(f"""
v_mul_f32 v{G+1}, v{G}, v{G}
v_mov_b32 v{G+2}, {f2u(c1):#x}
v_mul_f32 v{G+1}, {f2u(c1*0.044715):#x}, v{G+1}
v_add_f32 v{G+1}, v{G+1}, v{G+2}
v_mul_f32 v{G+1}, v{G+1}, v{G}
v_exp_f32 v{G+1}, v{G+1}
v_add_f32 v{G+1}, 1.0, v{G+1}
v_rcp_f32 v{G+1}, v{G+1}
v_mul_f32 v{G}, v{G}, v{G+1}
""")
    rnd_bf16(G)
    E(f"""
v_mul_f32 v{G}, v{G}, v{G+4}
v_cvt_pk_bf16_f32 v{G}, v{G}, v{G}
v_lshl_add_u32 v4, v4, 2, v1
v_lshlrev_b32 v4, 1, v4
v_add_u32 v4, {HS}, v4
ds_write_b16 v4, v{G}
v_mov_b32 v4, {FLG}
v_mov_b32 v5, 1
ds_write_b32 v4, v5 offset:24
s_branch L_noffn
""")
    E("L_e2:\n.p2align 12\nL_noffn:")
    if warm: E("s_mov_b64 exec, 0\ns_branch L_ret3 ;;W3_0\nL_ret3:\ns_mov_b64 exec, -1")
    CA, CB, CM, OW, FS, FD, XO, OA, SA, PI, PM = 8, 9, 10, 11, 12, 13, 14, 15, 16, 17, 18
    E(f"""
s_lshl4_add_u32 s58, s28, s30
s_lshl2_add_u32 s58, s58, s3
s_mul_i32 s58, s58, {16*384}
s_add_u32 s58, s58, {AP + 3072}
v_lshrrev_b32 v1, 4, v0
v_and_b32 v4, 15, v0
v_mul_u32_u24 v5, 384, v1
v_add_u32 v5, s58, v5
v_lshl_add_u32 v{CA}, v4, 4, v5
v_and_b32 v6, 3, v0
v_mul_u32_u24 v6, 1536, v6
v_add_u32 v{CM}, v5, v6
s_lshl_b32 s58, s3, 3
s_add_u32 s58, s58, {OS + 1024}
v_mov_b32 v{CB}, s58
v_lshl_add_u32 v5, v4, 2, v1
s_lshl_b32 s58, s3, 8
s_add_u32 s58, s58, {OS}
v_lshl_add_u32 v{OW}, v5, 2, s58
s_and_b32 s58, s2, 7
s_lshl_b32 s58, s58, 5
s_lshr_b32 s59, s2, 3
s_add_u32 s63, s58, s59
s_lshr_b32 s58, s63, 3
s_lshl_b32 s58, s58, 14
s_and_b32 s59, s63, 7
s_lshl4_add_u32 s58, s59, s58
s_add_u32 s58, s58, {FP}
v_lshl_add_u32 v{FS}, v0, 7, s58
s_add_u32 s58, s58, {64*128}
v_min_u32 v5, 55, v0
v_lshl_add_u32 v{FD}, v5, 7, s58
s_lshl_b32 s63, s63, 3
v_lshl_add_u32 v{OA}, v1, 1, s63
global_load_ushort v{XO}, v{OA}, s[4:5]
s_lshl_b32 s58, s2, 7
s_add_u32 s58, s58, {NF}
s_add_u32 s34, s26, s58
s_addc_u32 s35, s27, 0
s_mov_b32 s61, {f2u(LOG2E):#x}
v_lshlrev_b32 v{SA}, 2, v0
v_add_u32 v{SA}, {SCR}, v{SA}
""")
    stamp(5)
    E(f"""
v_mov_b32 v5, {FLG}
L_aw:
s_sleep 30
ds_read_b32 v6, v5 offset:4
s_waitcnt lgkmcnt(0)
v_cmp_gt_u32 vcc, {c1thr}, v6
s_cbranch_vccnz L_aw
""")
    stamp(6)
    E(f"""
L_hint:
s_load_dword s58, s[34:35], 0 glc
s_waitcnt lgkmcnt(0)
s_cmp_eq_u32 s58, s36
s_cbranch_scc1 L_hinted
s_sleep {hintsleep}
s_add_u32 s62, s62, 1
s_cmp_ge_u32 s62, 0x80000
s_cbranch_scc0 L_hint
L_hinted:
""")
    stamp(7)
    M_ = G + 16
    poll([f"global_load_dwordx4 v[{M_}:{M_+3}], v{CM}, s[26:27] offset:{256-3072} sc1"] +
         [f"global_load_dwordx4 v[{G+4*k}:{G+4*k+3}], v{CA}, s[26:27] offset:{1536*k-3072} sc1" for k in range(4)],
         [M_] + [G+4*k for k in range(4)], 5, hsleep)
    stamp(8)
    E(f"v_and_b32 v{M_}, s37, v{M_}\nv_and_b32 v{M_+1}, s37, v{M_+1}")
    strip(G, 1)
    E(f"v_max_f32_dpp v6, v{M_}, v{M_} quad_perm:[1,0,3,2] {DPP}")
    strip(G+1, 2)
    E(f"v_max_f32_dpp v6, v6, v6 quad_perm:[2,3,0,1] {DPP}\nv_mov_b32 v7, v6")
    strip(G+3, 2)
    E(f"v_permlane32_swap_b32 v7, v6\nv_max_f32 v6, v6, v7\nv_mov_b32 v7, v6")
    strip(G+5, 2)
    E(f"v_permlane16_swap_b32 v7, v6\nv_max_f32 v6, v6, v7")
    E(f"v_sub_f32 v5, v{M_}, v6\nv_mul_f32 v5, s61, v5\nv_exp_f32 v5, v5")
    strip(G+7, 9)
    E(f"v_mul_f32 v7, v5, v{M_+1}")
    extra = [f"v_add_f32_dpp v7, v7, v7 quad_perm:[1,0,3,2] {DPP}", f"v_add_f32_dpp v7, v7, v7 quad_perm:[2,3,0,1] {DPP}", "v_mov_b32 v21, v7",
             "v_permlane32_swap_b32 v21, v7\nv_add_f32 v7, v7, v21\nv_mov_b32 v21, v7"]
    for k in range(4):
        op = "v_mul_f32_dpp" if k == 0 else "v_fmac_f32_dpp"
        for i in range(4): E(f"{op} v{G+i}, v5, v{G+4*k+i} quad_perm:[{k},{k},{k},{k}] {DPP}")
        E(extra[k])
    E(f"""
v_permlane32_swap_b32 v{G}, v{G+2}
v_permlane32_swap_b32 v{G+1}, v{G+3}
v_add_f32 v{G}, v{G}, v{G+2}
v_add_f32 v{G+1}, v{G+1}, v{G+3}
v_permlane16_swap_b32 v21, v7
v_add_f32 v7, v7, v21
v_permlane16_swap_b32 v{G}, v{G+1}
ds_write_b64 v{CB}, v[6:7]
v_add_f32 v{G}, v{G}, v{G+1}
ds_write_b32 v{OW}, v{G}
s_waitcnt lgkmcnt(0)
s_barrier
s_cmp_eq_u32 s3, 0
s_cbranch_scc1 L_sred
s_cmp_lg_u32 s3, 1
s_cbranch_scc1 L_end
""")
    poll([f"global_load_dwordx4 v[{G+4}:{G+7}], v{FD}, s[26:27] sc1"], [G+4], 5, sleep)
    strip(G+4, 4)
    E("v_cmp_gt_u32 vcc, 56, v0")
    for i in range(4): E(f"v_cndmask_b32 v{G+4+i}, 0, v{G+4+i}, vcc")
    fold4(G+4)
    row_allreduce([G+4], "v_add_f32")
    rnd_bf16(G+4)
    E(f"""
v_mul_f32 v21, {f2u(-LOG2E):#x}, v{G+4}
v_exp_f32 v21, v21
v_add_f32 v21, 1.0, v21
v_rcp_f32 v21, v21
v_mul_f32 v21, v21, v{G+4}
""")
    rnd_bf16(21)
    E(f"ds_write_b32 v{SA}, v21\ns_waitcnt lgkmcnt(0)\ns_barrier\ns_endpgm\nL_sred:")
    stamp(9)
    E(f"v_lshlrev_b32 v{XO}, 16, v{XO}")
    if ssleep: E(f"s_sleep {ssleep}")
    poll([f"global_load_dwordx4 v[{G}:{G+3}], v{FS}, s[26:27] sc1"], [G], 5, sleep)
    stamp(10)
    E(f"s_barrier\nds_read_b32 v21, v{SA}")
    stamp(11)
    strip(G, 4)
    fold4(G)
    row_allreduce([G], "v_add_f32")
    rnd_bf16(G)
    E(f"s_waitcnt lgkmcnt(0)\nv_mul_f32 v5, v21, v{G}")
    rnd_bf16(5)
    E(f"""
v_add_f32 v5, v5, v{XO}
v_cvt_pk_bf16_f32 v5, v5, v5
s_mov_b32 exec_lo, 0x00010001
s_mov_b32 exec_hi, 0x00010001
global_store_short v{OA}, v5, s[22:23]
s_cmp_lg_u32 s2, 0
s_cbranch_scc1 L_fin
s_mov_b64 exec, 1
v_mov_b32 v5, 0
v_mov_b32 v6, s36
global_store_dword v5, v6, s[26:27] sc1
L_fin:
""")
    if stamps:
        stamp(12); dump_stamps(1, 13)
    if diag is not None:
        k, cond = diag
        E(f"s_sub_u32 s58, s{64+2*k}, s64\ns_lshl_b32 s58, s58, 2")
        if cond is not None: E(cond + "\ns_cselect_b32 s58, s58, 0")
        E("s_add_u32 s58, s58, 6000\nL_spin:\ns_memrealtime s[60:61]\ns_waitcnt lgkmcnt(0)\ns_sub_u32 s59, s60, s64\ns_cmp_lt_u32 s59, s58\ns_cbranch_scc1 L_spin")
    E("L_end:\ns_endpgm")

    E("L_stail:")
    if stamps: E("s_memtime s[96:97]" if False else "s_nop 0")
    if stamps: E("s_mul_i32 s84, s33, 100\ns_add_u32 s84, s84, s64")
    R = KF
    E(f"v_readfirstlane_b32 s33, v{ORD}")
    cross_rows(VL, T1, "v_add_f32")
    E(f"""
s_cmp_eq_u32 s33, 0
s_cbranch_scc1 L_first
v_cmp_ne_u32 vcc, s33, v{S_+4}
s_cbranch_vccz L_pw2
L_pw:
""")
    rd_part()
    E(f"""
ds_read_b32 v{S_+5}, v{FLA}
s_waitcnt lgkmcnt(1)
v_cmp_ne_u32 vcc, s33, v{S_+4}
s_cbranch_vccnz L_pw
L_pw2:
v_max_f32 v{S_}, v{F}, v{VM}
v_sub_f32 v{VM}, v{VM}, v{S_}
v_sub_f32 v{F}, v{F}, v{S_}
v_mul_f32 v{VM}, s61, v{VM}
v_mul_f32 v{F}, s61, v{F}
v_exp_f32 v{VM}, v{VM}
v_exp_f32 v{F}, v{F}
""")
    for d in range(4):
        for e in range(4): E(f"v_cndmask_b32 v{O+8*d+e}, v{O+8*d+e}, v{O+8*d+4+e}, s[20:21]")
    E(f"v_mul_f32 v{S_+1}, v{VM}, v{VL}\nv_fmac_f32 v{S_+1}, v{F}, v{F+1}")
    for d in range(4):
        for e in (0, 2): E(f"v_pk_mul_f32 v[{R+4*d+e}:{R+4*d+e+1}], v[{R+4*d+e}:{R+4*d+e+1}], v[{F}:{F+1}] op_sel_hi:[1,0]")
    E("s_cmp_eq_u32 s33, 3\ns_cbranch_scc1 L_last")
    for d in range(4):
        for e in (0, 2): E(f"v_pk_fma_f32 v[{O+8*d+e}:{O+8*d+e+1}], v[{O+8*d+e}:{O+8*d+e+1}], v[{VM}:{VM+1}], v[{R+4*d+e}:{R+4*d+e+1}] op_sel_hi:[1,0,1]")
    E("s_branch L_wr\nL_first:")
    for d in range(4):
        for e in range(4): E(f"v_cndmask_b32 v{O+8*d+e}, v{O+8*d+e}, v{O+8*d+4+e}, s[20:21]")
    E(f"v_mov_b32 v{S_}, v{VM}\nv_mov_b32 v{S_+1}, v{VL}\nL_wr:")
    for d in range(4): E(f"ds_write_b128 v{LL}, v[{O+8*d}:{O+8*d+3}] offset:{1024*d}")
    E(f"ds_write_b64 v{MLW}, v[{S_}:{S_+1}]\ns_mov_b64 exec, 1\nds_add_u32 v{FLA}, v{ONE} offset:12\ns_mov_b64 exec, -1")
    E("s_cmp_eq_u32 s10, 1\ns_cbranch_scc1 L_wdone")
    tok_wait("L_twW", 5, FLA, S_+4)
    E("s_branch L_wj\nL_last:")
    tagS = ["s36", "s16", "s17", "s18"]
    for d in range(4):
        for e in (0, 2): E(f"v_pk_fma_f32 v[{O+8*d+e}:{O+8*d+e+1}], v[{O+8*d+e}:{O+8*d+e+1}], v[{VM}:{VM+1}], v[{R+4*d+e}:{R+4*d+e+1}] op_sel_hi:[1,0,1]")
        for e in range(4): E(f"v_bfi_b32 v{O+8*d+e}, v{MSK}, v{O+8*d+e}, {tagS[e]}")
        E(f"global_store_dwordx4 v{APA if d < 2 else APB}, v[{O+8*d}:{O+8*d+3}], s[26:27] offset:{128*(d&1)} sc1")
    E(f"""
v_bfi_b32 v{S_}, v{MSK}, v{S_}, s36
v_bfi_b32 v{S_+1}, v{MSK}, v{S_+1}, s16
v_mov_b32 v{S_+2}, s17
v_mov_b32 v{S_+3}, s18
s_mov_b64 exec, 0xffff
global_store_dwordx4 v{APM}, v[{S_}:{S_+3}], s[26:27] offset:256 sc1
s_mov_b64 exec, 1
ds_add_u32 v{FLA}, v{ONE} offset:4
s_mov_b64 exec, -1
""")
    if stamps: E("s_memrealtime s[74:75]")
    E(f"""
s_waitcnt lgkmcnt(0)
s_cmp_lg_u32 s19, {63 - hx}
s_cbranch_scc1 L_nn
v_mov_b32 v{T0}, s36
global_store_dword v{NFA}, v{T0}, s[26:27] sc1
L_nn:
s_cmp_eq_u32 s10, 1
s_cbranch_scc1 L_wdone
s_cmp_ge_u32 s62, {512 + F_}
s_cbranch_scc1 L_wgo
L_wj:
s_sub_u32 s39, s33, {wlead}
L_wg:
ds_read_b32 v{T0}, v{FLA} offset:28
s_waitcnt lgkmcnt(0)
v_cmp_gt_i32 vcc, s39, v{T0}
s_cbranch_vccnz L_wg
L_wgo:
""")
    if "dyndown" in exp:
        ld_w(44, WO)
        E(f"s_cmp_ge_u32 s62, 544\ns_cbranch_scc1 L_wdone")
        ld_w(40, WD)
        E("s_waitcnt vmcnt(8)\ns_xor_b32 s40, s40, 0x100000")
        ld_w(40, WD)
    else:
        (None if dearly else ld_w(40, WD)); ld_w(44, WO); issued(FLA, ONE)
    E(f"L_wdone:\ns_waitcnt vmcnt({XW})\ns_mov_b64 exec, 1\nds_add_u32 v{FLA}, v{ONE}\nds_add_u32 v{FLA}, v{ONE} offset:28\ns_mov_b64 exec, -1")
    def g2_publish(addr):
        E(f"v_permlane32_swap_b32 v{S_}, v{S_+2}\nv_permlane32_swap_b32 v{S_+1}, v{S_+3}")
        for i in range(2): E(f"v_add_f32_dpp v{S_+i}, v{S_+2+i}, v{S_+i} row_ror:8 {DPP}")
        E(f"v_and_or_b32 v{S_}, v{S_}, s37, v{TGA}\nv_and_or_b32 v{S_+1}, v{S_+1}, s37, v{TGB}")
        E(f"s_mov_b32 exec_lo, 0x00ff00ff\ns_mov_b32 exec_hi, 0x00ff00ff\nglobal_store_dwordx2 v{addr}, v[{S_}:{S_+1}], s[26:27] sc1\ns_mov_b64 exec, -1")
    E(f"""
s_cmp_ge_u32 s31, 56
s_cbranch_scc1 L_nod
L_hw:
ds_read_b32 v{T1}, v{FLA} offset:24
ds_read_b128 v[{P}:{P+3}], v{HSA}
s_waitcnt lgkmcnt(0)
v_cmp_eq_u32 vcc, 0, v{T1}
s_cbranch_vccnz L_hw
""")
    build_A(KF, P, SELS)
    E("s_waitcnt vmcnt(8)")
    mm(S_, KF, WD)
    g2_publish(FAD)
    E("s_waitcnt vmcnt(1)\ns_branch L_x2\nL_nod:\ns_waitcnt vmcnt(0)\nL_x2:")
    E(f"v_mov_b32 v{LL}, {OS + 1024}")
    stamp(6)
    E("s_barrier")
    stamp(7)
    mo = OS + 1024 - FLG + 65536
    E(f"ds_read_b128 v[{F}:{F+3}], v{LL}\nds_read_b128 v[{F+4}:{F+7}], v{LL} offset:16")
    for k in range(4):
        for h in range(2):
            E(f"ds_read_b128 v[{VF+8*k+4*h}:{VF+8*k+4*h+3}], v{OSA} offset:{256*k + 16*h}")
    E("s_waitcnt lgkmcnt(8)")
    E(f"v_max3_f32 v{T0}, v{F}, v{F+2}, v{F+4}\nv_max_f32 v{T0}, v{T0}, v{F+6}")
    for k in range(4): E(f"v_sub_f32 v{F+2*k}, v{F+2*k}, v{T0}")
    for k in range(4): E(f"v_mul_f32 v{F+2*k}, s61, v{F+2*k}")
    for k in range(4): E(f"v_exp_f32 v{F+2*k}, v{F+2*k}")
    E(f"v_mul_f32 v{T0}, v{F}, v{F+1}")
    for k in range(1, 4): E(f"v_fmac_f32 v{T0}, v{F+2*k}, v{F+2*k+1}")
    E(f"v_rcp_f32 v{T0}, v{T0}\ns_waitcnt lgkmcnt(0)")
    for i in range(0, 8, 2): E(f"v_pk_mul_f32 v[{VF+i}:{VF+i+1}], v[{VF+i}:{VF+i+1}], v[{F}:{F+1}] op_sel_hi:[1,0]")
    for k in range(1, 4):
        for i in range(0, 8, 2): E(f"v_pk_fma_f32 v[{VF+i}:{VF+i+1}], v[{VF+8*k+i}:{VF+8*k+i+1}], v[{F+2*k}:{F+2*k+1}], v[{VF+i}:{VF+i+1}] op_sel_hi:[1,0,1]")
    for i in range(0, 8, 2): E(f"v_pk_mul_f32 v[{VF+i}:{VF+i+1}], v[{VF+i}:{VF+i+1}], v[{T0}:{T0+1}] op_sel_hi:[1,0]")
    pack(P, VF, 4)
    build_A1(KF, P, SELS, 0)
    for i in range(8):
        if i < 7: build_A1(KF, P, SELS, i + 1)
        mm1(S_, KF, WO, i)
    g2_publish(FAS)
    if stamps:
        stamp(9)
        E(f"s_mov_b64 exec, 1\ns_lshl2_add_u32 s58, s2, s3\ns_lshl_b32 s58, s58, 4\ns_add_u32 s58, s58, {STAMPS + 0x10000}\nv_mov_b32 v1, s58\nv_mov_b32 v4, s90\nv_mov_b32 v5, s72\ns_sub_u32 s59, s84, s64\nv_mov_b32 v6, s59\nv_mov_b32 v7, s93\nglobal_store_dwordx4 v1, v[4:7], s[26:27]")
        E("s_cmp_lg_u32 s33, 3\ns_cbranch_scc1 L_end2")
        E('s_mov_b32 s86, s94\ns_mov_b32 s88, s90'); dump_stamps(0, 13)
        E("L_end2:")
    E("s_endpgm")
    NV = 256
    E(f'''.section .rodata,"a"
.p2align 6
.amdhsa_kernel {KN}
.amdhsa_next_free_vgpr {NV}
.amdhsa_next_free_sgpr 102
.amdhsa_accum_offset {NV}
.amdhsa_group_segment_fixed_size 0
.amdhsa_kernarg_size 96
.amdhsa_user_sgpr_count 2
.amdhsa_user_sgpr_kernarg_segment_ptr 1
.amdhsa_system_sgpr_workgroup_id_x 1
.amdhsa_float_denorm_mode_32 3
.end_amdhsa_kernel''')
    hdr = f"; fused decode block: LN -> (GQA attention -> wo) * silu(GEGLU FFN) + x ; generated by dev/gen.py\n; @launch grid=(256,1,1) block=(512,1,1) lds={LDS_TOTAL}\n"
    if "nocomp" in exp or "nolds" in exp or "novalu" in exp:
        i0 = E.L.index("L_qk:"); i1 = E.L.index("L_e1:")
        body = E.L[i0:i1]
        def drop(l):
            if "nocomp" in exp and (l.startswith("v_") and "readfirstlane" not in l or l.startswith("ds_read_b128 v[4") or l.startswith("ds_read_b128 v[5") or l.startswith("ds_read_b128 v[6") or l.startswith("ds_read_b64_tr")): return True
            if "nolds" in exp and (l.startswith("ds_read_b128") or l.startswith("ds_read_b64_tr")): return True
            if "novalu" in exp and l.startswith("v_") and "readfirstlane" not in l: return True
            return False
        E.L[i0:i1] = [l for l in body if not drop(l)]
    if "auxquiet" in exp:
        i = E.L.index("L_aw:"); E.L[i+1] = "s_sleep 40"
    if "spinsleep" in exp:
        i = E.L.index("L_tw:"); E.L.insert(i+1, "s_sleep 1")
    text = hdr + E.finish()
    if warm:
        import pads
        text, cnt = pads.place(text, [(KN, "L_e0", "PS", False), ("L_loop", "L_e1", "PL", True), ("L_aux", "L_e2", "PA", True), ("L_noffn", None, "PT", False)])
        names = lambda p: [f"{p}{i}" for i in range(cnt[p])]
        PS, PL, PA, PT = names("PS"), names("PL"), names("PA"), names("PT")
        early = PA[:2] + PS[:2]
        rest = PA[2:] + PL + PS[2:]
        chains = {"W1": [[x] for x in early] + [[]] * (4 - len(early)), "W2": [rest[i::4] for i in range(4)], "W3": [PT]}
        for ph, ret in (("W1", "L_ret1"), ("W2", "L_ret2"), ("W3", "L_ret3")):
            for w, ch in enumerate(chains[ph]):
                seq = ch + [ret]
                text = re.sub(rf"{ret} ;;{ph}_{w}\b", seq[0], text)
                for a_, b_ in zip(seq, seq[1:]): text = text.replace(f"@{a_}@", b_)
        assert "@P" not in text
    return text

if __name__ == "__main__":
    import json
    kw = json.loads(sys.argv[2]) if len(sys.argv) > 2 else {}
    open(sys.argv[1], "w").write(gen(**kw))
```

```python
import sys, struct, re
from asmlib import Asm
KN = "recurrent_scan__gqa_block_cached__glu_gated_geglu__decode_kernel"

def f2u(x): return struct.unpack("<I", struct.pack("<f", x))[0]

CNT, QP, NF, FP, AP, GP, STAMPS = 0x300000, 0x10000, 0x40000, 0x80000, 0x100000, 0x280000, 0x400000
PART = 131072
MLL  = PART + 4096
QL   = MLL + 512
SCR  = QL + 2048
OS   = SCR + 8192
HS   = OS + 1024 + 32
FLG  = HS + 128
LDS_TOTAL = FLG + 64
LOG2E = 1.4426950408889634
DPP = "row_mask:0xf bank_mask:0xf"

def gen(pk="nt", pv="nt", pw="nt", stamps=False, diag=None, warm=True, X=4, XW=8, qsleep=45, sleep=1, hsleep=1,
        S=5, gsleep=1, hx=4, hintsleep=1, tk=12, seq=False, wlead=1, F_=64, lastearly=False, dearly=False, dpart=0, exp=(), opol='', entry2=True, onepoll=False, nret=480, cstr=256, tslow=None, decl=None, gtok=22, dmode='x2', wsoff=0, preclr=False, wk=False, tsl=1, cc=32, blk=256, hoff=72, ssleep=0, c1thr=5, kdelay=0):
    E = Asm()
    XW = X if XW is None else XW
    def stamp(i):
        if stamps: E(f"s_memrealtime s[{64+2*i}:{65+2*i}]\ns_waitcnt lgkmcnt(0)")
    nls = [0]
    def lstamp(i, t):
        if stamps:
            nls[0] += 1
            E(f"s_cmp_eq_u32 s33, {t}\ns_cbranch_scc0 L_ls{nls[0]}"); stamp(i); E(f"L_ls{nls[0]}:")
    def dump_stamps(role, n):
        E(f"s_mov_b64 exec, 1\ns_lshl_b32 s58, s2, 8\ns_add_u32 s58, s58, {STAMPS + role*128}\nv_mov_b32 v1, s58")
        for i in range(n):
            E(f"v_mov_b32 v2, s{64+2*i}\nglobal_store_dword v1, v2, s[26:27] offset:{4*i}")
    def row_allreduce(regs, op, rs=(8, 4, 2, 1)):
        for r in rs:
            for v in regs: E(f"{op}_dpp v{v}, v{v}, v{v} row_ror:{r} {DPP}")
    def cross_rows(v, t, op):
        E(f"v_mov_b32 v{t}, v{v}\nv_permlane32_swap_b32 v{t}, v{v}\n{op} v{v}, v{v}, v{t}")
        E(f"v_mov_b32 v{t}, v{v}\nv_permlane16_swap_b32 v{t}, v{v}\n{op} v{v}, v{v}, v{t}")
    def wave_allreduce(v, t, op):
        row_allreduce([v], op); cross_rows(v, t, op)
    def fold4(*aa):
        for a in aa: E(f"v_permlane32_swap_b32 v{a}, v{a+2}\nv_permlane32_swap_b32 v{a+1}, v{a+3}")
        for a in aa: E(f"v_add_f32 v{a}, v{a}, v{a+2}\nv_add_f32 v{a+1}, v{a+1}, v{a+3}")
        for a in aa: E(f"v_permlane16_swap_b32 v{a}, v{a+1}")
        for a in aa: E(f"v_add_f32 v{a}, v{a}, v{a+1}")
    def rnd_bf16(v):
        E(f"v_cvt_pk_bf16_f32 v{v}, v{v}, v{v}\nv_and_b32 v{v}, 0xffff0000, v{v}")
    def unpack(dst, src, n):
        for i in range(n): E(f"v_lshlrev_b32 v{dst+2*i}, 16, v{src+i}\nv_and_b32 v{dst+2*i+1}, 0xffff0000, v{src+i}")
    def pack(dst, src, n):
        for i in range(n): E(f"v_cvt_pk_bf16_f32 v{dst+i}, v{src+2*i}, v{src+2*i+1}")
    def make_sel(SEL, t):
        E(f"""
v_and_b32 v{t}, 1, v0
v_cmp_eq_u32 vcc, 1, v{t}
v_mov_b32 v{t+1}, 0x0c0c0100
v_mov_b32 v{t+2}, 0x01000c0c
v_cndmask_b32 v{t+1}, v{t+1}, v{t+2}, vcc
v_mov_b32 v{t+2}, 0x0c0c0302
v_mov_b32 v{t+3}, 0x03020c0c
v_cndmask_b32 v{t+2}, v{t+2}, v{t+3}, vcc
v_bfe_u32 v{t}, v0, 1, 2
v_mov_b32 v{t+3}, 0x0c0c0c0c
""")
        for k in range(4):
            E(f"v_cmp_eq_u32 vcc, {k}, v{t}\nv_cndmask_b32 v{SEL+2*k}, v{t+3}, v{t+1}, vcc\nv_cndmask_b32 v{SEL+2*k+1}, v{t+3}, v{t+2}, vcc")
    def build_A1(dst, pk_, SEL, i):
        for k in range(4):
            E(f"v_perm_b32 v{dst+4*i+k}, v{pk_+i//2}, v{pk_+i//2}, v{SEL+2*k+(i&1)}")
    def build_A(dst, pk_, SEL):
        for i in range(8): build_A1(dst, pk_, SEL, i)
    def mm1(d, a, b, i):
        c = "0" if i == 0 else f"v[{d}:{d+3}]"
        E(f"v_mfma_f32_16x16x32_bf16 v[{d}:{d+3}], v[{a+4*i}:{a+4*i+3}], v[{b+4*i}:{b+4*i+3}], {c}")
    def mm(d, a, b, wait=None):
        for i in range(8):
            if wait: E(wait(i))
            mm1(d, a, b, i)
    def calc_cl():
        E("""
s_and_b32 s59, s2, 7
s_lshl3_add_u32 s31, s28, s59
s_sub_u32 s59, s59, s28
s_sub_u32 s59, s59, s28
s_sub_u32 s59, s59, 2
s_and_b32 s59, s59, 7
s_mul_i32 s58, s28, 6
s_add_u32 s58, s58, s59
s_add_u32 s58, s58, 32
s_cmp_lt_u32 s59, 6
s_cselect_b32 s58, s58, 63
s_bitcmp1_b32 s2, 5
s_cselect_b32 s31, s58, s31
""")

    E(f'.amdgcn_target "amdgcn-amd-amdhsa--gfx950"\n.text\n.p2align 12\n.globl {KN}\n.p2align 8\n.type {KN},@function\n{KN}:')
    if entry2:
        E(f"""
s_load_dwordx16 s[4:19], s[0:1], 0
s_load_dwordx8 s[20:27], s[0:1], 64
s_cmp_ge_u32 s2, 256
s_cbranch_scc1 L_end0
v_and_b32 v2, 28, v0
v_add_u32 v2, {FLG}, v2
v_mov_b32 v5, 0
ds_write_b32 v2, v5
v_lshrrev_b32 v1, 6, v0
v_and_b32 v0, 63, v0
""")
    else:
        E(f"""
s_cmp_ge_u32 s2, 256
s_cbranch_scc1 L_end0
v_and_b32 v2, 28, v0
v_add_u32 v2, {FLG}, v2
v_mov_b32 v5, 0
ds_write_b32 v2, v5
v_lshrrev_b32 v1, 6, v0
v_and_b32 v0, 63, v0
s_waitcnt lgkmcnt(0)
s_load_dwordx16 s[4:19], s[0:1], 0
s_load_dwordx8 s[20:27], s[0:1], 64
""")
    if stamps: E("s_memrealtime s[64:65]")
    if not entry2: E("s_barrier")
    E("""
v_readfirstlane_b32 s3, v1
s_bfe_u32 s29, s2, 0x20003
s_lshr_b32 s28, s2, 6
s_bfe_u32 s58, s2, 0x10005
s_and_b32 s59, s2, 7
s_lshl3_add_u32 s30, s58, s59
s_and_b32 s32, s2, 63
s_cmp_lt_u32 s3, 4
s_cbranch_scc1 L_str
""")
    WSADD = f"s_add_u32 s26, s26, {wsoff}\ns_addc_u32 s27, s27, 0" if wsoff else ""
    XF, XR, WF, AX, WG_, WU_, SELA, TG, G = 8, 16, 20, 52, 84, 116, 148, 156, 160
    E(f"""
s_setprio 3
s_sub_u32 s3, s3, 4
v_lshlrev_b32 v1, 5, v0
v_lshrrev_b32 v2, 3, v0
v_and_b32 v4, 7, v0
v_lshlrev_b32 v4, 4, v4
v_lshl_add_u32 v4, v2, 16, v4
s_lshl2_add_u32 s58, s29, s3
s_lshl_b32 s59, s58, 7
v_lshl_add_u32 v3, v2, 4, s59
s_lshl_b32 s58, s58, 19
s_lshl4_add_u32 s59, s28, s30
s_lshl_b32 s59, s59, 7
s_add_u32 s58, s58, s59
s_waitcnt lgkmcnt(0)
{WSADD}
s_or_b32 s59, s32, s3
s_cbranch_scc1 L_noinit
s_mul_i32 s59, s28, {8*cstr}
s_add_u32 s59, s59, {CNT}
v_mul_u32_u24 v6, {cstr}, v0
v_add_u32 v6, s59, v6
s_mov_b64 exec, 15
v_mov_b32 v5, {64*S}
s_mov_b64 exec, 31
global_store_dword v6, v5, s[26:27] sc1
s_mov_b64 exec, -1
L_noinit:
global_load_dwordx4 v[{XF}:{XF+3}], v1, s[4:5]
global_load_dwordx4 v[{XF+4}:{XF+7}], v1, s[4:5] offset:16
global_load_dwordx4 v[{XR}:{XR+3}], v3, s[4:5]
s_add_u32 s10, s10, s58
s_addc_u32 s11, s11, 0
""")
    for i in range(8):
        E(f"global_load_dwordx4 v[{WF+4*i}:{WF+4*i+3}], v4, s[10:11] {pw}")
        if i < 7: E("v_add_u32 v4, 0x2000, v4")
    E("s_load_dword s36, s[26:27], 0")
    if entry2: E("s_barrier")
    E("s_branch L_aux\nL_end0:\ns_endpgm")

    LDA, LDB, LDA2, LDB2, VW, LL = 2, 3, 4, 5, 6, 7
    KA, VA = 8, 12
    VM, VL, T0, T1 = 20, 21, 22, 23
    QF, KF, VF, S_, F, P, O, WD, WO, SELS = 24, 40, 72, 104, 112, 120, 124, 156, 188, 220
    TGA, TGB, FAS, FAD, OSA, APA, APM, FLA, ONE, MSK, ORD, HSA, APB, NFA, MLW, MLR, PR = 228, 229, 230, 231, 232, 233, 234, 235, 236, 237, 238, 239, 240, 241, 242, 243, 246
    E("L_str:")
    if warm:
        E("s_mov_b64 exec, 0")
        for w in range(3): E(f"s_cmp_eq_u32 s3, {w}\ns_cbranch_scc1 L_ret1 ;;W1_{w}")
        E("s_branch L_ret1 ;;W1_3\nL_ret1:\ns_mov_b64 exec, -1")
    def tile_off():
        if cc == 32:
            E("s_lshl2_add_u32 s63, s62, s38\ns_and_b32 s63, s63, 2047\ns_lshl_b32 s63, s63, 13")
        else:
            lc = cc.bit_length() - 1
            E(f"s_lshl2_add_u32 s63, s62, s38\ns_and_b32 s58, s63, {2048 - blk}\ns_lshl_b32 s58, s58, 13\ns_and_b32 s63, s63, {blk-1}\ns_lshl_b32 s63, s63, {8+lc}\ns_add_u32 s63, s63, s58")
    def set_ptr(which):
        d, b = (6, 54) if which == "K" else (8, 56)
        E(f"s_add_u32 s{d}, s{b}, s63\ns_addc_u32 s{d+1}, s{b+1}, 0")
    E(f"""
v_lshrrev_b32 v1, 4, v0
v_and_b32 v{LDA}, 15, v0
v_lshlrev_b32 v{LDB}, 1, v1
v_xor_b32 v{LDA}, v{LDA}, v{LDB}
v_lshlrev_b32 v{LDA}, 4, v{LDA}
v_lshl_add_u32 v{LDA}, v1, 8, v{LDA}
v_xor_b32 v{LDB}, 0x80, v{LDA}
""")
    LDJ = [2, 3, 4, 5, 243, 244, 245, 246]
    for j in range(7, 0, -1):
        cj = ((4*j) // cc * (blk * cc) + (4*j) % cc) * 256 - (j & 3) * 1024
        if j >= 2 or cj: E(f"v_add_u32 v{LDJ[j]}, {cj}, v{LDA if j % 2 == 0 else LDB}")
    E(f"""
s_mul_i32 s38, s28, {hoff}
s_add_u32 s38, s38, s3
s_mov_b32 s62, s32
""")
    tile_off()
    E("""
s_lshl_b32 s59, s28, 24
s_lshl_b32 s34, s3, 15
s_add_u32 s35, s34, 0x4000
s_waitcnt lgkmcnt(0)
s_add_u32 s54, s6, s59
s_addc_u32 s55, s7, 0
s_add_u32 s56, s8, s59
s_addc_u32 s57, s9, 0
""")
    E(WSADD)
    if entry2: E("s_barrier")
    def ld_kv(which):
        base, slot, pol = (6, 34, pk) if which == "K" else (8, 35, pv)
        for j in range(8):
            if j % 4 == 0: E(f"s_mov_b32 m0, s{slot}" if j == 0 else f"s_add_u32 m0, s{slot}, 0x1000")
            v = LDJ[j]
            E(f"global_load_lds_dwordx4 v{v}, s[{base}:{base+1}] offset:{(j&3)*1024} {pol}")
        E(f"s_xor_b32 s{slot}, s{slot}, 0x2000")
    def ld_w(srd, dst, js=range(8)):
        for i in js:
            so = "0" if i < 2 else f"s{50 + i//2}"
            E(f"buffer_load_dwordx4 v[{dst+4*i}:{dst+4*i+3}], v{VW}, s[{srd}:{srd+3}], {so} offen offset:{(i&1)*2048} {pw}")
    def tok_wait(lbl, fin, fla, t):
        if seq:
            E(f"""
{lbl}:
ds_read_b96 v[{t}:{t+2}], v{fla}
s_waitcnt lgkmcnt(0)
v_add_u32 v{t+2}, -1, v{t+2}
v_min_i32 v{t}, v{t}, v{t+2}
v_cmp_gt_i32 vcc, s39, v{t}
v_cmp_gt_u32 s[58:59], {fin}, v{t+1}
s_and_b64 vcc, vcc, s[58:59]
s_cbranch_scc1 {lbl}
""")
        else:
            E(f"""
s_branch {lbl}_c
{lbl}:
s_sleep {tsl}
{lbl}_c:
ds_read_b64 v[{t}:{t+1}], v{fla}
s_waitcnt lgkmcnt(0)
v_cmp_gt_i32 vcc, s39, v{t}
v_cmp_gt_u32 s[58:59], {fin}, v{t+1}
s_and_b64 vcc, vcc, s[58:59]
s_cbranch_scc1 {lbl}
""")
    def issued(fla, one):
        if seq: E(f"s_mov_b64 exec, 1\nds_add_u32 v{fla}, v{one} offset:8\ns_mov_b64 exec, -1")
    def tok_pass(fla, one):
        E(f"s_mov_b64 exec, 1\nds_add_u32 v{fla}, v{one}\ns_mov_b64 exec, -1")
        if wk: E("s_wakeup")
    E("s_load_dword s36, s[26:27], 0")
    if warm:
        E("s_mov_b64 exec, 0")
        for w in range(3): E(f"s_cmp_eq_u32 s3, {w}\ns_cbranch_scc1 L_ret2 ;;W2_{w}")
        E("s_branch L_ret2 ;;W2_3\nL_ret2:\ns_mov_b64 exec, -1")
    E(f"""
v_mov_b32 v{FLA}, {FLG}
v_mov_b32 v{ONE}, 1
s_lshr_b32 s39, s2, 3
s_add_u32 s39, s39, s3
s_and_b32 s39, s39, 3
s_sub_u32 s39, s39, 1
""")
    if kdelay: E(f"s_sleep {kdelay}")
    tok_wait("L_t0", 1, FLA, S_+4)
    set_ptr("K"); set_ptr("V"); ld_kv("K"); ld_kv("V"); issued(FLA, ONE)
    stamp(1)
    calc_cl()
    E(f"""
s_cmp_lt_u32 s31, 56
s_cselect_b32 s42, {64*2048}, 0
s_lshl2_add_u32 s59, s29, s3
s_lshl_b32 s59, s59, 7
s_lshl_b32 s58, s31, 17
s_add_u32 s58, s58, s59
s_add_u32 s40, s20, s58
s_addc_u32 s41, s21, 0
s_mov_b32 s43, 0x20000
s_lshl4_add_u32 s58, s28, s30
s_lshl_b32 s58, s58, 17
s_add_u32 s58, s58, s59
s_add_u32 s44, s12, s58
s_addc_u32 s45, s13, 0
s_mov_b32 s46, {64*2048}
s_mov_b32 s47, 0x20000
s_movk_i32 s51, 0x1000
s_movk_i32 s52, 0x2000
s_movk_i32 s53, 0x3000
v_lshrrev_b32 v{T0}, 3, v0
v_and_b32 v{T1}, 7, v0
v_lshlrev_b32 v{T1}, 4, v{T1}
v_lshl_add_u32 v{VW}, v{T0}, 14, v{T1}
v_lshlrev_b32 v{OSA}, 5, v{T0}
v_add_u32 v{OSA}, {OS}, v{OSA}
v_lshlrev_b32 v{HSA}, 4, v{T0}
v_add_u32 v{HSA}, {HS}, v{HSA}
s_lshl_b32 s58, s3, 15
v_and_b32 v{T0}, 15, v0
v_and_b32 v{T1}, 7, v0
v_lshlrev_b32 v{T1}, 1, v{T1}
v_xor_b32 v{T1}, v{T1}, v1
v_lshlrev_b32 v{T1}, 4, v{T1}
v_lshl_add_u32 v{KA}, v{T0}, 8, v{T1}
v_add_u32 v{KA}, s58, v{KA}
v_xor_b32 v{KA+1}, 64, v{KA}
v_xor_b32 v{KA+2}, 0x80, v{KA}
v_xor_b32 v{KA+3}, 0xc0, v{KA}
s_add_u32 s58, s58, 0x4000
v_lshrrev_b32 v{T0}, 2, v0
v_and_b32 v{T1}, 7, v{T0}
v_lshlrev_b32 v{T1}, 5, v{T1}
v_lshl_add_u32 v{VA}, v{T0}, 8, v{T1}
v_and_b32 v{T1}, 3, v0
v_lshl_add_u32 v{VA}, v{T1}, 3, v{VA}
v_add_u32 v{VA}, s58, v{VA}
""")
    for db in range(1, 8): E(f"v_xor_b32 v{VA+db}, {db*32}, v{VA}")
    E(f"v_mov_b32 v{VM}, 0xff7f0000\nv_mov_b32 v{VL}, 0")
    for i in range(32): E(f"v_mov_b32 v{O+i}, 0")
    E(f"s_add_u32 s62, s62, 64\ns_add_u32 s39, s39, 4")
    tile_off()
    E(f"s_waitcnt vmcnt({X})")
    tok_pass(FLA, ONE)
    make_sel(SELS, F)
    E(f"""
v_lshlrev_b32 v{LL}, 4, v0
v_add_u32 v{LL}, {PART}, v{LL}
v_lshlrev_b32 v{MLW}, 3, v0
v_add_u32 v{MLW}, {MLL}, v{MLW}
s_lshl_b32 s58, s28, 10
s_add_u32 s58, s58, s32
s_mul_i32 s58, s58, 384
s_add_u32 s58, s58, {AP}
v_and_b32 v{T0}, 7, v0
v_bfe_u32 v{T1}, v0, 3, 1
v_mul_u32_u24 v{APA}, {2*64*384}, v{T0}
v_add_u32 v{APA}, s58, v{APA}
v_mul_u32_u24 v{APM}, {64*384}, v{T1}
v_add_u32 v{APM}, v{APM}, v{APA}
v_lshl_add_u32 v{APA}, v{T1}, 6, v{APA}
v_lshl_add_u32 v{APA}, v1, 4, v{APA}
v_add_u32 v{APB}, {64*384}, v{APA}
s_lshl_b32 s58, s28, 13
s_add_u32 s58, s58, {NF}
v_lshl_add_u32 v{NFA}, v0, 7, s58
s_mul_i32 s58, s28, {8*cstr}
s_add_u32 s58, s58, {CNT + 4*cstr}
s_add_u32 s14, s26, s58
s_addc_u32 s15, s27, 0
v_mov_b32 v{MSK}, 0xffffff00
s_lshl3_add_u32 s58, s28, s3
s_mul_i32 s58, s58, {cstr}
s_add_u32 s58, s58, {CNT}
s_add_u32 s48, s26, s58
s_addc_u32 s49, s27, 0
s_lshl2_add_u32 s58, s29, s3
s_lshl_b32 s58, s58, 15
s_add_u32 s58, s58, {FP}
v_bfe_u32 v{T0}, v0, 2, 1
v_lshl_add_u32 v{FAS}, v{T0}, 14, s58
v_and_b32 v{T0}, 3, v0
v_lshl_add_u32 v{FAS}, v{T0}, 5, v{FAS}
v_bfe_u32 v{T0}, v0, 4, 1
v_lshl_add_u32 v{FAS}, v{T0}, 4, v{FAS}
s_add_u32 s59, s31, 64
s_lshl_b32 s59, s59, 7
v_add_u32 v{FAD}, s59, v{FAS}
s_lshl4_add_u32 s58, s28, s30
s_lshl_b32 s58, s58, 7
v_add_u32 v{FAS}, s58, v{FAS}
v_cmp_gt_u32 vcc, 32, v0
v_cndmask_b32 v{FAS}, v{FAD}, v{FAS}, vcc
s_add_u32 s36, s36, 0x01010101
s_lshr_b32 s16, s36, 8
s_lshr_b32 s17, s36, 16
s_lshr_b32 s18, s36, 24
s_mov_b32 s33, 0
s_mov_b32 s60, {f2u(128 ** -0.5):#x}
s_mov_b32 s61, {f2u(LOG2E):#x}
s_mov_b32 s10, 0
s_mov_b32 s93, 0
s_mov_b32 s20, 0xff00ff00
s_mov_b32 s21, 0xff00ff00
""")
    if preclr:
        E(f"v_not_b32 v{S_}, s36\nv_not_b32 v{S_+1}, s16\nv_not_b32 v{S_+2}, s17\nv_not_b32 v{S_+3}, s18")
        if preclr != "fp": E(f"s_and_b32 s58, s3, 1\ns_lshl_b32 s58, s58, 7\ns_cmp_lt_u32 s3, 2\ns_cselect_b32 s59, 0, {64*384}\ns_add_u32 s58, s58, s59\nv_add_u32 v{T0}, s58, v{APA}")
        if preclr != "fp": E(f"global_store_dwordx4 v{T0}, v[{S_}:{S_+3}], s[26:27] sc1")
        if preclr != "fp": E(f"s_mov_b64 exec, 0xffff\ns_cmp_lg_u32 s3, 0\ns_cbranch_scc1 L_pc1\nglobal_store_dwordx4 v{APM}, v[{S_}:{S_+3}], s[26:27] offset:256 sc1\nL_pc1:")
        E(f"s_mov_b64 exec, 0x00ff00ff\nglobal_store_dwordx4 v{FAS}, v[{S_}:{S_+3}], s[26:27] sc1\ns_cmp_ge_u32 s31, 56\ns_cbranch_scc1 L_pc2\nglobal_store_dwordx4 v{FAD}, v[{S_}:{S_+3}], s[26:27] sc1\nL_pc2:\ns_mov_b64 exec, -1")
    tok_wait("L_t1", 1, FLA, S_+4)
    set_ptr("K"); set_ptr("V"); ld_kv("K"); ld_kv("V"); issued(FLA, ONE)
    E(f"""
s_add_u32 s62, s62, {64 if tk else -64}
s_cmp_lt_u32 s31, 56
s_cselect_b32 s58, 8, 4
s_add_u32 s39, s39, s58
v_and_b32 v{T0}, 7, v0
v_lshlrev_b32 v{T0}, 8, v{T0}
v_lshl_add_u32 v{T0}, v1, 4, v{T0}
v_add_u32 v{T0}, {QL}, v{T0}
s_waitcnt vmcnt({X})
""")
    tok_pass(FLA, ONE)
    stamp(2)
    E(f"L_qw:\ns_sleep 1\nds_read_b32 v{T1}, v{FLA} offset:16\ns_waitcnt lgkmcnt(0)\nv_cmp_ne_u32 vcc, 4, v{T1}\ns_cbranch_vccnz L_qw")
    stamp(3)
    for j in range(4): E(f"ds_read_b128 v[{QF+4*j}:{QF+4*j+3}], v{T0} offset:{64*j}")
    E("s_branch L_qk\nL_e0:\n.p2align 12\nL_loop:")
    lstamp(11, 4); lstamp(12, 5)
    tile_off(); set_ptr("K"); set_ptr("V")
    if stamps: E("s_memrealtime s[96:97]")
    tok_wait("L_tw", 1, FLA, S_+4)
    if stamps: E("s_memrealtime s[98:99]\ns_waitcnt lgkmcnt(0)\ns_sub_u32 s96, s98, s96\ns_cmp_lt_u32 s96, 8\ns_cselect_b32 s97, 1, 0\ns_add_u32 s93, s93, s97")
    if stamps: E("s_memrealtime s[90:91]\ns_mov_b32 s92, s62")
    if dpart:
        E("s_cmp_lg_u32 s33, 3\ns_cbranch_scc1 L_nodn"); ld_w(40, WD, range(dpart)); E("L_nodn:")
    if dearly:
        E("s_cmp_lg_u32 s33, 3\ns_cbranch_scc1 L_nodn"); ld_w(40, WD); E("L_nodn:")
    ld_kv("K"); ld_kv("V"); issued(FLA, ONE)
    E("s_add_u32 s39, s39, 4")
    DECL = "" if not decl else f"""
s_sub_u32 s58, s62, s12
s_mov_b32 s12, s62
s_cmp_le_u32 s33, {S}
s_cbranch_scc1 L_draw
s_cmp_le_i32 s58, 64
s_cbranch_scc1 L_draw
s_mul_i32 s58, s58, {decl}
s_lshr_b32 s58, s58, 4
s_add_u32 s58, s58, s62
s_movk_i32 s62, 512
s_cmp_ge_u32 s58, {512 + 64}
s_cbranch_scc1 L_static
L_draw:"""
    TKT = f"""
s_add_u32 s62, s62, 64
s_cmp_lt_u32 s33, {S-1}
s_cbranch_scc1 L_static{DECL}
s_cmp_ge_u32 s62, {nret + 64}
s_cbranch_scc1 L_static
s_mov_b32 s62, 1
s_atomic_add s62, s[48:49], 0 glc
L_static:
"""
    if tk:
        E(f"s_waitcnt vmcnt({tk})"); E(TKT)
    if X >= 8:
        E(f"s_waitcnt vmcnt({X})"); tok_pass(FLA, ONE)
    E("s_waitcnt vmcnt(8)\nL_qk:")
    for s in range(2):
        for j in range(4):
            r = KF + (s*4+j)*4
            E(f"ds_read_b128 v[{r}:{r+3}], v{KA+j} offset:{s*4096}")
    if tk: E(f"ds_read_b32 v{ORD}, v{FLA}")
    for s in range(2):
        for j in range(4):
            r = KF + (s*4+j)*4
            E(f"s_waitcnt lgkmcnt({7-(s*4+j) + (1 if tk else 0)})")
            c = "0" if j == 0 else f"v[{S_+4*s}:{S_+4*s+3}]"
            E(f"v_mfma_f32_16x16x32_bf16 v[{S_+4*s}:{S_+4*s+3}], v[{r}:{r+3}], v[{QF+4*j}:{QF+4*j+3}], {c}")
    if not tk: E(TKT)
    if X < 8:
        E(f"s_cmp_lt_u32 s33, 2\ns_cbranch_scc1 L_nopass\ns_waitcnt vmcnt({X})"); tok_pass(FLA, ONE); E("L_nopass:")
    for i in range(4): E(f"v_xor_b32 v{KA+i}, 0x2000, v{KA+i}")
    pack(P, S_, 4); unpack(F, P, 4)
    for i in range(8): E(f"v_mul_f32 v{F+i}, s60, v{F+i}")
    pack(P, F, 4); unpack(F, P, 4)
    E(f"""
v_max3_f32 v{T0}, v{F}, v{F+1}, v{F+2}
v_max3_f32 v{T1}, v{F+3}, v{F+4}, v{F+5}
v_max3_f32 v{T0}, v{T0}, v{F+6}, v{F+7}
v_max_f32 v{T0}, v{T0}, v{T1}
""")
    cross_rows(T0, T1, "v_max_f32")
    E(f"""
v_max_f32 v{T1}, v{T0}, v{VM}
v_sub_f32 v{T0}, v{VM}, v{T1}
v_mul_f32 v{T0}, s61, v{T0}
v_exp_f32 v{T0}, v{T0}
v_mov_b32 v{VM}, v{T1}
""")
    for i in range(8): E(f"v_sub_f32 v{F+i}, v{F+i}, v{T1}")
    for i in range(8): E(f"v_mul_f32 v{F+i}, s61, v{F+i}")
    for i in range(8): E(f"v_exp_f32 v{F+i}, v{F+i}")
    for i in range(0, 32, 2): E(f"v_pk_mul_f32 v[{O+i}:{O+i+1}], v[{O+i}:{O+i+1}], v[{T0}:{T0+1}] op_sel_hi:[1,0]")
    pack(P, F, 4)
    E(f"""
v_add_f32 v{F}, v{F}, v{F+1}
v_add_f32 v{F+2}, v{F+2}, v{F+3}
v_add_f32 v{F+4}, v{F+4}, v{F+5}
v_add_f32 v{F+6}, v{F+6}, v{F+7}
v_add_f32 v{F}, v{F}, v{F+2}
v_add_f32 v{F+4}, v{F+4}, v{F+6}
v_add_f32 v{F}, v{F}, v{F+4}
v_fma_f32 v{VL}, v{VL}, v{T0}, v{F}
""")
    if stamps: E("s_getreg_b32 s94, hwreg(HW_REG_SHADER_CYCLES)" if False else "s_memrealtime s[94:95]")
    E(f"""
s_waitcnt lgkmcnt(0)
s_cmp_lt_u32 s62, 512
s_cbranch_scc1 L_pv
""")
    if stamps: E("s_memrealtime s[80:81]\ns_waitcnt lgkmcnt(0)\ns_mov_b32 s72, s80")
    R = KF
    def rd_part():
        E(f"ds_read_b32 v{S_+4}, v{FLA} offset:12\nds_read_b64 v[{F}:{F+1}], v{MLW}")
        for d in range(4): E(f"ds_read_b128 v[{R+4*d}:{R+4*d+3}], v{LL} offset:{1024*d}")
    E(f"s_mov_b64 exec, 1\nds_add_rtn_u32 v{ORD}, v{FLA}, v{ONE} offset:4\ns_mov_b64 exec, -1")
    rd_part()
    if F_ < 64:
        E(f"s_cmp_lt_u32 s62, {512 + F_}\ns_cbranch_scc1 L_pv")
        if not lastearly:
            E(f"s_waitcnt lgkmcnt(6)\nv_readfirstlane_b32 s63, v{ORD}\ns_cmp_eq_u32 s63, 3\ns_cbranch_scc1 L_pv")
        (None if dearly else ld_w(40, WD)); ld_w(44, WO)
        E(f"s_mov_b32 s10, 1\ns_waitcnt vmcnt({8 if dearly else 16})\ns_branch L_pv2")
    E("L_pv:\ns_waitcnt vmcnt(0)\nL_pv2:")
    for db in range(8):
        for s in range(2):
            r = VF + db*4 + s*2
            E(f"ds_read_b64_tr_b16 v[{r}:{r+1}], v{VA+db} offset:{s*4096}")
    E(f"ds_read_b32 v{S_+5}, v{FLA}")
    for db in range(8):
        r = VF + db*4
        E(f"s_waitcnt lgkmcnt({min(14, 15-2*db)})")
        E(f"v_mfma_f32_16x16x32_bf16 v[{O+4*db}:{O+4*db+3}], v[{r}:{r+3}], v[{P}:{P+3}], v[{O+4*db}:{O+4*db+3}]")
        E(f"v_xor_b32 v{VA+db}, 0x2000, v{VA+db}")
        if db == 0:
            E(f"""
s_cmp_lt_u32 s62, 512
s_cbranch_scc1 L_noat
v_readfirstlane_b32 s63, v{ORD}
s_cmp_lg_u32 s63, 3
s_cbranch_scc1 L_noat
s_mov_b32 s19, 1
s_atomic_add s19, s[14:15], 0 glc
L_noat:
""")
    E("""
s_add_u32 s33, s33, 1
s_cmp_ge_u32 s62, 512
s_cbranch_scc1 L_stail
s_cmp_eq_u32 s33, 1
s_cbranch_scc0 L_loop
s_branch L_qk
""")

    def embed(r, n=4):
        for i in range(n): E(f"v_and_or_b32 v{r+i}, v{r+i}, s37, v{TG+i%4}")
    def strip(r, n=4):
        for i in range(n): E(f"v_and_b32 v{r+i}, s37, v{r+i}")
    npoll = [0]
    def poll(loads, grs, t, slp, staged=False):
        n = npoll[0]; npoll[0] += 1
        MK = 40
        E("s_mov_b32 s62, 0")
        if len(loads) == 1:
            r = grs[0]
            E(f"L_poll{n}:\n{loads[0]}\ns_waitcnt vmcnt(0)")
            E(f"v_perm_b32 v{t+1}, v{r+1}, v{r}, s38\nv_perm_b32 v{t+2}, v{r+3}, v{r+2}, s39\nv_or_b32 v{t+1}, v{t+1}, v{t+2}")
            E(f"v_cmp_ne_u32 vcc, s36, v{t+1}\ns_cbranch_vccz L_pok{n}\ns_mov_b64 exec, vcc\ns_add_u32 s62, s62, 1\ns_cmp_ge_u32 s62, 0x200000")
        else:
            if not staged:
                for l in loads: E(l)
                E(f"s_branch L_chk{n}")
            E(f"L_poll{n}:")
            for k, l in enumerate(loads):
                E(f"s_mov_b64 exec, s[{MK+2*k}:{MK+2*k+1}] ;nopad\ns_cbranch_execz L_pl{n}_{k} ;nopad\n{l} ;nopad\nL_pl{n}_{k}:")
            E(f"s_mov_b64 exec, -1 ;nopad\nL_chk{n}:\ns_waitcnt vmcnt(0)")
            for k, r in enumerate(grs):
                E(f"v_perm_b32 v{t+1}, v{r+1}, v{r}, s38\nv_perm_b32 v{t+2}, v{r+3}, v{r+2}, s39\nv_or_b32 v{t+1}, v{t+1}, v{t+2}")
                E(f"v_cmp_ne_u32 s[{MK+2*k}:{MK+2*k+1}], s36, v{t+1}")
            E(f"s_or_b64 vcc, s[{MK}:{MK+1}], s[{MK+2}:{MK+3}]")
            for k in range(2, len(loads)): E(f"s_or_b64 vcc, vcc, s[{MK+2*k}:{MK+2*k+1}]")
            E(f"s_cbranch_scc0 L_pok{n}")
            if staged:
                E(f"""
s_cmp_eq_u32 s60, 0
s_cbranch_scc1 L_st2
s_mov_b32 s60, 0
L_hint2:
s_load_dword s58, s[34:35], 64 glc
s_waitcnt lgkmcnt(0)
s_cmp_eq_u32 s58, s36
s_cbranch_scc1 L_poll{n}
s_sleep {hintsleep}
s_add_u32 s62, s62, 1
s_cmp_ge_u32 s62, 0x100
s_cbranch_scc0 L_hint2
L_st2:
""")
            E("s_add_u32 s62, s62, 1\ns_cmp_ge_u32 s62, 0x200000")
        if slp: E(f"s_sleep {slp}")
        E(f"s_cbranch_scc0 L_poll{n}\nL_pok{n}:")
        if len(loads) == 1: E("s_mov_b64 exec, -1")

    E("L_e1:\n.p2align 12\nL_aux:")
    E("s_mov_b32 s37, 0xffffff00\ns_mov_b32 s38, 0x0c0c0400\ns_mov_b32 s39, 0x04000c0c\ns_mov_b32 s62, 0")
    make_sel(SELA, 4)
    calc_cl()
    E(f"""
s_lshl_b32 s58, s3, 10
s_add_u32 s58, s58, {SCR}
v_lshl_add_u32 v2, v0, 4, s58
v_bfe_u32 v3, v0, 1, 3
v_and_b32 v1, 1, v0
v_lshl_add_u32 v3, v1, 4, v3
v_lshlrev_b32 v3, 4, v3
v_add_u32 v3, {SCR}, v3
s_waitcnt vmcnt(9)
""")
    unpack(G, XF, 8)
    E(f"v_add_f32 v1, v{G}, v{G+1}\nv_add_f32 v5, v{G+2}, v{G+3}")
    for i in range(4, 16, 2): E(f"v_add_f32 v1, v1, v{G+i}\nv_add_f32 v5, v5, v{G+i+1}")
    E("v_add_f32 v1, v1, v5")
    wave_allreduce(1, 5, "v_add_f32")
    E(f"v_mul_f32 v1, {f2u(1/1024):#x}, v1")
    for i in range(16): E(f"v_sub_f32 v{G+i}, v{G+i}, v1")
    E(f"v_mul_f32 v6, v{G}, v{G}\nv_mul_f32 v5, v{G+1}, v{G+1}")
    for i in range(2, 16, 2): E(f"v_fmac_f32 v6, v{G+i}, v{G+i}\nv_fmac_f32 v5, v{G+i+1}, v{G+i+1}")
    E("v_add_f32 v6, v6, v5")
    wave_allreduce(6, 5, "v_add_f32")
    E(f"v_mul_f32 v6, {f2u(1/1024):#x}, v6")
    rnd_bf16(1); rnd_bf16(6)
    E(f"v_add_f32 v6, {f2u(1e-5):#x}, v6")
    rnd_bf16(6)
    E("v_sqrt_f32 v6, v6")
    rnd_bf16(6)
    E("v_rcp_f32 v6, v6\ns_waitcnt vmcnt(8)")
    unpack(G, XR, 4)
    for i in range(8): E(f"v_sub_f32 v{G+i}, v{G+i}, v1")
    pack(XR, G, 4); unpack(G, XR, 4)
    for i in range(8): E(f"v_mul_f32 v{G+i}, v{G+i}, v6")
    pack(XR, G, 4)
    build_A(AX, XR, SELA)
    stamp(1)
    mm(G, AX, WF, wait=lambda i: f"s_waitcnt vmcnt({7-i})")
    E(f"""
s_waitcnt lgkmcnt(0)
s_add_u32 s36, s36, 0x01010101
s_and_b32 s58, s36, 0xff
v_mov_b32 v{TG}, s58
s_bfe_u32 s58, s36, 0x80008
v_mov_b32 v{TG+1}, s58
s_bfe_u32 s58, s36, 0x80010
v_mov_b32 v{TG+2}, s58
s_lshr_b32 s58, s36, 24
v_mov_b32 v{TG+3}, s58
v_mov_b32 v5, {FLG}
v_mov_b32 v6, 1
ds_write_b128 v2, v[{G}:{G+3}]
s_mov_b64 exec, 1
ds_add_u32 v5, v6 offset:20
s_mov_b64 exec, -1
""")
    stamp(2)
    E(f"""
s_cmp_lg_u32 s3, 0
s_cbranch_scc1 L_qpub
L_xw:
ds_read_b32 v6, v5 offset:20
s_waitcnt lgkmcnt(0)
v_cmp_ne_u32 vcc, 4, v6
s_cbranch_vccnz L_xw
""")
    for k in range(8):
        E(f"ds_read_b128 v[{G+4*k}:{G+4*k+3}], v3 offset:{(k // 2) * 1024 + (k % 2) * 640}")
    E(f"""
s_lshl4_add_u32 s58, s28, s30
s_lshl2_add_u32 s58, s58, s29
s_lshl_b32 s58, s58, 8
s_add_u32 s58, s58, {QP}
v_lshl_add_u32 v1, v0, 4, s58
s_waitcnt lgkmcnt(0)
""")
    for st in (16, 8, 4):
        for i in range(st): E(f"v_add_f32 v{G+i}, v{G+i}, v{G+st+i}")
    embed(G)
    E(f"s_mov_b64 exec, 0xffff\nglobal_store_dwordx4 v1, v[{G}:{G+3}], s[26:27] sc1\ns_mov_b64 exec, -1\nL_qpub:")
    stamp(3)
    E(f"""
s_lshl2_add_u32 s58, s28, s3
s_lshl_b32 s58, s58, 12
s_add_u32 s58, s58, {QP}
v_lshrrev_b32 v1, 4, v0
v_and_b32 v4, 15, v0
v_lshl_add_u32 v4, v4, 4, s58
v_lshl_add_u32 v4, v1, 10, v4
s_sleep {qsleep}
""")
    poll([f"global_load_dwordx4 v[{G+4*k}:{G+4*k+3}], v4, s[26:27] offset:{256*k} sc1" for k in range(4)],
         [G+4*k for k in range(4)], 5, 4)
    strip(G, 16)
    for st in (8, 4):
        for i in range(st): E(f"v_add_f32 v{G+i}, v{G+i}, v{G+st+i}")
    pack(G, G, 2)
    E(f"""
s_lshl_b32 s58, s3, 9
s_add_u32 s58, s58, {QL}
v_lshl_add_u32 v1, v0, 3, s58
ds_write_b64 v1, v[{G}:{G+1}]
v_mov_b32 v5, {FLG}
v_mov_b32 v6, 1
s_mov_b64 exec, 1
ds_add_u32 v5, v6 offset:16
s_mov_b64 exec, -1
""")
    stamp(4)
    E(f"""
s_cmp_ge_u32 s31, 56
s_cbranch_scc1 L_noffn
s_lshl2_add_u32 s58, s29, s3
s_mul_i32 s59, s58, {64*7168}
s_lshl_b32 s63, s31, 7
s_add_u32 s59, s59, s63
s_add_u32 s16, s16, s59
s_addc_u32 s17, s17, 0
s_add_u32 s18, s18, s59
s_addc_u32 s19, s19, 0
v_lshrrev_b32 v1, 3, v0
v_and_b32 v4, 7, v0
v_lshlrev_b32 v5, 4, v4
v_mul_u32_u24 v1, {8*7168}, v1
v_add_u32 v1, v1, v5
""")
    E(f"v_mov_b32 v19, {FLG}\nv_mov_b32 v20, 1\ns_mov_b32 s63, s39\ns_mov_b32 s60, s58\ns_add_u32 s39, s3, 7")
    tok_wait("L_gw", 1, 19, 22)
    E("s_mov_b32 s39, s63\ns_mov_b32 s58, s60")
    for i in range(0 if "nogu" in exp else 8):
        E(f"global_load_dwordx4 v[{WG_+4*i}:{WG_+4*i+3}], v1, s[16:17] {pw}")
        E(f"global_load_dwordx4 v[{WU_+4*i}:{WU_+4*i+3}], v1, s[18:19] {pw}")
        if i < 7: E("v_add_u32 v1, 7168, v1")
    issued(19, 20)
    E(f"s_waitcnt vmcnt({X})")
    tok_pass(19, 20)
    E(f"""
s_lshl2_add_u32 s58, s31, s29
s_lshl_b32 s58, s58, 9
s_add_u32 s58, s58, {GP}
v_lshl_add_u32 v5, v4, 5, s58
v_bfe_u32 v4, v0, 4, 1
v_lshl_add_u32 v5, v4, 4, v5
v_lshrrev_b32 v4, 5, v0
v_lshl_add_u32 v5, v4, 8, v5
s_waitcnt vmcnt(0)
""")
    mm(G, AX, WG_); mm(G+4, AX, WU_)
    for i in range(4): E(f"v_permlane32_swap_b32 v{G+i}, v{G+4+i}")
    for i in range(4): E(f"v_add_f32_dpp v{G+i}, v{G+4+i}, v{G+i} row_ror:8 {DPP}")
    E(f"""
ds_write_b128 v2, v[{G}:{G+3}] offset:4096
s_mov_b64 exec, 1
ds_add_rtn_u32 v6, v19, v20 offset:8
s_mov_b64 exec, -1
v_lshlrev_b32 v7, 4, v0
v_add_u32 v7, {SCR + 4096}, v7
s_waitcnt lgkmcnt(0)
v_readfirstlane_b32 s58, v6
s_cmp_lg_u32 s58, 3
s_cbranch_scc1 L_gpd
""")
    for k in range(4): E(f"ds_read_b128 v[{G+4*k}:{G+4*k+3}], v7 offset:{1024*k}")
    E("s_waitcnt lgkmcnt(0)")
    for st in (8, 4):
        for i in range(st): E(f"v_add_f32 v{G+i}, v{G+i}, v{G+st+i}")
    embed(G)
    E(f"""
s_mov_b32 exec_lo, 0x00ff00ff
s_mov_b32 exec_hi, 0x00ff00ff
global_store_dwordx4 v5, v[{G}:{G+3}], s[26:27] sc1
s_mov_b64 exec, -1
L_gpd:
s_cmp_lg_u32 s3, 0
s_cbranch_scc1 L_noffn
s_lshl_b32 s58, s31, 11
s_add_u32 s58, s58, {GP}
v_and_b32 v4, 15, v0
v_lshl_add_u32 v5, v4, 4, s58
v_lshrrev_b32 v1, 4, v0
v_lshl_add_u32 v5, v1, 9, v5
L_gt:
s_sleep 20
ds_read_b64 v[22:23], v19
s_waitcnt lgkmcnt(0)
v_cmp_gt_u32 vcc, {gtok}, v22
v_cmp_eq_u32 s[58:59], 0, v23
s_and_b64 vcc, vcc, s[58:59]
s_cbranch_scc1 L_gt
""")
    poll([f"global_load_dwordx4 v[{G+4*u}:{G+4*u+3}], v5, s[26:27] offset:{256*u} sc1" for u in range(2)],
         [G, G+4], G+32, 10)
    strip(G, 8)
    fold4(G, G+4)
    rnd_bf16(G); rnd_bf16(G+4)
    c1 = -2 * 0.7978845608028654 * LOG2E
    E(f"""
v_mul_f32 v{G+1}, v{G}, v{G}
v_mov_b32 v{G+2}, {f2u(c1):#x}
v_mul_f32 v{G+1}, {f2u(c1*0.044715):#x}, v{G+1}
v_add_f32 v{G+1}, v{G+1}, v{G+2}
v_mul_f32 v{G+1}, v{G+1}, v{G}
v_exp_f32 v{G+1}, v{G+1}
v_add_f32 v{G+1}, 1.0, v{G+1}
v_rcp_f32 v{G+1}, v{G+1}
v_mul_f32 v{G}, v{G}, v{G+1}
""")
    rnd_bf16(G)
    E(f"""
v_mul_f32 v{G}, v{G}, v{G+4}
v_cvt_pk_bf16_f32 v{G}, v{G}, v{G}
v_lshl_add_u32 v4, v4, 2, v1
v_lshlrev_b32 v4, 1, v4
v_add_u32 v4, {HS}, v4
ds_write_b16 v4, v{G}
v_mov_b32 v4, {FLG}
v_mov_b32 v5, 1
ds_write_b32 v4, v5 offset:24
s_branch L_noffn
""")
    E("L_e2:\n.p2align 12\nL_noffn:")
    if warm: E("s_mov_b64 exec, 0\ns_branch L_ret3 ;;W3_0\nL_ret3:\ns_mov_b64 exec, -1")
    CA, CB, CM, OW, FS, FD, XO, OA, SA, PI, PM = 8, 9, 10, 11, 12, 13, 14, 15, 16, 17, 18
    E(f"""
s_lshl4_add_u32 s58, s28, s30
s_lshl2_add_u32 s58, s58, s3
s_mul_i32 s58, s58, {16*384}
s_add_u32 s58, s58, {AP + 3072}
v_lshrrev_b32 v1, 4, v0
v_and_b32 v4, 15, v0
v_mul_u32_u24 v5, 384, v1
v_add_u32 v5, s58, v5
v_lshl_add_u32 v{CA}, v4, 4, v5
v_and_b32 v6, 3, v0
v_mul_u32_u24 v6, 1536, v6
v_add_u32 v{CM}, v5, v6
s_lshl_b32 s58, s3, 3
s_add_u32 s58, s58, {OS + 1024}
v_mov_b32 v{CB}, s58
v_lshl_add_u32 v5, v4, 2, v1
s_lshl_b32 s58, s3, 8
s_add_u32 s58, s58, {OS}
v_lshl_add_u32 v{OW}, v5, 2, s58
s_and_b32 s58, s2, 7
s_lshl_b32 s58, s58, 5
s_lshr_b32 s59, s2, 3
s_add_u32 s63, s58, s59
s_lshr_b32 s58, s63, 3
s_lshl_b32 s58, s58, 14
s_and_b32 s59, s63, 7
s_lshl4_add_u32 s58, s59, s58
s_add_u32 s58, s58, {FP}
v_lshl_add_u32 v{FS}, v0, 7, s58
s_add_u32 s58, s58, {64*128}
v_min_u32 v5, 55, v0
v_lshl_add_u32 v{FD}, v5, 7, s58
s_lshl_b32 s63, s63, 3
v_lshl_add_u32 v{OA}, v1, 1, s63
global_load_ushort v{XO}, v{OA}, s[4:5]
s_lshl_b32 s58, s2, 7
s_add_u32 s58, s58, {NF}
s_add_u32 s34, s26, s58
s_addc_u32 s35, s27, 0
s_mov_b32 s61, {f2u(LOG2E):#x}
v_lshlrev_b32 v{SA}, 2, v0
v_add_u32 v{SA}, {SCR}, v{SA}
""")
    stamp(5)
    E(f"""
v_mov_b32 v5, {FLG}
L_aw:
s_sleep 30
ds_read_b32 v6, v5 offset:4
s_waitcnt lgkmcnt(0)
v_cmp_eq_u32 vcc, 0, v6
s_cbranch_vccnz L_aw
""")
    if onepoll:
        E(f"""
s_cmp_eq_u32 s3, 0
s_cbranch_scc1 L_aw2
L_fw:
s_sleep 1
ds_read_b32 v6, v5 offset:16
s_waitcnt lgkmcnt(0)
v_cmp_gt_u32 vcc, 5, v6
s_cbranch_vccnz L_fw
s_branch L_hinted2
""")
    E(f"""
L_aw2:
s_sleep 2
ds_read_b32 v6, v5 offset:4
s_waitcnt lgkmcnt(0)
v_cmp_gt_u32 vcc, {c1thr}, v6
s_cbranch_vccnz L_aw2
""")
    stamp(6)
    E(f"""
s_mov_b32 s62, 0
v_mov_b32 v6, 5
L_hint:
s_load_dword s58, s[34:35], 0 glc
s_waitcnt lgkmcnt(0)
s_cmp_eq_u32 s58, s36
s_cbranch_scc1 L_hinted
s_sleep {hintsleep}
s_add_u32 s62, s62, 1
s_cmp_ge_u32 s62, 0x100
s_cbranch_scc0 L_hint
L_hinted:
""")
    if onepoll: E("ds_write_b32 v5, v6 offset:16\nL_hinted2:")
    stamp(7)
    M_ = G + 16
    poll([f"global_load_dwordx4 v[{M_}:{M_+3}], v{CM}, s[26:27] offset:{256-3072} sc1"] +
         [f"global_load_dwordx4 v[{G+4*k}:{G+4*k+3}], v{CA}, s[26:27] offset:{1536*k-3072} sc1" for k in range(4)],
         [M_] + [G+4*k for k in range(4)], 5, hsleep)
    stamp(8)
    E(f"v_and_b32 v{M_}, s37, v{M_}\nv_and_b32 v{M_+1}, s37, v{M_+1}")
    strip(G, 1)
    E(f"v_max_f32_dpp v6, v{M_}, v{M_} quad_perm:[1,0,3,2] {DPP}")
    strip(G+1, 2)
    E(f"v_max_f32_dpp v6, v6, v6 quad_perm:[2,3,0,1] {DPP}\nv_mov_b32 v7, v6")
    strip(G+3, 2)
    E(f"v_permlane32_swap_b32 v7, v6\nv_max_f32 v6, v6, v7\nv_mov_b32 v7, v6")
    strip(G+5, 2)
    E(f"v_permlane16_swap_b32 v7, v6\nv_max_f32 v6, v6, v7")
    E(f"v_sub_f32 v5, v{M_}, v6\nv_mul_f32 v5, s61, v5\nv_exp_f32 v5, v5")
    strip(G+7, 9)
    E(f"v_mul_f32 v7, v5, v{M_+1}")
    extra = [f"v_add_f32_dpp v7, v7, v7 quad_perm:[1,0,3,2] {DPP}", f"v_add_f32_dpp v7, v7, v7 quad_perm:[2,3,0,1] {DPP}", "v_mov_b32 v21, v7",
             "v_permlane32_swap_b32 v21, v7\nv_add_f32 v7, v7, v21\nv_mov_b32 v21, v7"]
    for k in range(4):
        op = "v_mul_f32_dpp" if k == 0 else "v_fmac_f32_dpp"
        for i in range(4): E(f"{op} v{G+i}, v5, v{G+4*k+i} quad_perm:[{k},{k},{k},{k}] {DPP}")
        E(extra[k])
    E(f"""
v_permlane32_swap_b32 v{G}, v{G+2}
v_permlane32_swap_b32 v{G+1}, v{G+3}
v_add_f32 v{G}, v{G}, v{G+2}
v_add_f32 v{G+1}, v{G+1}, v{G+3}
v_permlane16_swap_b32 v21, v7
v_add_f32 v7, v7, v21
v_permlane16_swap_b32 v{G}, v{G+1}
ds_write_b64 v{CB}, v[6:7]
v_add_f32 v{G}, v{G}, v{G+1}
ds_write_b32 v{OW}, v{G}
s_waitcnt lgkmcnt(0)
s_barrier
s_cmp_eq_u32 s3, 0
s_cbranch_scc1 L_sred
s_cmp_lg_u32 s3, 1
s_cbranch_scc1 L_end
""")
    poll([f"global_load_dwordx4 v[{G+4}:{G+7}], v{FD}, s[26:27] sc1"], [G+4], 5, sleep)
    strip(G+4, 4)
    E("v_cmp_gt_u32 vcc, 56, v0")
    for i in range(4): E(f"v_cndmask_b32 v{G+4+i}, 0, v{G+4+i}, vcc")
    fold4(G+4)
    row_allreduce([G+4], "v_add_f32")
    rnd_bf16(G+4)
    E(f"""
v_mul_f32 v21, {f2u(-LOG2E):#x}, v{G+4}
v_exp_f32 v21, v21
v_add_f32 v21, 1.0, v21
v_rcp_f32 v21, v21
v_mul_f32 v21, v21, v{G+4}
""")
    rnd_bf16(21)
    E(f"ds_write_b32 v{SA}, v21\ns_waitcnt lgkmcnt(0)\ns_barrier\ns_endpgm\nL_sred:")
    stamp(9)
    E(f"v_lshlrev_b32 v{XO}, 16, v{XO}")
    if ssleep: E(f"s_sleep {ssleep}")
    poll([f"global_load_dwordx4 v[{G}:{G+3}], v{FS}, s[26:27] sc1"], [G], 5, sleep)
    stamp(10)
    E(f"s_barrier\nds_read_b32 v21, v{SA}")
    stamp(11)
    strip(G, 4)
    fold4(G)
    row_allreduce([G], "v_add_f32")
    rnd_bf16(G)
    E(f"s_waitcnt lgkmcnt(0)\nv_mul_f32 v5, v21, v{G}")
    rnd_bf16(5)
    E(f"""
v_add_f32 v5, v5, v{XO}
v_cvt_pk_bf16_f32 v5, v5, v5
s_mov_b32 exec_lo, 0x00010001
s_mov_b32 exec_hi, 0x00010001
global_store_short v{OA}, v5, s[22:23] {opol}
s_cmp_lg_u32 s2, 0
s_cbranch_scc1 L_fin
s_mov_b64 exec, 1
v_mov_b32 v5, 0
v_mov_b32 v6, s36
global_store_dword v5, v6, s[26:27] sc1
L_fin:
""")
    if stamps:
        stamp(12); dump_stamps(1, 13)
    if diag is not None:
        k, cond = diag
        E(f"s_sub_u32 s58, s{64+2*k}, s64\ns_lshl_b32 s58, s58, 2")
        if cond is not None: E(cond + "\ns_cselect_b32 s58, s58, 0")
        E("s_add_u32 s58, s58, 6000\nL_spin:\ns_memrealtime s[60:61]\ns_waitcnt lgkmcnt(0)\ns_sub_u32 s59, s60, s64\ns_cmp_lt_u32 s59, s58\ns_cbranch_scc1 L_spin")
    E("L_end:\ns_endpgm")

    E("L_stail:")
    if stamps: E("s_memtime s[96:97]" if False else "s_nop 0")
    if stamps: E("s_mul_i32 s84, s33, 100\ns_add_u32 s84, s84, s64")
    R = KF
    E(f"s_mov_b32 s11, s33\nv_readfirstlane_b32 s33, v{ORD}")
    cross_rows(VL, T1, "v_add_f32")
    E(f"""
s_cmp_eq_u32 s33, 0
s_cbranch_scc1 L_first
v_cmp_ne_u32 vcc, s33, v{S_+4}
s_cbranch_vccz L_pw2
L_pw:
""")
    rd_part()
    E(f"""
ds_read_b32 v{S_+5}, v{FLA}
s_waitcnt lgkmcnt(1)
v_cmp_ne_u32 vcc, s33, v{S_+4}
s_cbranch_vccnz L_pw
L_pw2:
v_max_f32 v{S_}, v{F}, v{VM}
v_sub_f32 v{VM}, v{VM}, v{S_}
v_sub_f32 v{F}, v{F}, v{S_}
v_mul_f32 v{VM}, s61, v{VM}
v_mul_f32 v{F}, s61, v{F}
v_exp_f32 v{VM}, v{VM}
v_exp_f32 v{F}, v{F}
""")
    for d in range(4):
        for e in range(4): E(f"v_cndmask_b32 v{O+8*d+e}, v{O+8*d+e}, v{O+8*d+4+e}, s[20:21]")
    E(f"v_mul_f32 v{S_+1}, v{VM}, v{VL}\nv_fmac_f32 v{S_+1}, v{F}, v{F+1}")
    for d in range(4):
        for e in (0, 2): E(f"v_pk_mul_f32 v[{R+4*d+e}:{R+4*d+e+1}], v[{R+4*d+e}:{R+4*d+e+1}], v[{F}:{F+1}] op_sel_hi:[1,0]")
    E("s_cmp_eq_u32 s33, 3\ns_cbranch_scc1 L_last")
    for d in range(4):
        for e in (0, 2): E(f"v_pk_fma_f32 v[{O+8*d+e}:{O+8*d+e+1}], v[{O+8*d+e}:{O+8*d+e+1}], v[{VM}:{VM+1}], v[{R+4*d+e}:{R+4*d+e+1}] op_sel_hi:[1,0,1]")
    E("s_branch L_wr\nL_first:")
    for d in range(4):
        for e in range(4): E(f"v_cndmask_b32 v{O+8*d+e}, v{O+8*d+e}, v{O+8*d+4+e}, s[20:21]")
    E(f"v_mov_b32 v{S_}, v{VM}\nv_mov_b32 v{S_+1}, v{VL}\nL_wr:")
    for d in range(4): E(f"ds_write_b128 v{LL}, v[{O+8*d}:{O+8*d+3}] offset:{1024*d}")
    E(f"ds_write_b64 v{MLW}, v[{S_}:{S_+1}]\ns_mov_b64 exec, 1\nds_add_u32 v{FLA}, v{ONE} offset:12\ns_mov_b64 exec, -1")
    E("s_cmp_eq_u32 s10, 1\ns_cbranch_scc1 L_wdone")
    tok_wait("L_twW", 5, FLA, S_+4)
    if tslow: E(f"s_cmp_le_u32 s11, {tslow}\ns_cbranch_scc1 L_wgo")
    E("s_branch L_wj\nL_last:")
    tagS = ["s36", "s16", "s17", "s18"]
    for d in range(4):
        for e in (0, 2): E(f"v_pk_fma_f32 v[{O+8*d+e}:{O+8*d+e+1}], v[{O+8*d+e}:{O+8*d+e+1}], v[{VM}:{VM+1}], v[{R+4*d+e}:{R+4*d+e+1}] op_sel_hi:[1,0,1]")
        for e in range(4): E(f"v_bfi_b32 v{O+8*d+e}, v{MSK}, v{O+8*d+e}, {tagS[e]}")
        E(f"global_store_dwordx4 v{APA if d < 2 else APB}, v[{O+8*d}:{O+8*d+3}], s[26:27] offset:{128*(d&1)} sc1")
    E(f"""
v_bfi_b32 v{S_}, v{MSK}, v{S_}, s36
v_bfi_b32 v{S_+1}, v{MSK}, v{S_+1}, s16
v_mov_b32 v{S_+2}, s17
v_mov_b32 v{S_+3}, s18
s_mov_b64 exec, 0xffff
global_store_dwordx4 v{APM}, v[{S_}:{S_+3}], s[26:27] offset:256 sc1
s_mov_b64 exec, 1
ds_add_u32 v{FLA}, v{ONE} offset:4
s_mov_b64 exec, -1
""")
    if stamps: E("s_memrealtime s[74:75]")
    E(f"""
s_waitcnt lgkmcnt(0)
s_cmp_lg_u32 s19, {63 - hx}
s_cbranch_scc1 L_nn
v_mov_b32 v{T0}, s36
global_store_dword v{NFA}, v{T0}, s[26:27] sc1
L_nn:
s_cmp_eq_u32 s10, 1
s_cbranch_scc1 L_wdone
s_cmp_le_u32 s11, {tslow or 0}
s_cbranch_scc1 L_wgo
L_wj:
s_sub_u32 s39, s33, {wlead}
L_wg:
ds_read_b32 v{T0}, v{FLA} offset:28
s_waitcnt lgkmcnt(0)
v_cmp_gt_i32 vcc, s39, v{T0}
s_cbranch_vccnz L_wg
L_wgo:
""")
    if stamps: E("s_memrealtime s[96:97]")
    if "dyndown" in exp:
        ld_w(44, WO)
        E(f"s_cmp_ge_u32 s62, 544\ns_cbranch_scc1 L_wdone")
        ld_w(40, WD)
        E("s_waitcnt vmcnt(8)\ns_xor_b32 s40, s40, 0x100000")
        ld_w(40, WD)
    else:
        (None if dearly else ld_w(40, WD, range(dpart, 8))); ld_w(44, WO); issued(FLA, ONE)
    E(f"L_wdone:\ns_waitcnt vmcnt({XW})\ns_mov_b64 exec, 1\nds_add_u32 v{FLA}, v{ONE}\nds_add_u32 v{FLA}, v{ONE} offset:28\ns_mov_b64 exec, -1")
    E(f"""
s_cmp_ge_u32 s31, 56
s_cbranch_scc1 L_nod
L_hw:
ds_read_b32 v{T1}, v{FLA} offset:24
ds_read_b128 v[{P}:{P+3}], v{HSA}
s_waitcnt lgkmcnt(0)
v_cmp_eq_u32 vcc, 0, v{T1}
s_cbranch_vccnz L_hw
""")
    build_A(KF, P, SELS)
    E("s_waitcnt vmcnt(8)")
    def g2_fin():
        E(f"v_permlane32_swap_b32 v{S_}, v{S_+2}\nv_permlane32_swap_b32 v{S_+1}, v{S_+3}")
        for i in range(2): E(f"v_add_f32_dpp v{S_+i}, v{S_+2+i}, v{S_+i} row_ror:8 {DPP}")
        E(f"v_permlane32_swap_b32 v{S_}, v{S_+2}\nv_permlane32_swap_b32 v{S_+1}, v{S_+3}")
        for e in range(4): E(f"v_bfi_b32 v{S_+e}, v{MSK}, v{S_+e}, {tagS[e]}")
    if dmode == "merge":
        mm(S_+4, KF, WD)
        E(f"L_nod:\ns_mov_b32 s58, 0x00ff00ff\ns_cmp_lt_u32 s31, 56\ns_cselect_b32 s59, s58, 0\ns_waitcnt vmcnt(0)")
    else:
        mm(S_, KF, WD)
        g2_fin()
        E(f"s_waitcnt vmcnt(0)\ns_mov_b64 exec, 0x00ff00ff\nglobal_store_dwordx4 v{FAD}, v[{S_}:{S_+3}], s[26:27] sc1\ns_mov_b64 exec, -1\ns_branch L_x2\nL_nod:\ns_waitcnt vmcnt(0)\nL_x2:")
    E(f"v_mov_b32 v{LL}, {OS + 1024}")
    stamp(6)
    E("s_barrier")
    stamp(7)
    mo = OS + 1024 - FLG + 65536
    E(f"ds_read_b128 v[{F}:{F+3}], v{LL}\nds_read_b128 v[{F+4}:{F+7}], v{LL} offset:16")
    for k in range(4):
        for h in range(2):
            E(f"ds_read_b128 v[{VF+8*k+4*h}:{VF+8*k+4*h+3}], v{OSA} offset:{256*k + 16*h}")
    E("s_waitcnt lgkmcnt(8)")
    E(f"v_max3_f32 v{T0}, v{F}, v{F+2}, v{F+4}\nv_max_f32 v{T0}, v{T0}, v{F+6}")
    for k in range(4): E(f"v_sub_f32 v{F+2*k}, v{F+2*k}, v{T0}")
    for k in range(4): E(f"v_mul_f32 v{F+2*k}, s61, v{F+2*k}")
    for k in range(4): E(f"v_exp_f32 v{F+2*k}, v{F+2*k}")
    E(f"v_mul_f32 v{T0}, v{F}, v{F+1}")
    for k in range(1, 4): E(f"v_fmac_f32 v{T0}, v{F+2*k}, v{F+2*k+1}")
    E(f"v_rcp_f32 v{T0}, v{T0}\ns_waitcnt lgkmcnt(0)")
    for i in range(0, 8, 2): E(f"v_pk_mul_f32 v[{VF+i}:{VF+i+1}], v[{VF+i}:{VF+i+1}], v[{F}:{F+1}] op_sel_hi:[1,0]")
    for k in range(1, 4):
        for i in range(0, 8, 2): E(f"v_pk_fma_f32 v[{VF+i}:{VF+i+1}], v[{VF+8*k+i}:{VF+8*k+i+1}], v[{F+2*k}:{F+2*k+1}], v[{VF+i}:{VF+i+1}] op_sel_hi:[1,0,1]")
    for i in range(0, 8, 2): E(f"v_pk_mul_f32 v[{VF+i}:{VF+i+1}], v[{VF+i}:{VF+i+1}], v[{T0}:{T0+1}] op_sel_hi:[1,0]")
    pack(P, VF, 4)
    build_A1(KF, P, SELS, 0)
    for i in range(8):
        if i < 7: build_A1(KF, P, SELS, i + 1)
        mm1(S_, KF, WO, i)
    if dmode == "merge":
        for i in range(4): E(f"v_permlane32_swap_b32 v{S_+i}, v{S_+4+i}")
        for i in range(4): E(f"v_add_f32_dpp v{S_+i}, v{S_+4+i}, v{S_+i} row_ror:8 {DPP}")
        for e in range(4): E(f"v_bfi_b32 v{S_+e}, v{MSK}, v{S_+e}, {tagS[e]}")
        E(f"s_mov_b64 exec, s[58:59]\nglobal_store_dwordx4 v{FAS}, v[{S_}:{S_+3}], s[26:27] sc1")
    else:
        g2_fin()
        E(f"s_mov_b64 exec, 0x00ff00ff\nglobal_store_dwordx4 v{FAS}, v[{S_}:{S_+3}], s[26:27] sc1")
    if stamps:
        stamp(9)
        E(f"s_mov_b64 exec, 1\ns_lshl2_add_u32 s58, s2, s3\ns_lshl_b32 s58, s58, 4\ns_add_u32 s58, s58, {STAMPS + 0x10000}\nv_mov_b32 v1, s58\nv_mov_b32 v4, s90\nv_mov_b32 v5, s72\ns_sub_u32 s59, s84, s64\nv_mov_b32 v6, s59\nv_mov_b32 v7, s93\nglobal_store_dwordx4 v1, v[4:7], s[26:27]\nv_mov_b32 v8, s96\nv_mov_b32 v9, s76\nv_mov_b32 v10, s33\nv_mov_b32 v11, s62\nv_add_u32 v1, 0x4000, v1\nglobal_store_dwordx4 v1, v[8:11], s[26:27]")
        E("s_cmp_lg_u32 s33, 3\ns_cbranch_scc1 L_end2")
        E('s_mov_b32 s86, s94\ns_mov_b32 s88, s90'); dump_stamps(0, 13)
        E("L_end2:")
    E("s_endpgm")
    NV = 256
    E(f'''.section .rodata,"a"
.p2align 6
.amdhsa_kernel {KN}
.amdhsa_next_free_vgpr {NV}
.amdhsa_next_free_sgpr 102
.amdhsa_accum_offset {NV}
.amdhsa_group_segment_fixed_size 0
.amdhsa_kernarg_size 96
.amdhsa_user_sgpr_count 2
.amdhsa_user_sgpr_kernarg_segment_ptr 1
.amdhsa_system_sgpr_workgroup_id_x 1
.amdhsa_float_denorm_mode_32 3
.end_amdhsa_kernel''')
    hdr = f"; fused decode block: LN -> (GQA attention -> wo) * silu(GEGLU FFN) + x ; generated by dev/gen.py\n; @launch grid=(256,1,1) block=(512,1,1) lds={LDS_TOTAL}\n"
    if "nocomp" in exp or "nolds" in exp or "novalu" in exp:
        i0 = E.L.index("L_qk:"); i1 = E.L.index("L_e1:")
        body = E.L[i0:i1]
        def drop(l):
            if "nocomp" in exp and (l.startswith("v_") and "readfirstlane" not in l or l.startswith("ds_read_b128 v[4") or l.startswith("ds_read_b128 v[5") or l.startswith("ds_read_b128 v[6") or l.startswith("ds_read_b64_tr")): return True
            if "nolds" in exp and (l.startswith("ds_read_b128") or l.startswith("ds_read_b64_tr")): return True
            if "novalu" in exp and l.startswith("v_") and "readfirstlane" not in l: return True
            return False
        E.L[i0:i1] = [l for l in body if not drop(l)]
    if "nogpld" in exp:
        i0 = [k for k, l in enumerate(E.L) if l.startswith(f"s_sleep {gsleep}")][-1]
        i1 = E.L.index("L_pok1:")
        E.L[i0:i1+1] = []
    if "nogp" in exp:
        i = [k for k, l in enumerate(E.L) if l.startswith("global_store_dwordx4 v5, v[160:163]")][0]
        E.L[i] = "s_nop 0"
        i0 = [k for k, l in enumerate(E.L) if l.startswith(f"s_sleep {gsleep}")][-1]
        i1 = E.L.index("L_pok1:")
        E.L[i0:i1+1] = []
    if "noq" in exp:
        i0 = [k for k, l in enumerate(E.L) if l.startswith(f"s_sleep {qsleep}")][-1]
        i1 = E.L.index("L_pok0:")
        E.L[i0+1:i1+1] = []
    if "noml" in exp:
        E.L = [l for l in E.L if not l.startswith("global_store_dwordx4 v234")]
        E.L = [("v_mov_b32 v176, s36\nv_mov_b32 v177, v157\nv_mov_b32 v178, v158\nv_mov_b32 v179, v159".split("\n") if l.startswith("global_load_dwordx4 v[176:179], v10") else [l]) for l in E.L]
        E.L = [x for y in E.L for x in y]
    if "auxquiet" in exp:
        i = E.L.index("L_aw:"); E.L[i+1] = "s_sleep 40"
    if "spinsleep" in exp:
        i = E.L.index("L_tw:"); E.L.insert(i+1, "s_sleep 1")
    text = hdr + E.finish()
    if warm:
        import pads
        text, cnt = pads.place(text, [(KN, "L_e0", "PS", False), ("L_loop", "L_e1", "PL", True), ("L_aux", "L_e2", "PA", True), ("L_noffn", None, "PT", False)])
        names = lambda p: [f"{p}{i}" for i in range(cnt[p])]
        PS, PL, PA, PT = names("PS"), names("PL"), names("PA"), names("PT")
        early = PA[:2] + PS[:2]
        rest = PA[2:] + PL + PS[2:]
        chains = {"W1": [[x] for x in early] + [[]] * (4 - len(early)), "W2": [rest[i::4] for i in range(4)], "W3": [PT]}
        for ph, ret in (("W1", "L_ret1"), ("W2", "L_ret2"), ("W3", "L_ret3")):
            for w, ch in enumerate(chains[ph]):
                seq = ch + [ret]
                text = re.sub(rf"{ret} ;;{ph}_{w}\b", seq[0], text)
                for a_, b_ in zip(seq, seq[1:]): text = text.replace(f"@{a_}@", b_)
        assert "@P" not in text
    return text

if __name__ == "__main__":
    import json
    kw = json.loads(sys.argv[2]) if len(sys.argv) > 2 else {}
    open(sys.argv[1], "w").write(gen(**kw))
```

```python
import sys, struct, re
from asmlib import Asm
KN = "recurrent_scan__gqa_block_cached__glu_gated_geglu__decode_kernel"

def f2u(x): return struct.unpack("<I", struct.pack("<f", x))[0]

CNT, QP, NF, FP, AP, GP, STAMPS = 0x300000, 0x10000, 0x40000, 0x80000, 0x100000, 0x280000, 0x400000
PART = 131072
MLL  = PART + 4096
QL   = MLL + 512
SCR  = QL + 2048
OS   = SCR + 8192
HS   = OS + 1024 + 32
FLG  = HS + 128
LDS_TOTAL = FLG + 64
LOG2E = 1.4426950408889634
DPP = "row_mask:0xf bank_mask:0xf"

def gen(pk="nt", pw="nt", stamps=False, diag=None, warm=True, X=4, XW=8, wlead=1, tk=12, nret=480, hoff=72, hx=4,
        qsleep=70, gy=3, gw=8, gtok=22, sleep=1, hsleep=1, hintsleep=1, tsl=1, ssleep=0, c1thr=5, cstr=256, um=3, exp=()):
    S = 6
    E = Asm()
    def stamp(i):
        if stamps: E(f"s_memrealtime s[{64+2*i}:{65+2*i}]\ns_waitcnt lgkmcnt(0)")
    nls = [0]
    def lstamp(i, t):
        if stamps:
            nls[0] += 1
            E(f"s_cmp_eq_u32 s33, {t}\ns_cbranch_scc0 L_ls{nls[0]}"); stamp(i); E(f"L_ls{nls[0]}:")
    def dump_stamps(role, n):
        E(f"s_mov_b64 exec, 1\ns_lshl_b32 s58, s2, 8\ns_add_u32 s58, s58, {STAMPS + role*128}\nv_mov_b32 v1, s58")
        for i in range(n):
            E(f"v_mov_b32 v2, s{64+2*i}\nglobal_store_dword v1, v2, s[26:27] offset:{4*i}")
    def row_allreduce(regs, op, rs=(8, 4, 2, 1)):
        for r in rs:
            for v in regs: E(f"{op}_dpp v{v}, v{v}, v{v} row_ror:{r} {DPP}")
    def cross_rows(v, t, op):
        E(f"v_mov_b32 v{t}, v{v}\nv_permlane32_swap_b32 v{t}, v{v}\n{op} v{v}, v{v}, v{t}")
        E(f"v_mov_b32 v{t}, v{v}\nv_permlane16_swap_b32 v{t}, v{v}\n{op} v{v}, v{v}, v{t}")
    def wave_allreduce(v, t, op):
        row_allreduce([v], op); cross_rows(v, t, op)
    def fold4(*aa):
        for a in aa: E(f"v_permlane32_swap_b32 v{a}, v{a+2}\nv_permlane32_swap_b32 v{a+1}, v{a+3}")
        for a in aa: E(f"v_add_f32 v{a}, v{a}, v{a+2}\nv_add_f32 v{a+1}, v{a+1}, v{a+3}")
        for a in aa: E(f"v_permlane16_swap_b32 v{a}, v{a+1}")
        for a in aa: E(f"v_add_f32 v{a}, v{a}, v{a+1}")
    def rnd_bf16(v):
        E(f"v_cvt_pk_bf16_f32 v{v}, v{v}, v{v}\nv_and_b32 v{v}, 0xffff0000, v{v}")
    def unpack(dst, src, n):
        for i in range(n): E(f"v_lshlrev_b32 v{dst+2*i}, 16, v{src+i}\nv_and_b32 v{dst+2*i+1}, 0xffff0000, v{src+i}")
    def pack(dst, src, n):
        for i in range(n): E(f"v_cvt_pk_bf16_f32 v{dst+i}, v{src+2*i}, v{src+2*i+1}")
    def make_sel(SEL, t):
        E(f"""
v_and_b32 v{t}, 1, v0
v_cmp_eq_u32 vcc, 1, v{t}
v_mov_b32 v{t+1}, 0x0c0c0100
v_mov_b32 v{t+2}, 0x01000c0c
v_cndmask_b32 v{t+1}, v{t+1}, v{t+2}, vcc
v_mov_b32 v{t+2}, 0x0c0c0302
v_mov_b32 v{t+3}, 0x03020c0c
v_cndmask_b32 v{t+2}, v{t+2}, v{t+3}, vcc
v_bfe_u32 v{t}, v0, 1, 2
v_mov_b32 v{t+3}, 0x0c0c0c0c
""")
        for k in range(4):
            E(f"v_cmp_eq_u32 vcc, {k}, v{t}\nv_cndmask_b32 v{SEL+2*k}, v{t+3}, v{t+1}, vcc\nv_cndmask_b32 v{SEL+2*k+1}, v{t+3}, v{t+2}, vcc")
    def build_A1(dst, pk_, SEL, i):
        for k in range(4):
            E(f"v_perm_b32 v{dst+4*i+k}, v{pk_+i//2}, v{pk_+i//2}, v{SEL+2*k+(i&1)}")
    def build_A(dst, pk_, SEL):
        for i in range(8): build_A1(dst, pk_, SEL, i)
    def mm1(d, a, b, i):
        c = "0" if i == 0 else f"v[{d}:{d+3}]"
        E(f"v_mfma_f32_16x16x32_bf16 v[{d}:{d+3}], v[{a+4*i}:{a+4*i+3}], v[{b+4*i}:{b+4*i+3}], {c}")
    def mm(d, a, b, wait=None):
        for i in range(8):
            if wait: E(wait(i))
            mm1(d, a, b, i)
    def calc_cl():
        E("""
s_and_b32 s59, s2, 7
s_lshl3_add_u32 s31, s28, s59
s_sub_u32 s59, s59, s28
s_sub_u32 s59, s59, s28
s_sub_u32 s59, s59, 2
s_and_b32 s59, s59, 7
s_mul_i32 s58, s28, 6
s_add_u32 s58, s58, s59
s_add_u32 s58, s58, 32
s_cmp_lt_u32 s59, 6
s_cselect_b32 s58, s58, 63
s_bitcmp1_b32 s2, 5
s_cselect_b32 s31, s58, s31
""")

    E(f'.amdgcn_target "amdgcn-amd-amdhsa--gfx950"\n.text\n.p2align 12\n.globl {KN}\n.p2align 8\n.type {KN},@function\n{KN}:')
    E(f"""
s_load_dwordx16 s[4:19], s[0:1], 0
s_load_dwordx8 s[20:27], s[0:1], 64
s_cmp_ge_u32 s2, 256
s_cbranch_scc1 L_end0
v_and_b32 v2, 28, v0
v_add_u32 v2, {FLG}, v2
v_mov_b32 v5, 0
ds_write_b32 v2, v5
v_lshrrev_b32 v1, 6, v0
v_and_b32 v0, 63, v0
""")
    if stamps: E("s_memrealtime s[64:65]")
    E("""
v_readfirstlane_b32 s3, v1
s_bfe_u32 s29, s2, 0x20003
s_lshr_b32 s28, s2, 6
s_bfe_u32 s58, s2, 0x10005
s_and_b32 s59, s2, 7
s_lshl3_add_u32 s30, s58, s59
s_and_b32 s32, s2, 63
s_cmp_lt_u32 s3, 4
s_cbranch_scc1 L_str
""")
    XF, XR, WF, AX, WG_, WU_, SELA, TG, G = 8, 16, 20, 52, 84, 116, 148, 156, 160
    E(f"""
s_setprio 3
s_sub_u32 s3, s3, 4
v_lshlrev_b32 v1, 5, v0
v_lshrrev_b32 v2, 3, v0
v_and_b32 v4, 7, v0
v_lshlrev_b32 v4, 4, v4
v_lshl_add_u32 v4, v2, 16, v4
s_lshl2_add_u32 s58, s29, s3
s_lshl_b32 s59, s58, 7
v_lshl_add_u32 v3, v2, 4, s59
s_lshl_b32 s58, s58, 19
s_lshl4_add_u32 s59, s28, s30
s_lshl_b32 s59, s59, 7
s_add_u32 s58, s58, s59
s_waitcnt lgkmcnt(0)
global_load_dwordx4 v[{XF}:{XF+3}], v1, s[4:5]
global_load_dwordx4 v[{XF+4}:{XF+7}], v1, s[4:5] offset:16
global_load_dwordx4 v[{XR}:{XR+3}], v3, s[4:5]
s_add_u32 s10, s10, s58
s_addc_u32 s11, s11, 0
""")
    for i in range(8):
        E(f"global_load_dwordx4 v[{WF+4*i}:{WF+4*i+3}], v4, s[10:11] {pw}")
        if i < 7: E("v_add_u32 v4, 0x2000, v4")
    E("s_load_dword s36, s[26:27], 0")
    E("s_barrier")
    E("s_branch L_aux\nL_end0:\ns_endpgm")

    LDA, LDB, LDA2, LDB2, VW, LL = 2, 3, 4, 5, 6, 7
    KA, VA = 8, 12
    VM, VL, T0, T1 = 20, 21, 22, 23
    QF, KF, VF, S_, F, P, O, WD, WO, SELS = 24, 40, 72, 104, 112, 120, 124, 156, 188, 220
    FAS, FAD, OSA, APA, APM, FLA, ONE, MSK, ORD, HSA, APB, NFA, MLW = 228, 229, 230, 231, 232, 233, 234, 235, 236, 237, 238, 239, 240
    SS = WD
    E("L_str:")
    if warm:
        E("s_mov_b64 exec, 0")
        for w in range(3): E(f"s_cmp_eq_u32 s3, {w}\ns_cbranch_scc1 L_ret1 ;;W1_{w}")
        E("s_branch L_ret1 ;;W1_3\nL_ret1:\ns_mov_b64 exec, -1")
    E(f"""
s_waitcnt lgkmcnt(0)
s_barrier
s_load_dword s36, s[26:27], 0
v_mov_b32 v{FLA}, {FLG}
v_mov_b32 v{ONE}, 1
s_cmp_lg_u32 s3, 0
s_cbranch_scc1 L_noini2
s_cmp_lg_u32 s32, 0
s_cbranch_scc1 L_noinit
s_mul_i32 s59, s28, {8*cstr}
s_add_u32 s59, s59, {CNT}
v_mul_u32_u24 v{T0}, {cstr}, v0
v_add_u32 v{T0}, s59, v{T0}
v_mov_b32 v{T1}, 0
s_mov_b64 exec, 15
v_mov_b32 v{T1}, {64*S}
s_mov_b64 exec, 31
global_store_dword v{T0}, v{T1}, s[26:27] sc1
s_waitcnt vmcnt(0)
L_noinit:
s_mov_b64 exec, 1
ds_add_u32 v{FLA}, v{ONE} offset:20
s_mov_b64 exec, -1
L_noini2:
""")
    if warm:
        E("s_mov_b64 exec, 0")
        for w in range(3): E(f"s_cmp_eq_u32 s3, {w}\ns_cbranch_scc1 L_ret2 ;;W2_{w}")
        E("s_branch L_ret2 ;;W2_3\nL_ret2:\ns_mov_b64 exec, -1")
    E(f"""
v_lshrrev_b32 v1, 4, v0
v_and_b32 v{LDA}, 15, v0
v_lshlrev_b32 v{LDB}, 1, v1
v_xor_b32 v{LDA}, v{LDA}, v{LDB}
v_lshlrev_b32 v{LDA}, 4, v{LDA}
v_lshl_add_u32 v{LDA}, v1, 8, v{LDA}
v_xor_b32 v{LDB}, 0x80, v{LDA}
v_add_u32 v{LDA2}, 0x1000, v{LDA}
v_add_u32 v{LDB2}, 0x1000, v{LDB}
s_mul_i32 s38, s28, {hoff}
s_add_u32 s38, s38, s3
s_lshl2_add_u32 s35, s32, s38
s_lshl_b32 s59, s28, 24
s_lshl_b32 s34, s3, 15
s_add_u32 s54, s6, s59
s_addc_u32 s55, s7, 0
s_add_u32 s56, s8, s59
s_addc_u32 s57, s9, 0
s_lshr_b32 s39, s2, 3
s_add_u32 s39, s39, s3
s_and_b32 s39, s39, 3
""")
    if um == 3: E("s_lshr_b32 s58, s32, 3\ns_xor_b32 s35, s32, s58\ns_lshl_b32 s58, s39, 6\ns_add_u32 s35, s35, s58\ns_add_u32 s35, s35, s38\ns_sub_u32 s35, s35, s3")
    E("s_add_u32 s39, s39, 3")
    def ld_w(srd, dst):
        for i in range(8):
            so = "0" if i < 2 else f"s{50 + i//2}"
            E(f"buffer_load_dwordx4 v[{dst+4*i}:{dst+4*i+3}], v{VW}, s[{srd}:{srd+3}], {so} offen offset:{(i&1)*2048} {pw}")
    def tok_wait(lbl, fin, fla, t):
        E(f"""
s_branch {lbl}_c
{lbl}:
s_sleep {tsl}
{lbl}_c:
ds_read_b64 v[{t}:{t+1}], v{fla}
s_waitcnt lgkmcnt(0)
v_cmp_gt_i32 vcc, s39, v{t}
v_cmp_gt_u32 s[58:59], {fin}, v{t+1}
s_and_b64 vcc, vcc, s[58:59]
s_cbranch_scc1 {lbl}
""")
    def tok_pass(fla, one):
        E(f"s_mov_b64 exec, 1\nds_add_u32 v{fla}, v{one}\ns_mov_b64 exec, -1")
    calc_cl()
    E(f"""
s_cmp_lt_u32 s31, 56
s_cselect_b32 s42, {64*2048}, 0
s_lshl2_add_u32 s59, s29, s3
s_lshl_b32 s59, s59, 7
s_lshl_b32 s58, s31, 17
s_add_u32 s58, s58, s59
s_add_u32 s40, s20, s58
s_addc_u32 s41, s21, 0
s_mov_b32 s43, 0x20000
s_lshl4_add_u32 s58, s28, s30
s_lshl_b32 s58, s58, 17
s_add_u32 s58, s58, s59
s_add_u32 s44, s12, s58
s_addc_u32 s45, s13, 0
s_mov_b32 s46, {64*2048}
s_mov_b32 s47, 0x20000
s_movk_i32 s51, 0x1000
s_movk_i32 s52, 0x2000
s_movk_i32 s53, 0x3000
v_lshrrev_b32 v{T0}, 3, v0
v_and_b32 v{T1}, 7, v0
v_lshlrev_b32 v{T1}, 4, v{T1}
v_lshl_add_u32 v{VW}, v{T0}, 14, v{T1}
v_lshlrev_b32 v{OSA}, 5, v{T0}
v_add_u32 v{OSA}, {OS}, v{OSA}
v_lshlrev_b32 v{HSA}, 4, v{T0}
v_add_u32 v{HSA}, {HS}, v{HSA}
s_lshl_b32 s58, s3, 15
v_and_b32 v{T0}, 15, v0
v_and_b32 v{T1}, 7, v0
v_lshlrev_b32 v{T1}, 1, v{T1}
v_xor_b32 v{T1}, v{T1}, v1
v_lshlrev_b32 v{T1}, 4, v{T1}
v_lshl_add_u32 v{KA}, v{T0}, 8, v{T1}
v_add_u32 v{KA}, s58, v{KA}
v_xor_b32 v{KA+1}, 64, v{KA}
v_xor_b32 v{KA+2}, 0x80, v{KA}
v_xor_b32 v{KA+3}, 0xc0, v{KA}
s_add_u32 s58, s58, 0x4000
v_lshrrev_b32 v{T0}, 2, v0
v_and_b32 v{T1}, 7, v{T0}
v_lshlrev_b32 v{T1}, 5, v{T1}
v_lshl_add_u32 v{VA}, v{T0}, 8, v{T1}
v_and_b32 v{T1}, 3, v0
v_lshl_add_u32 v{VA}, v{T1}, 3, v{VA}
v_add_u32 v{VA}, s58, v{VA}
""")
    for db in range(1, 8): E(f"v_xor_b32 v{VA+db}, {db*32}, v{VA}")
    E(f"v_mov_b32 v{VM}, 0xff7f0000\nv_mov_b32 v{VL}, 0")
    for i in range(32): E(f"v_mov_b32 v{O+i}, 0")
    E("s_waitcnt lgkmcnt(0)")
    make_sel(SELS, F)
    E(f"""
v_lshlrev_b32 v{LL}, 4, v0
v_add_u32 v{LL}, {PART}, v{LL}
v_lshlrev_b32 v{MLW}, 3, v0
v_add_u32 v{MLW}, {MLL}, v{MLW}
s_lshl_b32 s58, s28, 10
s_add_u32 s58, s58, s32
s_mul_i32 s58, s58, 384
s_add_u32 s58, s58, {AP}
v_and_b32 v{T0}, 7, v0
v_bfe_u32 v{T1}, v0, 3, 1
v_mul_u32_u24 v{APA}, {2*64*384}, v{T0}
v_add_u32 v{APA}, s58, v{APA}
v_mul_u32_u24 v{APM}, {64*384}, v{T1}
v_add_u32 v{APM}, v{APM}, v{APA}
v_lshl_add_u32 v{APA}, v{T1}, 6, v{APA}
v_lshl_add_u32 v{APA}, v1, 4, v{APA}
v_add_u32 v{APB}, {64*384}, v{APA}
s_lshl_b32 s58, s28, 13
s_add_u32 s58, s58, {NF}
v_lshl_add_u32 v{NFA}, v0, 7, s58
s_mul_i32 s58, s28, {8*cstr}
s_add_u32 s58, s58, {CNT + 4*cstr}
s_add_u32 s14, s26, s58
s_addc_u32 s15, s27, 0
v_mov_b32 v{MSK}, 0xffffff00
s_lshl3_add_u32 s58, s28, s3
s_mul_i32 s58, s58, {cstr}
s_add_u32 s58, s58, {CNT}
s_add_u32 s48, s26, s58
s_addc_u32 s49, s27, 0
s_lshl2_add_u32 s58, s29, s3
s_lshl_b32 s58, s58, 15
s_add_u32 s58, s58, {FP}
v_bfe_u32 v{T0}, v0, 2, 1
v_lshl_add_u32 v{FAS}, v{T0}, 14, s58
v_and_b32 v{T0}, 3, v0
v_lshl_add_u32 v{FAS}, v{T0}, 5, v{FAS}
v_bfe_u32 v{T0}, v0, 4, 1
v_lshl_add_u32 v{FAS}, v{T0}, 4, v{FAS}
s_add_u32 s59, s31, 64
s_lshl_b32 s59, s59, 7
v_add_u32 v{FAD}, s59, v{FAS}
s_lshl4_add_u32 s58, s28, s30
s_lshl_b32 s58, s58, 7
v_add_u32 v{FAS}, s58, v{FAS}
s_add_u32 s36, s36, 0x01010101
s_lshr_b32 s16, s36, 8
s_lshr_b32 s17, s36, 16
s_lshr_b32 s18, s36, 24
s_mov_b32 s33, 0
s_mov_b32 s60, {f2u(128 ** -0.5):#x}
s_mov_b32 s61, {f2u(LOG2E):#x}
s_mov_b32 s10, 0
s_mov_b32 s20, 0xff00ff00
s_mov_b32 s21, 0xff00ff00
""")
    E(f"""
v_and_b32 v{T0}, 7, v0
v_lshlrev_b32 v{T0}, 8, v{T0}
v_lshl_add_u32 v{T0}, v1, 4, v{T0}
v_add_u32 v{T0}, {QL}, v{T0}
s_mov_b32 s13, 0
s_mov_b32 s62, 0
s_branch L_loop
L_pro:
s_waitcnt vmcnt({X})
""")
    tok_pass(FLA, ONE)
    E(f"""
s_cmp_eq_u32 s13, 1
s_cbranch_scc1 L_loop
L_qw:
s_sleep 1
ds_read_b32 v{T1}, v{FLA} offset:8
s_waitcnt lgkmcnt(0)
v_cmp_ne_u32 vcc, 4, v{T1}
s_cbranch_vccnz L_qw
s_branch L_qr
L_t1:
s_sleep 1
ds_read_b96 v[{S_+4}:{S_+6}], v{FLA}
s_waitcnt lgkmcnt(0)
v_cmp_eq_u32 vcc, 4, v{S_+6}
s_cbranch_vccnz L_qr
v_cmp_gt_i32 vcc, s39, v{S_+4}
s_cbranch_vccnz L_t1
s_branch L_go
L_qr:
""")
    stamp(3)
    for j in range(4): E(f"ds_read_b128 v[{QF+4*j}:{QF+4*j+3}], v{T0} offset:{64*j}")
    E("s_mov_b32 s10, 1\ns_mov_b32 s12, s13\ns_branch L_kjob\nL_e0:\n.p2align 12")

    def k_reads(regs, slot):
        for s in range(2):
            for j in range(4):
                r = regs + (s*4+j)*4
                E(f"ds_read_b128 v[{r}:{r+3}], v{KA+j} offset:{slot*8192 + s*4096}")
        E(f"ds_read_b32 v{ORD}, v{FLA}")
        for s in range(2):
            for j in range(4):
                r = regs + (s*4+j)*4
                E(f"s_waitcnt lgkmcnt({8-(s*4+j)})")
                c = "0" if j == 0 else f"v[{S_+4*s}:{S_+4*s+3}]"
                E(f"v_mfma_f32_16x16x32_bf16 v[{S_+4*s}:{S_+4*s+3}], v[{r}:{r+3}], v[{QF+4*j}:{QF+4*j+3}], {c}")
    def round_scores(dst):
        pack(P, S_, 4); unpack(F, P, 4)
        for i in range(8): E(f"v_mul_f32 v{F+i}, s60, v{F+i}")
        pack(dst, F, 4); unpack(F, dst, 4)
    def exps(m):
        for i in range(8): E(f"v_sub_f32 v{F+i}, v{F+i}, v{m}")
        for i in range(8): E(f"v_mul_f32 v{F+i}, s61, v{F+i}")
        for i in range(8): E(f"v_exp_f32 v{F+i}, v{F+i}")
    def sum8():
        E(f"""
v_add_f32 v{F}, v{F}, v{F+1}
v_add_f32 v{F+2}, v{F+2}, v{F+3}
v_add_f32 v{F+4}, v{F+4}, v{F+5}
v_add_f32 v{F+6}, v{F+6}, v{F+7}
v_add_f32 v{F}, v{F}, v{F+2}
v_add_f32 v{F+4}, v{F+4}, v{F+6}
v_add_f32 v{F}, v{F}, v{F+4}
""")
    def pv(regs, slot, p, dummy, toggle, after0=None, pre=None):
        for db in range(8):
            for s in range(2):
                r = regs + db*4 + s*2
                E(f"ds_read_b64_tr_b16 v[{r}:{r+1}], v{VA+db} offset:{slot*8192 + s*4096}")
        E(f"ds_read_b32 v{dummy}, v{FLA}")
        if pre: pre()
        for db in range(8):
            r = regs + db*4
            E(f"s_waitcnt lgkmcnt({min(14, 15-2*db)})")
            E(f"v_mfma_f32_16x16x32_bf16 v[{O+4*db}:{O+4*db+3}], v[{r}:{r+3}], v[{p}:{p+3}], v[{O+4*db}:{O+4*db+3}]")
            if toggle: E(f"v_xor_b32 v{VA+db}, 0x4000, v{VA+db}")
            if db == 0 and after0: E(after0)
    R = KF
    def rd_part():
        E(f"ds_read_b32 v{S_+4}, v{FLA} offset:12\nds_read_b64 v[{F}:{F+1}], v{MLW}")
        for d in range(4): E(f"ds_read_b128 v[{R+4*d}:{R+4*d+3}], v{LL} offset:{1024*d}")
    ARR = f"""
v_readfirstlane_b32 s63, v{ORD}
s_cmp_lg_u32 s63, 3
s_cbranch_scc1 LBL
s_mov_b32 s19, 1
s_atomic_add s19, s[14:15], 0 glc
"""
    E(f"""
L_loop:
s_cmp_ge_u32 s13, {S}
s_cbranch_scc1 L_dynp
s_cmp_lt_u32 s13, {S//2}
s_cselect_b64 s[6:7], s[54:55], s[56:57]
s_cselect_b32 s58, 0, {S//2}
s_sub_u32 s58, s13, s58
s_lshl_b32 s58, s58, 9
s_add_u32 s58, s58, s35
s_add_u32 s59, s58, 256
s_and_b32 s58, s58, 2047
s_lshl_b32 s58, s58, 13
s_and_b32 s59, s59, 2047
s_lshl_b32 s59, s59, 13
s_add_u32 s8, s6, s59
s_addc_u32 s9, s7, 0
s_add_u32 s6, s6, s58
s_addc_u32 s7, s7, 0
s_lshl1_add_u32 s58, s10, s13
s_cmp_eq_u32 s58, 1
s_cbranch_scc1 L_t1
s_branch L_tw_c
L_dynp:
s_lshl2_add_u32 s63, s62, s38
s_and_b32 s63, s63, 2047
s_lshl_b32 s63, s63, 13
s_add_u32 s6, s54, s63
s_addc_u32 s7, s55, 0
s_add_u32 s8, s56, s63
s_addc_u32 s9, s57, 0
""")
    tok_wait("L_tw", 1, FLA, S_+4)
    E("L_go:")
    if stamps: E("s_memrealtime s[90:91]")
    for j in range(16):
        if j % 4 == 0: E(f"s_mov_b32 m0, s34" if j == 0 else f"s_add_u32 m0, s34, {hex(1024*j)}")
        v = [[LDA, LDB], [LDA2, LDB2]][(j >> 2) & 1][j & 1]
        base = 6 if j < 8 else 8
        E(f"global_load_lds_dwordx4 v{v}, s[{base}:{base+1}] offset:{(j&3)*1024} {pk}")
    E(f"""
s_xor_b32 s34, s34, 0x4000
s_add_u32 s39, s39, 4
s_add_u32 s13, s13, 1
s_cmp_ge_u32 s33, {S}
s_cbranch_scc1 L_mix
s_cmp_eq_u32 s10, 0
s_cbranch_scc1 L_pro
s_cmp_ge_u32 s33, {S//2}
s_cbranch_scc1 L_vjob
s_waitcnt vmcnt(8)
L_kjob:
""")
    k_reads(KF, 0)
    E(f"s_cmp_lt_u32 s33, s12\ns_cbranch_scc1 L_nopass\ns_waitcnt vmcnt({X})"); tok_pass(FLA, ONE); E("L_nopass:")
    for i in range(16): E(f"v_mov_b32 v{SS+i}, v{SS+8+i}")
    def accmax():
        E(f"v_max3_f32 v{VM}, v{VM}, v{F}, v{F+1}\nv_max3_f32 v{T1}, v{F+2}, v{F+3}, v{F+4}\nv_max3_f32 v{VM}, v{VM}, v{F+5}, v{F+6}\nv_max3_f32 v{VM}, v{VM}, v{F+7}, v{T1}")
    round_scores(SS+16); accmax()
    E("s_waitcnt vmcnt(0)")
    k_reads(VF, 1)
    for i in range(4): E(f"v_xor_b32 v{KA+i}, 0x4000, v{KA+i}")
    round_scores(SS+20); accmax()
    E(f"""
s_add_u32 s33, s33, 1
s_cmp_lt_u32 s33, s13
s_cbranch_scc1 L_kjob
s_cmp_lt_u32 s33, {S//2}
s_cbranch_scc1 L_loop
""")
    cross_rows(VM, T1, "v_max_f32")
    for i in range(4): E(f"v_xor_b32 v{KA+i}, 0x4000, v{KA+i}")
    E("s_branch L_loop")
    E("L_vjob:")
    for h, p in ((0, P), (1, S_)):
        unpack(F, SS + 4*h, 4); exps(VM); pack(p, F, 4); sum8()
        E(f"v_add_f32 v{VL}, v{VL}, v{F}")
    for i in range(16): E(f"v_mov_b32 v{SS+i}, v{SS+8+i}")
    E(f"""
s_cmp_lg_u32 s33, {S-1}
s_cbranch_scc1 L_notk
s_waitcnt vmcnt({tk})
s_mov_b32 s62, 1
s_atomic_add s62, s[48:49], 0 glc
L_notk:
s_waitcnt vmcnt(8)
""")
    pv(KF, 0, P, ORD, False)
    E(f"s_waitcnt vmcnt({X})"); tok_pass(FLA, ONE)
    E("s_waitcnt vmcnt(0)")
    pv(VF, 1, S_, ORD, True)
    E(f"""
s_add_u32 s33, s33, 1
s_waitcnt lgkmcnt(0)
s_cmp_lt_u32 s62, 512
s_cbranch_scc1 L_loop
s_mov_b64 exec, 1
ds_add_rtn_u32 v{ORD}, v{FLA}, v{ONE} offset:4
s_mov_b64 exec, -1
""")
    if stamps: E("s_memrealtime s[80:81]\ns_memrealtime s[94:95]\ns_waitcnt lgkmcnt(0)\ns_mov_b32 s72, s80")
    rd_part()
    E("s_waitcnt lgkmcnt(0)")
    E(ARR.replace("LBL", "L_stail"))
    E("s_branch L_stail")
    E(f"""
L_mix:
s_waitcnt vmcnt({tk})
s_add_u32 s62, s62, 64
s_cmp_ge_u32 s62, {nret + 64}
s_cbranch_scc1 L_static
s_mov_b32 s62, 1
s_atomic_add s62, s[48:49], 0 glc
L_static:
s_waitcnt vmcnt(8)
""")
    k_reads(KF, 0)
    E(f"s_waitcnt vmcnt({X})"); tok_pass(FLA, ONE)
    for i in range(4): E(f"v_xor_b32 v{KA+i}, 0x4000, v{KA+i}")
    round_scores(P)
    E(f"""
v_max3_f32 v{T0}, v{F}, v{F+1}, v{F+2}
v_max3_f32 v{T1}, v{F+3}, v{F+4}, v{F+5}
v_max3_f32 v{T0}, v{T0}, v{F+6}, v{F+7}
v_max_f32 v{T0}, v{T0}, v{T1}
""")
    cross_rows(T0, T1, "v_max_f32")
    E(f"""
v_max_f32 v{T1}, v{T0}, v{VM}
v_sub_f32 v{T0}, v{VM}, v{T1}
v_mul_f32 v{T0}, s61, v{T0}
v_exp_f32 v{T0}, v{T0}
v_mov_b32 v{VM}, v{T1}
""")
    exps(T1)
    pack(P, F, 4); sum8()
    E(f"v_fma_f32 v{VL}, v{VL}, v{T0}, v{F}")
    if stamps: E("s_memrealtime s[94:95]")
    E("s_waitcnt lgkmcnt(0)\ns_cmp_lt_u32 s62, 512\ns_cbranch_scc1 L_pv")
    if stamps: E("s_memrealtime s[80:81]\ns_waitcnt lgkmcnt(0)\ns_mov_b32 s72, s80")
    E(f"s_mov_b64 exec, 1\nds_add_rtn_u32 v{ORD}, v{FLA}, v{ONE} offset:4\ns_mov_b64 exec, -1")
    rd_part()
    E("L_pv:\ns_waitcnt vmcnt(0)")
    def resc():
        for i in range(0, 32, 2): E(f"v_pk_mul_f32 v[{O+i}:{O+i+1}], v[{O+i}:{O+i+1}], v[{T0}:{T0+1}] op_sel_hi:[1,0]")
    pv(VF, 1, P, S_+5, True, after0="s_cmp_lt_u32 s62, 512\ns_cbranch_scc1 L_noat" + ARR.replace("LBL", "L_noat") + "L_noat:", pre=resc)
    E("s_add_u32 s33, s33, 1\ns_cmp_lt_u32 s62, 512\ns_cbranch_scc1 L_loop\ns_branch L_stail")

    def embed(r, n=4):
        for i in range(n): E(f"v_and_or_b32 v{r+i}, v{r+i}, s37, v{TG+i%4}")
    def strip(r, n=4):
        for i in range(n): E(f"v_and_b32 v{r+i}, s37, v{r+i}")
    npoll = [0]
    def poll(loads, grs, t, slp):
        n = npoll[0]; npoll[0] += 1
        MK = 40
        E("s_mov_b32 s62, 0")
        def tagw(r): E(f"v_perm_b32 v{t+1}, v{r+1}, v{r}, s38\nv_perm_b32 v{t+2}, v{r+3}, v{r+2}, s39\nv_or_b32 v{t+1}, v{t+1}, v{t+2}")
        if len(loads) == 1:
            E(f"L_poll{n}:\n{loads[0]}\ns_waitcnt vmcnt(0)")
            tagw(grs[0])
            E(f"v_cmp_ne_u32 vcc, s36, v{t+1}\ns_cbranch_vccz L_pok{n}\ns_mov_b64 exec, vcc")
        else:
            for l in loads: E(l)
            E(f"s_branch L_chk{n}\nL_poll{n}:")
            for k, l in enumerate(loads):
                E(f"s_mov_b64 exec, s[{MK+2*k}:{MK+2*k+1}] ;nopad\ns_cbranch_execz L_pl{n}_{k} ;nopad\n{l} ;nopad\nL_pl{n}_{k}:")
            E(f"s_mov_b64 exec, -1 ;nopad\nL_chk{n}:\ns_waitcnt vmcnt(0)")
            for k, r in enumerate(grs):
                tagw(r)
                E(f"v_cmp_ne_u32 s[{MK+2*k}:{MK+2*k+1}], s36, v{t+1}")
            E(f"s_or_b64 vcc, s[{MK}:{MK+1}], s[{MK+2}:{MK+3}]")
            for k in range(2, len(loads)): E(f"s_or_b64 vcc, vcc, s[{MK+2*k}:{MK+2*k+1}]")
            E(f"s_cbranch_scc0 L_pok{n}")
        E("s_add_u32 s62, s62, 1\ns_cmp_ge_u32 s62, 0x200000")
        if slp: E(f"s_sleep {slp}")
        E(f"s_cbranch_scc0 L_poll{n}\nL_pok{n}:")
        if len(loads) == 1: E("s_mov_b64 exec, -1")

    E("L_e1:\n.p2align 12\nL_aux:")
    E("s_mov_b32 s37, 0xffffff00\ns_mov_b32 s38, 0x0c0c0400\ns_mov_b32 s39, 0x04000c0c\ns_mov_b32 s62, 0")
    make_sel(SELA, 4)
    calc_cl()
    E(f"""
s_lshl_b32 s58, s3, 10
s_add_u32 s58, s58, {SCR}
v_lshl_add_u32 v2, v0, 4, s58
v_bfe_u32 v3, v0, 1, 3
v_and_b32 v1, 1, v0
v_lshl_add_u32 v3, v1, 4, v3
v_lshlrev_b32 v3, 4, v3
v_add_u32 v3, {SCR}, v3
""")
    GV = 200
    Q_ = [("g", i) for i in range(8)] + [("u", i) for i in range(8)]
    def gu_issue():
        m, i = Q_.pop(0)
        srd, dst = (40, WG_) if m == "g" else (44, WU_)
        if i == 0: E("s_mov_b32 s48, 0")
        E(f"buffer_load_dwordx4 v[{dst+4*i}:{dst+4*i+3}], v{GV}, s[{srd}:{srd+3}], s48 offen {pw}")
        if i < 7: E("s_add_u32 s48, s48, 7168")
    if True:
        E(f"""
s_lshl2_add_u32 s58, s29, s3
s_mul_i32 s59, s58, {64*7168}
s_lshl_b32 s58, s31, 7
s_add_u32 s59, s59, s58
s_add_u32 s40, s16, s59
s_addc_u32 s41, s17, 0
s_add_u32 s44, s18, s59
s_addc_u32 s45, s19, 0
s_cmp_lt_u32 s31, 56
s_cselect_b32 s42, {64*7168}, 0
s_mov_b32 s46, s42
s_mov_b32 s43, 0x20000
s_mov_b32 s47, 0x20000
v_lshrrev_b32 v1, 3, v0
v_and_b32 v4, 7, v0
v_lshlrev_b32 v5, 4, v4
v_mul_u32_u24 v{GV}, {8*7168}, v1
v_add_u32 v{GV}, v{GV}, v5
""")
    E("s_waitcnt vmcnt(9)")
    unpack(G, XF, 8)
    E(f"v_add_f32 v1, v{G}, v{G+1}\nv_add_f32 v5, v{G+2}, v{G+3}")
    for i in range(4, 16, 2): E(f"v_add_f32 v1, v1, v{G+i}\nv_add_f32 v5, v5, v{G+i+1}")
    E("v_add_f32 v1, v1, v5")
    wave_allreduce(1, 5, "v_add_f32")
    E(f"v_mul_f32 v1, {f2u(1/1024):#x}, v1")
    for i in range(16): E(f"v_sub_f32 v{G+i}, v{G+i}, v1")
    E(f"v_mul_f32 v6, v{G}, v{G}\nv_mul_f32 v5, v{G+1}, v{G+1}")
    for i in range(2, 16, 2): E(f"v_fmac_f32 v6, v{G+i}, v{G+i}\nv_fmac_f32 v5, v{G+i+1}, v{G+i+1}")
    E("v_add_f32 v6, v6, v5")
    wave_allreduce(6, 5, "v_add_f32")
    E(f"v_mul_f32 v6, {f2u(1/1024):#x}, v6")
    rnd_bf16(1); rnd_bf16(6)
    E(f"v_add_f32 v6, {f2u(1e-5):#x}, v6")
    rnd_bf16(6)
    E("v_sqrt_f32 v6, v6")
    rnd_bf16(6)
    E("v_rcp_f32 v6, v6\ns_waitcnt vmcnt(8)")
    unpack(G, XR, 4)
    for i in range(8): E(f"v_sub_f32 v{G+i}, v{G+i}, v1")
    pack(XR, G, 4); unpack(G, XR, 4)
    for i in range(8): E(f"v_mul_f32 v{G+i}, v{G+i}, v6")
    pack(XR, G, 4)
    build_A(AX, XR, SELA)
    stamp(1)
    E("s_cmp_lt_u32 s31, 56\ns_cbranch_scc1 L_gd1\ns_waitcnt vmcnt(0)\nL_gd1:")
    nis = 0
    for i in range(8):
        E(f"s_waitcnt vmcnt({7 - i + nis})")
        if 7 - i + nis < gw:
            gu_issue(); nis += 1
        mm1(G, AX, WF, i)
    E(f"""
s_waitcnt lgkmcnt(0)
s_add_u32 s36, s36, 0x01010101
s_and_b32 s58, s36, 0xff
v_mov_b32 v{TG}, s58
s_bfe_u32 s58, s36, 0x80008
v_mov_b32 v{TG+1}, s58
s_bfe_u32 s58, s36, 0x80010
v_mov_b32 v{TG+2}, s58
s_lshr_b32 s58, s36, 24
v_mov_b32 v{TG+3}, s58
v_mov_b32 v5, {FLG}
v_mov_b32 v6, 1
ds_write_b128 v2, v[{G}:{G+3}]
s_mov_b64 exec, 1
ds_add_u32 v5, v6 offset:20
s_mov_b64 exec, -1
""")
    stamp(2)
    E(f"""
s_cmp_lg_u32 s3, 0
s_cbranch_scc1 L_qpub
L_xw:
ds_read_b32 v6, v5 offset:20
s_waitcnt lgkmcnt(0)
v_cmp_ne_u32 vcc, 5, v6
s_cbranch_vccnz L_xw
""")
    for k in range(8):
        E(f"ds_read_b128 v[{G+4*k}:{G+4*k+3}], v3 offset:{(k // 2) * 1024 + (k % 2) * 640}")
    E(f"""
s_lshl4_add_u32 s58, s28, s30
s_lshl2_add_u32 s58, s58, s29
s_lshl_b32 s58, s58, 8
s_add_u32 s58, s58, {QP}
v_lshl_add_u32 v1, v0, 4, s58
s_waitcnt lgkmcnt(0)
""")
    for st in (16, 8, 4):
        for i in range(st): E(f"v_add_f32 v{G+i}, v{G+i}, v{G+st+i}")
    embed(G)
    E(f"s_mov_b64 exec, 0xffff\nglobal_store_dwordx4 v1, v[{G}:{G+3}], s[26:27] sc1\ns_mov_b64 exec, -1\nL_qpub:")
    stamp(3)
    E(f"""
s_lshl2_add_u32 s58, s28, s3
s_lshl_b32 s58, s58, 12
s_add_u32 s58, s58, {QP}
v_lshrrev_b32 v1, 4, v0
v_and_b32 v4, 15, v0
v_lshl_add_u32 v4, v4, 4, s58
v_lshl_add_u32 v4, v1, 10, v4
v_mov_b32 v19, {FLG}
v_mov_b32 v20, 1
""")
    PASS = "s_mov_b64 exec, 1\nds_add_u32 v19, v20\ns_mov_b64 exec, -1"
    while Q_:
        E(f"s_waitcnt vmcnt({gw - 1})"); gu_issue()
    E(f"s_waitcnt vmcnt({gy})\n{PASS}\ns_waitcnt vmcnt(0)\ns_cmp_lt_u32 s31, 56\ns_cbranch_scc1 L_qgo\ns_sleep {qsleep}\nL_qgo:")
    poll([f"global_load_dwordx4 v[{G+4*k}:{G+4*k+3}], v4, s[26:27] offset:{256*k} sc1" for k in range(4)],
         [G+4*k for k in range(4)], 5, 4)
    strip(G, 16)
    for st in (8, 4):
        for i in range(st): E(f"v_add_f32 v{G+i}, v{G+i}, v{G+st+i}")
    pack(G, G, 2)
    E(f"""
s_lshl_b32 s58, s3, 9
s_add_u32 s58, s58, {QL}
v_lshl_add_u32 v1, v0, 3, s58
ds_write_b64 v1, v[{G}:{G+1}]
v_mov_b32 v5, {FLG}
v_mov_b32 v6, 1
s_mov_b64 exec, 1
ds_add_u32 v5, v6 offset:8
s_mov_b64 exec, -1
""")
    stamp(4)
    E(f"""
s_cmp_ge_u32 s31, 56
s_cbranch_scc1 L_noffn
v_and_b32 v4, 7, v0
""")
    E(f"""
s_lshl2_add_u32 s58, s31, s29
s_lshl_b32 s58, s58, 9
s_add_u32 s58, s58, {GP}
v_lshl_add_u32 v5, v4, 5, s58
v_bfe_u32 v4, v0, 4, 1
v_lshl_add_u32 v5, v4, 4, v5
v_lshrrev_b32 v4, 5, v0
v_lshl_add_u32 v5, v4, 8, v5
s_waitcnt vmcnt(0)
""")
    mm(G, AX, WG_); mm(G+4, AX, WU_)
    for i in range(4): E(f"v_permlane32_swap_b32 v{G+i}, v{G+4+i}")
    for i in range(4): E(f"v_add_f32_dpp v{G+i}, v{G+4+i}, v{G+i} row_ror:8 {DPP}")
    E(f"""
ds_write_b128 v2, v[{G}:{G+3}] offset:4096
s_mov_b64 exec, 1
ds_add_rtn_u32 v6, v19, v20 offset:16
s_mov_b64 exec, -1
v_lshlrev_b32 v7, 4, v0
v_add_u32 v7, {SCR + 4096}, v7
s_waitcnt lgkmcnt(0)
v_readfirstlane_b32 s58, v6
s_cmp_lg_u32 s58, 3
s_cbranch_scc1 L_gpd
""")
    for k in range(4): E(f"ds_read_b128 v[{G+4*k}:{G+4*k+3}], v7 offset:{1024*k}")
    E("s_waitcnt lgkmcnt(0)")
    for st in (8, 4):
        for i in range(st): E(f"v_add_f32 v{G+i}, v{G+i}, v{G+st+i}")
    embed(G)
    E(f"""
s_mov_b32 exec_lo, 0x00ff00ff
s_mov_b32 exec_hi, 0x00ff00ff
global_store_dwordx4 v5, v[{G}:{G+3}], s[26:27] sc1
s_mov_b64 exec, -1
L_gpd:
s_cmp_lg_u32 s3, 0
s_cbranch_scc1 L_noffn
s_lshl_b32 s58, s31, 11
s_add_u32 s58, s58, {GP}
v_and_b32 v4, 15, v0
v_lshl_add_u32 v5, v4, 4, s58
v_lshrrev_b32 v1, 4, v0
v_lshl_add_u32 v5, v1, 9, v5
L_gt:
s_sleep 20
ds_read_b64 v[22:23], v19
s_waitcnt lgkmcnt(0)
v_cmp_gt_u32 vcc, {gtok}, v22
v_cmp_eq_u32 s[58:59], 0, v23
s_and_b64 vcc, vcc, s[58:59]
s_cbranch_scc1 L_gt
""")
    poll([f"global_load_dwordx4 v[{G+4*u}:{G+4*u+3}], v5, s[26:27] offset:{256*u} sc1" for u in range(2)],
         [G, G+4], G+32, 10)
    strip(G, 8)
    fold4(G, G+4)
    rnd_bf16(G); rnd_bf16(G+4)
    c1 = -2 * 0.7978845608028654 * LOG2E
    E(f"""
v_mul_f32 v{G+1}, v{G}, v{G}
v_mov_b32 v{G+2}, {f2u(c1):#x}
v_mul_f32 v{G+1}, {f2u(c1*0.044715):#x}, v{G+1}
v_add_f32 v{G+1}, v{G+1}, v{G+2}
v_mul_f32 v{G+1}, v{G+1}, v{G}
v_exp_f32 v{G+1}, v{G+1}
v_add_f32 v{G+1}, 1.0, v{G+1}
v_rcp_f32 v{G+1}, v{G+1}
v_mul_f32 v{G}, v{G}, v{G+1}
""")
    rnd_bf16(G)
    E(f"""
v_mul_f32 v{G}, v{G}, v{G+4}
v_cvt_pk_bf16_f32 v{G}, v{G}, v{G}
v_lshl_add_u32 v4, v4, 2, v1
v_lshlrev_b32 v4, 1, v4
v_add_u32 v4, {HS}, v4
ds_write_b16 v4, v{G}
v_mov_b32 v4, {FLG}
v_mov_b32 v5, 1
ds_write_b32 v4, v5 offset:24
s_branch L_noffn
""")
    E("L_e2:\n.p2align 12\nL_noffn:")
    if warm: E("s_mov_b64 exec, 0\ns_branch L_ret3 ;;W3_0\nL_ret3:\ns_mov_b64 exec, -1")
    CA, CB, CM, OW, FS, FD, XO, OA, SA, PI, PM = 8, 9, 10, 11, 12, 13, 14, 15, 16, 17, 18
    E(f"""
s_lshl4_add_u32 s58, s28, s30
s_lshl2_add_u32 s58, s58, s3
s_mul_i32 s58, s58, {16*384}
s_add_u32 s58, s58, {AP + 3072}
v_lshrrev_b32 v1, 4, v0
v_and_b32 v4, 15, v0
v_mul_u32_u24 v5, 384, v1
v_add_u32 v5, s58, v5
v_lshl_add_u32 v{CA}, v4, 4, v5
v_and_b32 v6, 3, v0
v_mul_u32_u24 v6, 1536, v6
v_add_u32 v{CM}, v5, v6
s_lshl_b32 s58, s3, 3
s_add_u32 s58, s58, {OS + 1024}
v_mov_b32 v{CB}, s58
v_lshl_add_u32 v5, v4, 2, v1
s_lshl_b32 s58, s3, 8
s_add_u32 s58, s58, {OS}
v_lshl_add_u32 v{OW}, v5, 2, s58
s_and_b32 s58, s2, 7
s_lshl_b32 s58, s58, 5
s_lshr_b32 s59, s2, 3
s_add_u32 s63, s58, s59
s_lshr_b32 s58, s63, 3
s_lshl_b32 s58, s58, 14
s_and_b32 s59, s63, 7
s_lshl4_add_u32 s58, s59, s58
s_add_u32 s58, s58, {FP}
v_lshl_add_u32 v{FS}, v0, 7, s58
s_add_u32 s58, s58, {64*128}
v_min_u32 v5, 55, v0
v_lshl_add_u32 v{FD}, v5, 7, s58
s_lshl_b32 s63, s63, 3
v_lshl_add_u32 v{OA}, v1, 1, s63
global_load_ushort v{XO}, v{OA}, s[4:5]
s_lshl_b32 s58, s2, 7
s_add_u32 s58, s58, {NF}
s_add_u32 s34, s26, s58
s_addc_u32 s35, s27, 0
s_mov_b32 s61, {f2u(LOG2E):#x}
v_lshlrev_b32 v{SA}, 2, v0
v_add_u32 v{SA}, {SCR}, v{SA}
""")
    stamp(5)
    E(f"""
v_mov_b32 v5, {FLG}
L_aw:
s_sleep 30
ds_read_b32 v6, v5 offset:4
s_waitcnt lgkmcnt(0)
v_cmp_eq_u32 vcc, 0, v6
s_cbranch_vccnz L_aw
""")
    E(f"""
L_aw2:
s_sleep 2
ds_read_b32 v6, v5 offset:4
s_waitcnt lgkmcnt(0)
v_cmp_gt_u32 vcc, {c1thr}, v6
s_cbranch_vccnz L_aw2
""")
    stamp(6)
    E(f"""
s_mov_b32 s62, 0
L_hint:
s_load_dword s58, s[34:35], 0 glc
s_waitcnt lgkmcnt(0)
s_cmp_eq_u32 s58, s36
s_cbranch_scc1 L_hinted
s_sleep {hintsleep}
s_add_u32 s62, s62, 1
s_cmp_ge_u32 s62, 0x100
s_cbranch_scc0 L_hint
L_hinted:
""")
    stamp(7)
    M_ = G + 16
    poll([f"global_load_dwordx4 v[{M_}:{M_+3}], v{CM}, s[26:27] offset:{256-3072} sc1"] +
         [f"global_load_dwordx4 v[{G+4*k}:{G+4*k+3}], v{CA}, s[26:27] offset:{1536*k-3072} sc1" for k in range(4)],
         [M_] + [G+4*k for k in range(4)], 5, hsleep)
    stamp(8)
    E(f"v_and_b32 v{M_}, s37, v{M_}\nv_and_b32 v{M_+1}, s37, v{M_+1}")
    strip(G, 1)
    E(f"v_max_f32_dpp v6, v{M_}, v{M_} quad_perm:[1,0,3,2] {DPP}")
    strip(G+1, 2)
    E(f"v_max_f32_dpp v6, v6, v6 quad_perm:[2,3,0,1] {DPP}\nv_mov_b32 v7, v6")
    strip(G+3, 2)
    E(f"v_permlane32_swap_b32 v7, v6\nv_max_f32 v6, v6, v7\nv_mov_b32 v7, v6")
    strip(G+5, 2)
    E(f"v_permlane16_swap_b32 v7, v6\nv_max_f32 v6, v6, v7")
    E(f"v_sub_f32 v5, v{M_}, v6\nv_mul_f32 v5, s61, v5\nv_exp_f32 v5, v5")
    strip(G+7, 9)
    E(f"v_mul_f32 v7, v5, v{M_+1}")
    extra = [f"v_add_f32_dpp v7, v7, v7 quad_perm:[1,0,3,2] {DPP}", f"v_add_f32_dpp v7, v7, v7 quad_perm:[2,3,0,1] {DPP}", "v_mov_b32 v21, v7",
             "v_permlane32_swap_b32 v21, v7\nv_add_f32 v7, v7, v21\nv_mov_b32 v21, v7"]
    for k in range(4):
        op = "v_mul_f32_dpp" if k == 0 else "v_fmac_f32_dpp"
        for i in range(4): E(f"{op} v{G+i}, v5, v{G+4*k+i} quad_perm:[{k},{k},{k},{k}] {DPP}")
        E(extra[k])
    E(f"""
v_permlane32_swap_b32 v{G}, v{G+2}
v_permlane32_swap_b32 v{G+1}, v{G+3}
v_add_f32 v{G}, v{G}, v{G+2}
v_add_f32 v{G+1}, v{G+1}, v{G+3}
v_permlane16_swap_b32 v21, v7
v_add_f32 v7, v7, v21
v_permlane16_swap_b32 v{G}, v{G+1}
ds_write_b64 v{CB}, v[6:7]
v_add_f32 v{G}, v{G}, v{G+1}
ds_write_b32 v{OW}, v{G}
s_waitcnt lgkmcnt(0)
s_barrier
s_cmp_eq_u32 s3, 0
s_cbranch_scc1 L_sred
s_cmp_lg_u32 s3, 1
s_cbranch_scc1 L_end
""")
    poll([f"global_load_dwordx4 v[{G+4}:{G+7}], v{FD}, s[26:27] sc1"], [G+4], 5, sleep)
    strip(G+4, 4)
    E("v_cmp_gt_u32 vcc, 56, v0")
    for i in range(4): E(f"v_cndmask_b32 v{G+4+i}, 0, v{G+4+i}, vcc")
    fold4(G+4)
    row_allreduce([G+4], "v_add_f32")
    rnd_bf16(G+4)
    E(f"""
v_mul_f32 v21, {f2u(-LOG2E):#x}, v{G+4}
v_exp_f32 v21, v21
v_add_f32 v21, 1.0, v21
v_rcp_f32 v21, v21
v_mul_f32 v21, v21, v{G+4}
""")
    rnd_bf16(21)
    E(f"ds_write_b32 v{SA}, v21\ns_waitcnt lgkmcnt(0)\ns_barrier\ns_endpgm\nL_sred:")
    stamp(9)
    E(f"v_lshlrev_b32 v{XO}, 16, v{XO}")
    if ssleep: E(f"s_sleep {ssleep}")
    poll([f"global_load_dwordx4 v[{G}:{G+3}], v{FS}, s[26:27] sc1"], [G], 5, sleep)
    stamp(10)
    E(f"s_barrier\nds_read_b32 v21, v{SA}")
    stamp(11)
    strip(G, 4)
    fold4(G)
    row_allreduce([G], "v_add_f32")
    rnd_bf16(G)
    E(f"s_waitcnt lgkmcnt(0)\nv_mul_f32 v5, v21, v{G}")
    rnd_bf16(5)
    E(f"""
v_add_f32 v5, v5, v{XO}
v_cvt_pk_bf16_f32 v5, v5, v5
s_mov_b32 exec_lo, 0x00010001
s_mov_b32 exec_hi, 0x00010001
global_store_short v{OA}, v5, s[22:23]
s_cmp_lg_u32 s2, 0
s_cbranch_scc1 L_fin
s_mov_b64 exec, 1
v_mov_b32 v5, 0
v_mov_b32 v6, s36
global_store_dword v5, v6, s[26:27] sc1
L_fin:
""")
    if stamps:
        stamp(12); dump_stamps(1, 13)
    if diag is not None:
        k, cond = diag
        E(f"s_sub_u32 s58, s{64+2*k}, s64\ns_lshl_b32 s58, s58, 2")
        if cond is not None: E(cond + "\ns_cselect_b32 s58, s58, 0")
        E("s_add_u32 s58, s58, 6000\nL_spin:\ns_memrealtime s[60:61]\ns_waitcnt lgkmcnt(0)\ns_sub_u32 s59, s60, s64\ns_cmp_lt_u32 s59, s58\ns_cbranch_scc1 L_spin")
    E("L_end:\ns_endpgm")

    E("L_stail:")
    if stamps: E("s_mul_i32 s84, s33, 100\ns_add_u32 s84, s84, s64")
    R = KF
    E(f"v_readfirstlane_b32 s33, v{ORD}")
    cross_rows(VL, T1, "v_add_f32")
    E(f"""
s_cmp_eq_u32 s33, 0
s_cbranch_scc1 L_first
v_cmp_ne_u32 vcc, s33, v{S_+4}
s_cbranch_vccz L_pw2
L_pw:
""")
    rd_part()
    E(f"""
ds_read_b32 v{S_+5}, v{FLA}
s_waitcnt lgkmcnt(1)
v_cmp_ne_u32 vcc, s33, v{S_+4}
s_cbranch_vccnz L_pw
L_pw2:
v_max_f32 v{S_}, v{F}, v{VM}
v_sub_f32 v{VM}, v{VM}, v{S_}
v_sub_f32 v{F}, v{F}, v{S_}
v_mul_f32 v{VM}, s61, v{VM}
v_mul_f32 v{F}, s61, v{F}
v_exp_f32 v{VM}, v{VM}
v_exp_f32 v{F}, v{F}
""")
    for d in range(4):
        for e in range(4): E(f"v_cndmask_b32 v{O+8*d+e}, v{O+8*d+e}, v{O+8*d+4+e}, s[20:21]")
    E(f"v_mul_f32 v{S_+1}, v{VM}, v{VL}\nv_fmac_f32 v{S_+1}, v{F}, v{F+1}")
    for d in range(4):
        for e in (0, 2): E(f"v_pk_mul_f32 v[{R+4*d+e}:{R+4*d+e+1}], v[{R+4*d+e}:{R+4*d+e+1}], v[{F}:{F+1}] op_sel_hi:[1,0]")
    E("s_cmp_eq_u32 s33, 3\ns_cbranch_scc1 L_last")
    for d in range(4):
        for e in (0, 2): E(f"v_pk_fma_f32 v[{O+8*d+e}:{O+8*d+e+1}], v[{O+8*d+e}:{O+8*d+e+1}], v[{VM}:{VM+1}], v[{R+4*d+e}:{R+4*d+e+1}] op_sel_hi:[1,0,1]")
    E("s_branch L_wr\nL_first:")
    for d in range(4):
        for e in range(4): E(f"v_cndmask_b32 v{O+8*d+e}, v{O+8*d+e}, v{O+8*d+4+e}, s[20:21]")
    E(f"v_mov_b32 v{S_}, v{VM}\nv_mov_b32 v{S_+1}, v{VL}\nL_wr:")
    for d in range(4): E(f"ds_write_b128 v{LL}, v[{O+8*d}:{O+8*d+3}] offset:{1024*d}")
    E(f"ds_write_b64 v{MLW}, v[{S_}:{S_+1}]\ns_mov_b64 exec, 1\nds_add_u32 v{FLA}, v{ONE} offset:12\ns_mov_b64 exec, -1")
    tok_wait("L_twW", 5, FLA, S_+4)
    E("s_branch L_wj\nL_last:")
    tagS = ["s36", "s16", "s17", "s18"]
    for d in range(4):
        for e in (0, 2): E(f"v_pk_fma_f32 v[{O+8*d+e}:{O+8*d+e+1}], v[{O+8*d+e}:{O+8*d+e+1}], v[{VM}:{VM+1}], v[{R+4*d+e}:{R+4*d+e+1}] op_sel_hi:[1,0,1]")
        for e in range(4): E(f"v_bfi_b32 v{O+8*d+e}, v{MSK}, v{O+8*d+e}, {tagS[e]}")
        E(f"global_store_dwordx4 v{APA if d < 2 else APB}, v[{O+8*d}:{O+8*d+3}], s[26:27] offset:{128*(d&1)} sc1")
    E(f"""
v_bfi_b32 v{S_}, v{MSK}, v{S_}, s36
v_bfi_b32 v{S_+1}, v{MSK}, v{S_+1}, s16
v_mov_b32 v{S_+2}, s17
v_mov_b32 v{S_+3}, s18
s_mov_b64 exec, 0xffff
global_store_dwordx4 v{APM}, v[{S_}:{S_+3}], s[26:27] offset:256 sc1
s_mov_b64 exec, 1
ds_add_u32 v{FLA}, v{ONE} offset:4
s_mov_b64 exec, -1
""")
    if stamps: E("s_memrealtime s[74:75]")
    E(f"""
s_waitcnt lgkmcnt(0)
s_cmp_lg_u32 s19, {63 - hx}
s_cbranch_scc1 L_wj
v_mov_b32 v{T0}, s36
global_store_dword v{NFA}, v{T0}, s[26:27] sc1
L_wj:
s_sub_u32 s39, s33, {wlead}
L_wg:
ds_read_b32 v{T0}, v{FLA} offset:28
s_waitcnt lgkmcnt(0)
v_cmp_gt_i32 vcc, s39, v{T0}
s_cbranch_vccnz L_wg
""")
    if stamps: E("s_memrealtime s[96:97]")
    ld_w(40, WD); ld_w(44, WO)
    E(f"s_waitcnt vmcnt({XW})\ns_mov_b64 exec, 1\nds_add_u32 v{FLA}, v{ONE}\nds_add_u32 v{FLA}, v{ONE} offset:28\ns_mov_b64 exec, -1")
    E(f"""
s_cmp_ge_u32 s31, 56
s_cbranch_scc1 L_nod
L_hw:
ds_read_b32 v{T1}, v{FLA} offset:24
ds_read_b128 v[{P}:{P+3}], v{HSA}
s_waitcnt lgkmcnt(0)
v_cmp_eq_u32 vcc, 0, v{T1}
s_cbranch_vccnz L_hw
""")
    build_A(KF, P, SELS)
    E("s_waitcnt vmcnt(8)")
    def g2_fin():
        E(f"v_permlane32_swap_b32 v{S_}, v{S_+2}\nv_permlane32_swap_b32 v{S_+1}, v{S_+3}")
        for i in range(2): E(f"v_add_f32_dpp v{S_+i}, v{S_+2+i}, v{S_+i} row_ror:8 {DPP}")
        E(f"v_permlane32_swap_b32 v{S_}, v{S_+2}\nv_permlane32_swap_b32 v{S_+1}, v{S_+3}")
        for e in range(4): E(f"v_bfi_b32 v{S_+e}, v{MSK}, v{S_+e}, {tagS[e]}")
    mm(S_, KF, WD)
    g2_fin()
    E(f"s_waitcnt vmcnt(0)\ns_mov_b64 exec, 0x00ff00ff\nglobal_store_dwordx4 v{FAD}, v[{S_}:{S_+3}], s[26:27] sc1\ns_mov_b64 exec, -1\ns_branch L_x2\nL_nod:\ns_waitcnt vmcnt(0)\nL_x2:")
    E(f"v_mov_b32 v{LL}, {OS + 1024}")
    stamp(6)
    E("s_barrier")
    stamp(7)
    E(f"ds_read_b128 v[{F}:{F+3}], v{LL}\nds_read_b128 v[{F+4}:{F+7}], v{LL} offset:16")
    for k in range(4):
        for h in range(2):
            E(f"ds_read_b128 v[{VF+8*k+4*h}:{VF+8*k+4*h+3}], v{OSA} offset:{256*k + 16*h}")
    E("s_waitcnt lgkmcnt(8)")
    E(f"v_max3_f32 v{T0}, v{F}, v{F+2}, v{F+4}\nv_max_f32 v{T0}, v{T0}, v{F+6}")
    for k in range(4): E(f"v_sub_f32 v{F+2*k}, v{F+2*k}, v{T0}")
    for k in range(4): E(f"v_mul_f32 v{F+2*k}, s61, v{F+2*k}")
    for k in range(4): E(f"v_exp_f32 v{F+2*k}, v{F+2*k}")
    E(f"v_mul_f32 v{T0}, v{F}, v{F+1}")
    for k in range(1, 4): E(f"v_fmac_f32 v{T0}, v{F+2*k}, v{F+2*k+1}")
    E(f"v_rcp_f32 v{T0}, v{T0}\ns_waitcnt lgkmcnt(0)")
    for i in range(0, 8, 2): E(f"v_pk_mul_f32 v[{VF+i}:{VF+i+1}], v[{VF+i}:{VF+i+1}], v[{F}:{F+1}] op_sel_hi:[1,0]")
    for k in range(1, 4):
        for i in range(0, 8, 2): E(f"v_pk_fma_f32 v[{VF+i}:{VF+i+1}], v[{VF+8*k+i}:{VF+8*k+i+1}], v[{F+2*k}:{F+2*k+1}], v[{VF+i}:{VF+i+1}] op_sel_hi:[1,0,1]")
    for i in range(0, 8, 2): E(f"v_pk_mul_f32 v[{VF+i}:{VF+i+1}], v[{VF+i}:{VF+i+1}], v[{T0}:{T0+1}] op_sel_hi:[1,0]")
    pack(P, VF, 4)
    build_A1(KF, P, SELS, 0)
    for i in range(8):
        if i < 7: build_A1(KF, P, SELS, i + 1)
        mm1(S_, KF, WO, i)
    g2_fin()
    E(f"s_mov_b64 exec, 0x00ff00ff\nglobal_store_dwordx4 v{FAS}, v[{S_}:{S_+3}], s[26:27] sc1")
    if stamps:
        stamp(9)
        E(f"s_mov_b64 exec, 1\ns_lshl2_add_u32 s58, s2, s3\ns_lshl_b32 s58, s58, 4\ns_add_u32 s58, s58, {STAMPS + 0x10000}\nv_mov_b32 v1, s58\nv_mov_b32 v4, s90\nv_mov_b32 v5, s72\ns_sub_u32 s59, s84, s64\nv_mov_b32 v6, s59\nv_mov_b32 v7, s12\nglobal_store_dwordx4 v1, v[4:7], s[26:27]\nv_mov_b32 v8, s96\nv_mov_b32 v9, s76\nv_mov_b32 v10, s33\nv_mov_b32 v11, s62\nv_add_u32 v1, 0x4000, v1\nglobal_store_dwordx4 v1, v[8:11], s[26:27]")
        E("s_cmp_lg_u32 s33, 3\ns_cbranch_scc1 L_end2")
        E('s_mov_b32 s86, s94\ns_mov_b32 s88, s90'); dump_stamps(0, 13)
        E("L_end2:")
    E("s_endpgm")
    NV = 248
    E(f'''.section .rodata,"a"
.p2align 6
.amdhsa_kernel {KN}
.amdhsa_next_free_vgpr {NV}
.amdhsa_next_free_sgpr 102
.amdhsa_accum_offset {NV}
.amdhsa_group_segment_fixed_size 0
.amdhsa_kernarg_size 96
.amdhsa_user_sgpr_count 2
.amdhsa_user_sgpr_kernarg_segment_ptr 1
.amdhsa_system_sgpr_workgroup_id_x 1
.amdhsa_float_denorm_mode_32 3
.end_amdhsa_kernel''')
    hdr = f"; fused decode block: LN -> (GQA attention -> wo) * silu(GEGLU FFN) + x ; generated by dev/gen.py\n; @launch grid=(256,1,1) block=(512,1,1) lds={LDS_TOTAL}\n"
    text = hdr + E.finish()
    if warm:
        import pads
        text, cnt = pads.place(text, [(KN, "L_e0", "PS", False), ("L_loop", "L_e1", "PL", True), ("L_aux", "L_e2", "PA", True), ("L_noffn", None, "PT", False)])
        names = lambda p: [f"{p}{i}" for i in range(cnt[p])]
        PS, PL, PA, PT = names("PS"), names("PL"), names("PA"), names("PT")
        early = PA[:2] + PS[:2]
        rest = PA[2:] + PL + PS[2:]
        chains = {"W1": [[x] for x in early] + [[]] * (4 - len(early)), "W2": [rest[i::4] for i in range(4)], "W3": [PT]}
        for ph, ret in (("W1", "L_ret1"), ("W2", "L_ret2"), ("W3", "L_ret3")):
            for w, ch in enumerate(chains[ph]):
                seq = ch + [ret]
                text = re.sub(rf"{ret} ;;{ph}_{w}\b", seq[0], text)
                for a_, b_ in zip(seq, seq[1:]): text = text.replace(f"@{a_}@", b_)
        assert "@P" not in text
    return text

if __name__ == "__main__":
    import json
    kw = json.loads(sys.argv[2]) if len(sys.argv) > 2 else {}
    open(sys.argv[1], "w").write(gen(**kw))
```

```python
import sys, struct, re
from asmlib import Asm
KN = "recurrent_scan__gqa_block_cached__glu_gated_geglu__decode_kernel"

def f2u(x): return struct.unpack("<I", struct.pack("<f", x))[0]

CNT, QP, NF, FP, AP, GP, STAMPS = 0x300000, 0x10000, 0x40000, 0x80000, 0x100000, 0x280000, 0x400000
PART = 131072
MLL  = PART + 4096
QL   = MLL + 512
SCR  = QL + 2048
OS   = SCR + 8192
HS   = OS + 1024 + 32
FLG  = HS + 128
LDS_TOTAL = FLG + 64
LOG2E = 1.4426950408889634
DPP = "row_mask:0xf bank_mask:0xf"

def gen(pk="nt", pw="nt", stamps=False, diag=None, warm=True, Y=4, YW=4, wl=2, Li=2, tk=12, nret=480, hoff=72, hx=4,
        ltok=9, gy=4, gw=7, latewo=0, relth=40, gtok=40, sleep=1, hsleep=1, hintsleep=1, tsl=1, ssleep=0, c1thr=5, cstr=256, um=3, fast1=True, swap=True, earr=False, exp=()):
    S = 6
    E = Asm()
    def stamp(i):
        if stamps: E(f"s_memrealtime s[{64+2*i}:{65+2*i}]\ns_waitcnt lgkmcnt(0)")
    nls = [0]
    def lstamp(i, t):
        if stamps:
            nls[0] += 1
            E(f"s_cmp_eq_u32 s33, {t}\ns_cbranch_scc0 L_ls{nls[0]}"); stamp(i); E(f"L_ls{nls[0]}:")
    def dump_stamps(role, n):
        E(f"s_mov_b64 exec, 1\ns_lshl_b32 s58, s2, 8\ns_add_u32 s58, s58, {STAMPS + role*128}\nv_mov_b32 v1, s58")
        for i in range(n):
            E(f"v_mov_b32 v2, s{64+2*i}\nglobal_store_dword v1, v2, s[26:27] offset:{4*i}")
    def row_allreduce(regs, op, rs=(8, 4, 2, 1)):
        for r in rs:
            for v in regs: E(f"{op}_dpp v{v}, v{v}, v{v} row_ror:{r} {DPP}")
    def cross_rows(v, t, op):
        E(f"v_mov_b32 v{t}, v{v}\nv_permlane32_swap_b32 v{t}, v{v}\n{op} v{v}, v{v}, v{t}")
        E(f"v_mov_b32 v{t}, v{v}\nv_permlane16_swap_b32 v{t}, v{v}\n{op} v{v}, v{v}, v{t}")
    def wave_allreduce(v, t, op):
        row_allreduce([v], op); cross_rows(v, t, op)
    def fold4(*aa):
        for a in aa: E(f"v_permlane32_swap_b32 v{a}, v{a+2}\nv_permlane32_swap_b32 v{a+1}, v{a+3}")
        for a in aa: E(f"v_add_f32 v{a}, v{a}, v{a+2}\nv_add_f32 v{a+1}, v{a+1}, v{a+3}")
        for a in aa: E(f"v_permlane16_swap_b32 v{a}, v{a+1}")
        for a in aa: E(f"v_add_f32 v{a}, v{a}, v{a+1}")
    def rnd_bf16(v):
        E(f"v_cvt_pk_bf16_f32 v{v}, v{v}, v{v}\nv_and_b32 v{v}, 0xffff0000, v{v}")
    def unpack(dst, src, n):
        for i in range(n): E(f"v_lshlrev_b32 v{dst+2*i}, 16, v{src+i}\nv_and_b32 v{dst+2*i+1}, 0xffff0000, v{src+i}")
    def pack(dst, src, n):
        for i in range(n): E(f"v_cvt_pk_bf16_f32 v{dst+i}, v{src+2*i}, v{src+2*i+1}")
    def make_sel(SEL, t):
        E(f"""
v_and_b32 v{t}, 1, v0
v_cmp_eq_u32 vcc, 1, v{t}
v_mov_b32 v{t+1}, 0x0c0c0100
v_mov_b32 v{t+2}, 0x01000c0c
v_cndmask_b32 v{t+1}, v{t+1}, v{t+2}, vcc
v_mov_b32 v{t+2}, 0x0c0c0302
v_mov_b32 v{t+3}, 0x03020c0c
v_cndmask_b32 v{t+2}, v{t+2}, v{t+3}, vcc
v_bfe_u32 v{t}, v0, 1, 2
v_mov_b32 v{t+3}, 0x0c0c0c0c
""")
        for k in range(4):
            E(f"v_cmp_eq_u32 vcc, {k}, v{t}\nv_cndmask_b32 v{SEL+2*k}, v{t+3}, v{t+1}, vcc\nv_cndmask_b32 v{SEL+2*k+1}, v{t+3}, v{t+2}, vcc")
    def build_A1(dst, pk_, SEL, i):
        for k in range(4):
            E(f"v_perm_b32 v{dst+4*i+k}, v{pk_+i//2}, v{pk_+i//2}, v{SEL+2*k+(i&1)}")
    def build_A(dst, pk_, SEL):
        for i in range(8): build_A1(dst, pk_, SEL, i)
    def mm1(d, a, b, i):
        c = "0" if i == 0 else f"v[{d}:{d+3}]"
        E(f"v_mfma_f32_16x16x32_bf16 v[{d}:{d+3}], v[{a+4*i}:{a+4*i+3}], v[{b+4*i}:{b+4*i+3}], {c}")
    def mm(d, a, b, wait=None):
        for i in range(8):
            if wait: E(wait(i))
            mm1(d, a, b, i)
    def calc_cl():
        E("""
s_and_b32 s59, s2, 7
s_lshl3_add_u32 s31, s28, s59
s_sub_u32 s59, s59, s28
s_sub_u32 s59, s59, s28
s_sub_u32 s59, s59, 2
s_and_b32 s59, s59, 7
s_mul_i32 s58, s28, 6
s_add_u32 s58, s58, s59
s_add_u32 s58, s58, 32
s_cmp_lt_u32 s59, 6
s_cselect_b32 s58, s58, 63
s_bitcmp1_b32 s2, 5
s_cselect_b32 s31, s58, s31
""")

    E(f'.amdgcn_target "amdgcn-amd-amdhsa--gfx950"\n.text\n.p2align 12\n.globl {KN}\n.p2align 8\n.type {KN},@function\n{KN}:')
    E(f"""
s_load_dwordx16 s[4:19], s[0:1], 0
s_load_dwordx8 s[20:27], s[0:1], 64
s_cmp_ge_u32 s2, 256
s_cbranch_scc1 L_end0
v_and_b32 v2, 60, v0
v_add_u32 v2, {FLG}, v2
v_mov_b32 v5, 0
ds_write_b32 v2, v5
v_lshrrev_b32 v1, 6, v0
v_and_b32 v0, 63, v0
""")
    if stamps: E("s_memrealtime s[64:65]")
    E("""
v_readfirstlane_b32 s3, v1
s_bfe_u32 s29, s2, 0x20003
s_lshr_b32 s28, s2, 6
s_bfe_u32 s58, s2, 0x10005
s_and_b32 s59, s2, 7
s_lshl3_add_u32 s30, s58, s59
s_and_b32 s32, s2, 63
""")
    if swap: E("s_bitcmp1_b32 s3, 2\ns_cbranch_scc1 L_str")
    else: E("s_cmp_lt_u32 s3, 4\ns_cbranch_scc1 L_str")
    XF, XR, WF, AX, WG_, WU_, SELA, TG, G = 8, 16, 20, 52, 84, 116, 148, 156, 160
    E(f"""
s_setprio 3
s_and_b32 s3, s3, 3
v_lshlrev_b32 v1, 5, v0
v_lshrrev_b32 v2, 3, v0
v_and_b32 v4, 7, v0
v_lshlrev_b32 v4, 4, v4
v_lshl_add_u32 v4, v2, 16, v4
s_lshl2_add_u32 s58, s29, s3
s_lshl_b32 s59, s58, 7
v_lshl_add_u32 v3, v2, 4, s59
s_lshl_b32 s58, s58, 19
s_lshl4_add_u32 s59, s28, s30
s_lshl_b32 s59, s59, 7
s_add_u32 s58, s58, s59
s_waitcnt lgkmcnt(0)
global_load_dwordx4 v[{XF}:{XF+3}], v1, s[4:5]
global_load_dwordx4 v[{XF+4}:{XF+7}], v1, s[4:5] offset:16
global_load_dwordx4 v[{XR}:{XR+3}], v3, s[4:5]
s_add_u32 s10, s10, s58
s_addc_u32 s11, s11, 0
""")
    for i in range(8):
        E(f"global_load_dwordx4 v[{WF+4*i}:{WF+4*i+3}], v4, s[10:11] {pw}")
        if i < 7: E("v_add_u32 v4, 0x2000, v4")
    E("s_load_dword s36, s[26:27], 0")
    E("s_barrier")
    E("s_branch L_aux\nL_end0:\ns_endpgm")

    LDA, LDB, LDA2, LDB2, VW, LL = 2, 3, 4, 5, 6, 7
    KA, VA = 8, 12
    VM, VL, T0, T1 = 20, 21, 22, 23
    QF, KF, VF, S_, F, P, O, WD, WO, SELS = 24, 40, 72, 104, 112, 120, 124, 156, 188, 220
    FAS, FAD, OSA, APA, APM, FLA, ONE, MSK, ORD, HSA, APB, NFA, MLW, AR2 = 228, 229, 230, 231, 232, 233, 234, 235, 236, 237, 238, 239, 240, 241
    SS = WD
    E("L_str:\ns_and_b32 s3, s3, 3")
    if warm:
        E("s_mov_b64 exec, 0")
        for w in range(3): E(f"s_cmp_eq_u32 s3, {w}\ns_cbranch_scc1 L_ret1 ;;W1_{w}")
        E("s_branch L_ret1 ;;W1_3\nL_ret1:\ns_mov_b64 exec, -1")
    E(f"""
s_waitcnt lgkmcnt(0)
s_barrier
s_load_dword s36, s[26:27], 0
v_mov_b32 v{FLA}, {FLG}
v_mov_b32 v{ONE}, 1
s_cmp_lg_u32 s3, 0
s_cbranch_scc1 L_noini2
s_cmp_lg_u32 s32, 0
s_cbranch_scc1 L_noinit
s_mul_i32 s59, s28, {8*cstr}
s_add_u32 s59, s59, {CNT}
v_mul_u32_u24 v{T0}, {cstr}, v0
v_add_u32 v{T0}, s59, v{T0}
v_mov_b32 v{T1}, 0
s_mov_b64 exec, 15
v_mov_b32 v{T1}, {64*S}
s_mov_b64 exec, 31
global_store_dword v{T0}, v{T1}, s[26:27] sc1
s_waitcnt vmcnt(0)
L_noinit:
s_mov_b64 exec, 1
ds_add_u32 v{FLA}, v{ONE} offset:20
s_mov_b64 exec, -1
L_noini2:
""")
    if warm:
        E("s_mov_b64 exec, 0")
        for w in range(3): E(f"s_cmp_eq_u32 s3, {w}\ns_cbranch_scc1 L_ret2 ;;W2_{w}")
        E("s_branch L_ret2 ;;W2_3\nL_ret2:\ns_mov_b64 exec, -1")
    E(f"""
v_lshrrev_b32 v1, 4, v0
v_and_b32 v{LDA}, 15, v0
v_lshlrev_b32 v{LDB}, 1, v1
v_xor_b32 v{LDA}, v{LDA}, v{LDB}
v_lshlrev_b32 v{LDA}, 4, v{LDA}
v_lshl_add_u32 v{LDA}, v1, 8, v{LDA}
v_xor_b32 v{LDB}, 0x80, v{LDA}
v_add_u32 v{LDA2}, 0x1000, v{LDA}
v_add_u32 v{LDB2}, 0x1000, v{LDB}
s_mul_i32 s38, s28, {hoff}
s_add_u32 s38, s38, s3
s_lshl2_add_u32 s35, s32, s38
s_lshl_b32 s59, s28, 24
s_lshl_b32 s34, s3, 15
s_add_u32 s54, s6, s59
s_addc_u32 s55, s7, 0
s_add_u32 s56, s8, s59
s_addc_u32 s57, s9, 0
s_lshr_b32 s39, s2, 3
s_add_u32 s39, s39, s3
s_and_b32 s39, s39, 3
""")
    if um == 3: E("s_lshr_b32 s58, s32, 3\ns_xor_b32 s35, s32, s58\ns_lshl_b32 s58, s39, 6\ns_add_u32 s35, s35, s58\ns_add_u32 s35, s35, s38\ns_sub_u32 s35, s35, s3")
    E(f"s_lshl_b32 s39, s39, 1\ns_add_u32 s39, s39, {4 - Li}")
    def ld_w(srd, dst):
        for i in range(8):
            so = "0" if i < 2 else f"s{50 + i//2}"
            if "wlin" in exp:
                so = "0" if i < 4 else "s51"
                E(f"buffer_load_dwordx4 v[{dst+4*i}:{dst+4*i+3}], v{VW}, s[{srd}:{srd+3}], {so} offen offset:{(i&3)*1024} {pw}")
                continue
            E(f"buffer_load_dwordx4 v[{dst+4*i}:{dst+4*i+3}], v{VW}, s[{srd}:{srd+3}], {so} offen offset:{(i&1)*2048} {pw}")
    def tok_wait(lbl, fin, fla, t):
        E(f"""
s_branch {lbl}_c
{lbl}:
s_sleep {tsl}
{lbl}_c:
ds_read_b64 v[{t}:{t+1}], v{fla}
s_waitcnt lgkmcnt(0)
v_cmp_gt_i32 vcc, s39, v{t}
v_cmp_gt_u32 s[58:59], {fin}, v{t+1}
s_and_b64 vcc, vcc, s[58:59]
s_cbranch_scc1 {lbl}
""")
    def tok_pass(fla, one):
        E(f"s_mov_b64 exec, 1\nds_add_u32 v{fla}, v{one}\ns_mov_b64 exec, -1")
    calc_cl()
    E(f"""
s_cmp_lt_u32 s31, 56
s_cselect_b32 s42, {64*2048}, 0
s_lshl2_add_u32 s59, s29, s3
s_lshl_b32 s59, s59, 7
s_lshl_b32 s58, s31, 17
s_add_u32 s58, s58, s59
s_add_u32 s40, s20, s58
s_addc_u32 s41, s21, 0
s_mov_b32 s43, 0x20000
s_lshl4_add_u32 s58, s28, s30
s_lshl_b32 s58, s58, 17
s_add_u32 s58, s58, s59
s_add_u32 s44, s12, s58
s_addc_u32 s45, s13, 0
s_mov_b32 s46, {64*2048}
s_mov_b32 s47, 0x20000
s_movk_i32 s51, 0x1000
s_movk_i32 s52, 0x2000
s_movk_i32 s53, 0x3000
v_lshrrev_b32 v{T0}, 3, v0
v_and_b32 v{T1}, 7, v0
v_lshlrev_b32 v{T1}, 4, v{T1}
v_lshl_add_u32 v{VW}, v{T0}, 14, v{T1}
v_lshlrev_b32 v{OSA}, 5, v{T0}
v_add_u32 v{OSA}, {OS}, v{OSA}
v_lshlrev_b32 v{HSA}, 4, v{T0}
v_add_u32 v{HSA}, {HS}, v{HSA}
s_lshl_b32 s58, s3, 15
v_and_b32 v{T0}, 15, v0
v_and_b32 v{T1}, 7, v0
v_lshlrev_b32 v{T1}, 1, v{T1}
v_xor_b32 v{T1}, v{T1}, v1
v_lshlrev_b32 v{T1}, 4, v{T1}
v_lshl_add_u32 v{KA}, v{T0}, 8, v{T1}
v_add_u32 v{KA}, s58, v{KA}
v_xor_b32 v{KA+1}, 64, v{KA}
v_xor_b32 v{KA+2}, 0x80, v{KA}
v_xor_b32 v{KA+3}, 0xc0, v{KA}
s_add_u32 s58, s58, 0x4000
v_lshrrev_b32 v{T0}, 2, v0
v_and_b32 v{T1}, 7, v{T0}
v_lshlrev_b32 v{T1}, 5, v{T1}
v_lshl_add_u32 v{VA}, v{T0}, 8, v{T1}
v_and_b32 v{T1}, 3, v0
v_lshl_add_u32 v{VA}, v{T1}, 3, v{VA}
v_add_u32 v{VA}, s58, v{VA}
""")
    for db in range(1, 8): E(f"v_xor_b32 v{VA+db}, {db*32}, v{VA}")
    E(f"v_mov_b32 v{VM}, 0xff7f0000\nv_mov_b32 v{VL}, 0")
    for i in range(32): E(f"v_mov_b32 v{O+i}, 0")
    E("s_waitcnt lgkmcnt(0)")
    make_sel(SELS, F)
    E(f"""
v_lshlrev_b32 v{LL}, 4, v0
v_add_u32 v{LL}, {PART}, v{LL}
v_lshlrev_b32 v{MLW}, 3, v0
v_add_u32 v{MLW}, {MLL}, v{MLW}
s_lshl_b32 s58, s28, 10
s_add_u32 s58, s58, s32
s_mul_i32 s58, s58, 384
s_add_u32 s58, s58, {AP}
v_and_b32 v{T0}, 7, v0
v_bfe_u32 v{T1}, v0, 3, 1
v_mul_u32_u24 v{APA}, {2*64*384}, v{T0}
v_add_u32 v{APA}, s58, v{APA}
v_mul_u32_u24 v{APM}, {64*384}, v{T1}
v_add_u32 v{APM}, v{APM}, v{APA}
v_lshl_add_u32 v{APA}, v{T1}, 6, v{APA}
v_lshl_add_u32 v{APA}, v1, 4, v{APA}
v_add_u32 v{APB}, {64*384}, v{APA}
s_lshl_b32 s58, s28, 13
s_add_u32 s58, s58, {NF}
v_lshl_add_u32 v{NFA}, v0, 7, s58
s_mul_i32 s58, s28, {8*cstr}
s_add_u32 s58, s58, {CNT + 4*cstr}
s_add_u32 s14, s26, s58
s_addc_u32 s15, s27, 0
v_mov_b32 v{MSK}, 0xffffff00
s_lshl3_add_u32 s58, s28, s3
s_mul_i32 s58, s58, {cstr}
s_add_u32 s58, s58, {CNT}
s_add_u32 s48, s26, s58
s_addc_u32 s49, s27, 0
s_lshl2_add_u32 s58, s29, s3
s_lshl_b32 s58, s58, 15
s_add_u32 s58, s58, {FP}
v_bfe_u32 v{T0}, v0, 2, 1
v_lshl_add_u32 v{FAS}, v{T0}, 14, s58
v_and_b32 v{T0}, 3, v0
v_lshl_add_u32 v{FAS}, v{T0}, 5, v{FAS}
v_bfe_u32 v{T0}, v0, 4, 1
v_lshl_add_u32 v{FAS}, v{T0}, 4, v{FAS}
s_add_u32 s59, s31, 64
s_lshl_b32 s59, s59, 7
v_add_u32 v{FAD}, s59, v{FAS}
s_lshl4_add_u32 s58, s28, s30
s_lshl_b32 s58, s58, 7
v_add_u32 v{FAS}, s58, v{FAS}
s_add_u32 s36, s36, 0x01010101
s_lshr_b32 s16, s36, 8
s_lshr_b32 s17, s36, 16
s_lshr_b32 s18, s36, 24
s_mov_b32 s33, 0
s_mov_b32 s60, {f2u(128 ** -0.5):#x}
s_mov_b32 s61, {f2u(LOG2E):#x}
s_mov_b32 s10, 0
s_mov_b32 s20, 0xff00ff00
s_mov_b32 s21, 0xff00ff00
""")
    E(f"""
v_and_b32 v{T0}, 7, v0
v_lshlrev_b32 v{T0}, 8, v{T0}
v_lshl_add_u32 v{T0}, v1, 4, v{T0}
v_add_u32 v{T0}, {QL}, v{T0}
s_mov_b32 s13, 0
s_mov_b32 s62, 0
s_mov_b32 s11, 0
s_mov_b32 s19, -1
s_branch L_loop
L_pro:
s_waitcnt vmcnt({Y})
""")
    tok_pass(FLA, ONE)
    E(f"""
s_cmp_eq_u32 s13, 1
s_cbranch_scc1 L_loop
L_qw:
s_sleep 1
ds_read_b32 v{T1}, v{FLA} offset:8
s_waitcnt lgkmcnt(0)
v_cmp_ne_u32 vcc, 4, v{T1}
s_cbranch_vccnz L_qw
s_branch L_qr
L_t1:
s_sleep 1
ds_read_b96 v[{S_+4}:{S_+6}], v{FLA}
s_waitcnt lgkmcnt(0)
v_cmp_eq_u32 vcc, 4, v{S_+6}
s_cbranch_vccnz L_qr
v_cmp_gt_i32 vcc, s39, v{S_+4}
s_cbranch_vccnz L_t1
s_branch L_go
L_qr:
""")
    stamp(3)
    for j in range(4): E(f"ds_read_b128 v[{QF+4*j}:{QF+4*j+3}], v{T0} offset:{64*j}")
    E("s_mov_b32 s10, 1\ns_mov_b32 s12, s13\ns_branch L_kjob\nL_e0:\n.p2align 12")

    def k_reads(regs, slot):
        for s in range(2):
            for j in range(4):
                r = regs + (s*4+j)*4
                E(f"ds_read_b128 v[{r}:{r+3}], v{KA+j} offset:{slot*8192 + s*4096}")
        E(f"ds_read_b32 v{ORD}, v{FLA}")
        for s in range(2):
            for j in range(4):
                r = regs + (s*4+j)*4
                E(f"s_waitcnt lgkmcnt({8-(s*4+j)})")
                c = "0" if j == 0 else f"v[{S_+4*s}:{S_+4*s+3}]"
                E(f"v_mfma_f32_16x16x32_bf16 v[{S_+4*s}:{S_+4*s+3}], v[{r}:{r+3}], v[{QF+4*j}:{QF+4*j+3}], {c}")
    def round_scores(dst):
        pack(P, S_, 4); unpack(F, P, 4)
        for i in range(8): E(f"v_mul_f32 v{F+i}, s60, v{F+i}")
        pack(dst, F, 4); unpack(F, dst, 4)
    def exps(m):
        for i in range(8): E(f"v_sub_f32 v{F+i}, v{F+i}, v{m}")
        for i in range(8): E(f"v_mul_f32 v{F+i}, s61, v{F+i}")
        for i in range(8): E(f"v_exp_f32 v{F+i}, v{F+i}")
    def sum8():
        E(f"""
v_add_f32 v{F}, v{F}, v{F+1}
v_add_f32 v{F+2}, v{F+2}, v{F+3}
v_add_f32 v{F+4}, v{F+4}, v{F+5}
v_add_f32 v{F+6}, v{F+6}, v{F+7}
v_add_f32 v{F}, v{F}, v{F+2}
v_add_f32 v{F+4}, v{F+4}, v{F+6}
v_add_f32 v{F}, v{F}, v{F+4}
""")
    def pv(regs, slot, p, dummy, toggle, after0=None, pre=None):
        for db in range(8):
            for s in range(2):
                r = regs + db*4 + s*2
                E(f"ds_read_b64_tr_b16 v[{r}:{r+1}], v{VA+db} offset:{slot*8192 + s*4096}")
        E(f"ds_read_b32 v{dummy}, v{FLA}")
        if pre: pre()
        for db in range(8):
            r = regs + db*4
            E(f"s_waitcnt lgkmcnt({min(14, 15-2*db)})")
            E(f"v_mfma_f32_16x16x32_bf16 v[{O+4*db}:{O+4*db+3}], v[{r}:{r+3}], v[{p}:{p+3}], v[{O+4*db}:{O+4*db+3}]")
            if toggle: E(f"v_xor_b32 v{VA+db}, 0x4000, v{VA+db}")
            if db == 0 and after0: E(after0)
    R = KF
    def rd_part():
        E(f"ds_read_b32 v{S_+4}, v{FLA} offset:12\nds_read_b64 v[{F}:{F+1}], v{MLW}")
        for d in range(4): E(f"ds_read_b128 v[{R+4*d}:{R+4*d+3}], v{LL} offset:{1024*d}")
    ARR = f"""
v_readfirstlane_b32 s63, v{AR2 if earr else ORD}
s_cmp_lg_u32 s63, 3
s_cbranch_scc1 LBL
s_mov_b32 s19, 1
s_atomic_add s19, s[14:15], 0 glc
"""
    E(f"""
L_loop:
s_cmp_ge_u32 s13, {S}
s_cbranch_scc1 L_dynp
s_cmp_lt_u32 s13, {S//2}
s_cselect_b64 s[6:7], s[54:55], s[56:57]
s_cselect_b32 s58, 0, {S//2}
s_sub_u32 s58, s13, s58
s_lshl_b32 s58, s58, 9
s_add_u32 s58, s58, s35
s_add_u32 s59, s58, 256
s_and_b32 s58, s58, 2047
s_lshl_b32 s58, s58, 13
s_and_b32 s59, s59, 2047
s_lshl_b32 s59, s59, 13
s_add_u32 s8, s6, s59
s_addc_u32 s9, s7, 0
s_add_u32 s6, s6, s58
s_addc_u32 s7, s7, 0
s_lshl1_add_u32 s58, s10, s13
s_cmp_eq_u32 s58, 1
s_cbranch_scc1 L_t1
s_cmp_lt_u32 s13, {S//2}
s_cbranch_scc1 L_tw_c
""")
    for h, p in ((0, P), (1, S_)):
        unpack(F, SS + 4*h, 4); exps(VM); pack(p, F, 4); sum8()
        E(f"v_add_f32 v{VL}, v{VL}, v{F}")
    for i in range(16): E(f"v_mov_b32 v{SS+i}, v{SS+8+i}")
    E(f"""
s_branch L_tw_c
L_dynp:
s_lshl2_add_u32 s63, s62, s38
s_and_b32 s63, s63, 2047
s_lshl_b32 s63, s63, 13
s_add_u32 s6, s54, s63
s_addc_u32 s7, s55, 0
s_add_u32 s8, s56, s63
s_addc_u32 s9, s57, 0
""")
    tok_wait("L_tw", 1, FLA, S_+4)
    E("L_go:")
    if stamps: E("s_memrealtime s[90:91]\ns_waitcnt lgkmcnt(0)\ns_mov_b32 m0, s13\nv_writelane_b32 v244, s90, m0")
    for j in range(16):
        if j == 8:
            E("s_add_u32 s39, s39, 1")
            tok_wait("L_tb", 1, FLA, S_+4)
        if j % 4 == 0: E(f"s_mov_b32 m0, s34" if j == 0 else f"s_add_u32 m0, s34, {hex(1024*j)}")
        v = [[LDA, LDB], [LDA2, LDB2]][(j >> 2) & 1][j & 1]
        base = 6 if j < 8 else 8
        E(f"global_load_lds_dwordx4 v{v}, s[{base}:{base+1}] offset:{(j&3)*1024} {pk}")
    E(f"""
s_xor_b32 s34, s34, 0x4000
s_add_u32 s39, s39, 7
s_add_u32 s13, s13, 1
s_waitcnt vmcnt({8 + Y})
""")
    tok_pass(FLA, ONE)
    E(f"""
s_cmp_ge_u32 s33, {S}
s_cbranch_scc1 L_mix
s_cmp_eq_u32 s10, 0
s_cbranch_scc1 L_pro
s_cmp_ge_u32 s33, {S//2}
s_cbranch_scc1 L_vjob
s_waitcnt vmcnt(8)
L_kjob:
""")
    k_reads(KF, 0)
    E(f"s_cmp_lt_u32 s33, s12\ns_cbranch_scc1 L_nopass\ns_waitcnt vmcnt({Y})"); tok_pass(FLA, ONE); E("L_nopass:")
    for i in range(16): E(f"v_mov_b32 v{SS+i}, v{SS+8+i}")
    def accmax():
        E(f"v_max3_f32 v{VM}, v{VM}, v{F}, v{F+1}\nv_max3_f32 v{T1}, v{F+2}, v{F+3}, v{F+4}\nv_max3_f32 v{VM}, v{VM}, v{F+5}, v{F+6}\nv_max3_f32 v{VM}, v{VM}, v{F+7}, v{T1}")
    round_scores(SS+16); accmax()
    E("s_waitcnt vmcnt(0)")
    k_reads(VF, 1)
    for i in range(4): E(f"v_xor_b32 v{KA+i}, 0x4000, v{KA+i}")
    round_scores(SS+20); accmax()
    E(f"""
s_add_u32 s33, s33, 1
s_cmp_lt_u32 s33, s13
s_cbranch_scc1 L_kjob
s_cmp_lt_u32 s33, {S//2}
s_cbranch_scc1 L_loop
""")
    cross_rows(VM, T1, "v_max_f32")
    for i in range(4): E(f"v_xor_b32 v{KA+i}, 0x4000, v{KA+i}")
    E("s_branch L_loop")
    E("L_vjob:")
    E(f"""
s_cmp_lg_u32 s33, {S-1}
s_cbranch_scc1 L_notk
s_waitcnt vmcnt({tk})
s_mov_b32 s62, 1
s_atomic_add s62, s[48:49], 0 glc
L_notk:
s_waitcnt vmcnt(8)
""")
    pv(KF, 0, P, ORD, False)
    E(f"s_waitcnt vmcnt({Y})"); tok_pass(FLA, ONE)
    E("s_waitcnt vmcnt(0)")
    pv(VF, 1, S_, ORD, True)
    E(f"""
s_add_u32 s33, s33, 1
s_waitcnt lgkmcnt(0)
s_cmp_lt_u32 s62, 512
s_cbranch_scc1 L_loop
s_mov_b64 exec, 1
ds_add_rtn_u32 v{ORD}, v{FLA}, v{ONE} offset:4
ds_add_rtn_u32 v{AR2}, v{FLA}, v{ONE} offset:32
s_mov_b64 exec, -1
""")
    if stamps: E("s_memrealtime s[80:81]\ns_memrealtime s[94:95]\ns_waitcnt lgkmcnt(0)\ns_mov_b32 s72, s80")
    rd_part()
    E("s_waitcnt lgkmcnt(0)")
    E(ARR.replace("LBL", "L_stail"))
    E("s_branch L_stail")
    E(f"""
L_mix:
s_waitcnt vmcnt({tk})
s_add_u32 s62, s62, 64
s_cmp_ge_u32 s62, {nret + 64}
s_cbranch_scc1 {"L_ret" if earr else "L_static"}
s_mov_b32 s62, 1
s_atomic_add s62, s[48:49], 0 glc
""")
    if earr:
        E(f"s_branch L_static\nL_ret:\ns_mov_b32 s11, 1\ns_mov_b64 exec, 1\nds_add_rtn_u32 v{AR2}, v{FLA}, v{ONE} offset:32\ns_mov_b64 exec, -1\ns_waitcnt lgkmcnt(0)")
        E(ARR.replace("LBL", "L_static"))
    E("L_static:\ns_waitcnt vmcnt(8)")
    k_reads(KF, 0)
    E(f"s_waitcnt vmcnt({Y})"); tok_pass(FLA, ONE)
    for i in range(4): E(f"v_xor_b32 v{KA+i}, 0x4000, v{KA+i}")
    round_scores(P)
    E(f"""
v_max3_f32 v{T0}, v{F}, v{F+1}, v{F+2}
v_max3_f32 v{T1}, v{F+3}, v{F+4}, v{F+5}
v_max3_f32 v{T0}, v{T0}, v{F+6}, v{F+7}
v_max_f32 v{T0}, v{T0}, v{T1}
""")
    cross_rows(T0, T1, "v_max_f32")
    E(f"""
v_max_f32 v{T1}, v{T0}, v{VM}
v_sub_f32 v{T0}, v{VM}, v{T1}
v_mul_f32 v{T0}, s61, v{T0}
v_exp_f32 v{T0}, v{T0}
v_mov_b32 v{VM}, v{T1}
""")
    exps(T1)
    pack(P, F, 4); sum8()
    E(f"v_fma_f32 v{VL}, v{VL}, v{T0}, v{F}")
    if stamps: E("s_memrealtime s[94:95]")
    if earr: E("s_cmp_eq_u32 s11, 1\ns_cbranch_scc1 L_lt")
    E("s_waitcnt lgkmcnt(0)\ns_cmp_lt_u32 s62, 512\ns_cbranch_scc1 L_pv")
    if earr: E(f"s_mov_b64 exec, 1\nds_add_rtn_u32 v{AR2}, v{FLA}, v{ONE} offset:32\nL_lt:")
    if stamps: E("s_mov_b32 s80, s90\ns_mov_b32 s72, s90")
    E(f"s_mov_b64 exec, 1\nds_add_rtn_u32 v{ORD}, v{FLA}, v{ONE} offset:4\ns_mov_b64 exec, -1")
    rd_part()
    E("L_pv:\ns_waitcnt vmcnt(0)")
    def resc():
        for i in range(0, 32, 2): E(f"v_pk_mul_f32 v[{O+i}:{O+i+1}], v[{O+i}:{O+i+1}], v[{T0}:{T0+1}] op_sel_hi:[1,0]")
    pv(VF, 1, P, S_+5, True, after0="s_cmp_lt_u32 s62, 512\ns_cbranch_scc1 L_noat\ns_cmp_eq_u32 s11, 1\ns_cbranch_scc1 L_noat" + ARR.replace("LBL", "L_noat") + "L_noat:", pre=resc)
    E("s_add_u32 s33, s33, 1\ns_cmp_lt_u32 s62, 512\ns_cbranch_scc1 L_loop\ns_branch L_stail")

    def embed(r, n=4):
        for i in range(n): E(f"v_and_or_b32 v{r+i}, v{r+i}, s37, v{TG+i%4}")
    def strip(r, n=4):
        for i in range(n): E(f"v_and_b32 v{r+i}, s37, v{r+i}")
    npoll = [0]
    def poll(loads, grs, t, slp):
        n = npoll[0]; npoll[0] += 1
        MK = 40
        E("s_mov_b32 s62, 0")
        def tagw(r): E(f"v_perm_b32 v{t+1}, v{r+1}, v{r}, s38\nv_perm_b32 v{t+2}, v{r+3}, v{r+2}, s39\nv_or_b32 v{t+1}, v{t+1}, v{t+2}")
        if len(loads) == 1:
            E(f"L_poll{n}:\n{loads[0]}\ns_waitcnt vmcnt(0)")
            tagw(grs[0])
            E(f"v_cmp_ne_u32 vcc, s36, v{t+1}\ns_cbranch_vccz L_pok{n}\ns_mov_b64 exec, vcc")
        else:
            for l in loads: E(l)
            E(f"s_branch L_chk{n}\nL_poll{n}:")
            for k, l in enumerate(loads):
                E(f"s_mov_b64 exec, s[{MK+2*k}:{MK+2*k+1}] ;nopad\ns_cbranch_execz L_pl{n}_{k} ;nopad\n{l} ;nopad\nL_pl{n}_{k}:")
            E(f"s_mov_b64 exec, -1 ;nopad\nL_chk{n}:\ns_waitcnt vmcnt(0)")
            for k, r in enumerate(grs):
                tagw(r)
                E(f"v_cmp_ne_u32 s[{MK+2*k}:{MK+2*k+1}], s36, v{t+1}")
            E(f"s_or_b64 vcc, s[{MK}:{MK+1}], s[{MK+2}:{MK+3}]")
            for k in range(2, len(loads)): E(f"s_or_b64 vcc, vcc, s[{MK+2*k}:{MK+2*k+1}]")
            E(f"s_cbranch_scc0 L_pok{n}")
        E("s_add_u32 s62, s62, 1\ns_cmp_ge_u32 s62, 0x200000")
        if slp: E(f"s_sleep {slp}")
        E(f"s_cbranch_scc0 L_poll{n}\nL_pok{n}:")
        if len(loads) == 1: E("s_mov_b64 exec, -1")

    E("L_e1:\n.p2align 12\nL_aux:")
    E("s_mov_b32 s37, 0xffffff00\ns_mov_b32 s38, 0x0c0c0400\ns_mov_b32 s39, 0x04000c0c\ns_mov_b32 s62, 0")
    make_sel(SELA, 4)
    calc_cl()
    E(f"""
s_lshl_b32 s58, s3, 10
s_add_u32 s58, s58, {SCR}
v_lshl_add_u32 v2, v0, 4, s58
v_bfe_u32 v3, v0, 1, 3
v_and_b32 v1, 1, v0
v_lshl_add_u32 v3, v1, 4, v3
v_lshlrev_b32 v3, 4, v3
v_add_u32 v3, {SCR}, v3
""")
    GV = 200
    Q_ = [("g", i) for i in range(8)] + [("u", i) for i in range(8)]
    def gu_issue():
        m, i = Q_.pop(0)
        srd, dst = (40, WG_) if m == "g" else (44, WU_)
        if i == 0: E("s_mov_b32 s48, 0")
        E(f"buffer_load_dwordx4 v[{dst+4*i}:{dst+4*i+3}], v{GV}, s[{srd}:{srd+3}], s48 offen {pw}")
        if i < 7: E("s_add_u32 s48, s48, 7168")
    if True:
        E(f"""
s_lshl2_add_u32 s58, s29, s3
s_mul_i32 s59, s58, {64*7168}
s_lshl_b32 s58, s31, 7
s_add_u32 s59, s59, s58
s_add_u32 s40, s16, s59
s_addc_u32 s41, s17, 0
s_add_u32 s44, s18, s59
s_addc_u32 s45, s19, 0
s_cmp_lt_u32 s31, 56
s_cselect_b32 s42, {64*7168}, 0
s_mov_b32 s46, s42
s_mov_b32 s43, 0x20000
s_mov_b32 s47, 0x20000
v_lshrrev_b32 v1, 3, v0
v_and_b32 v4, 7, v0
v_lshlrev_b32 v5, 4, v4
v_mul_u32_u24 v{GV}, {8*7168}, v1
v_add_u32 v{GV}, v{GV}, v5
""")
    E("s_waitcnt vmcnt(9)")
    unpack(G, XF, 8)
    E(f"v_add_f32 v1, v{G}, v{G+1}\nv_add_f32 v5, v{G+2}, v{G+3}")
    for i in range(4, 16, 2): E(f"v_add_f32 v1, v1, v{G+i}\nv_add_f32 v5, v5, v{G+i+1}")
    E("v_add_f32 v1, v1, v5")
    wave_allreduce(1, 5, "v_add_f32")
    E(f"v_mul_f32 v1, {f2u(1/1024):#x}, v1")
    for i in range(16): E(f"v_sub_f32 v{G+i}, v{G+i}, v1")
    E(f"v_mul_f32 v6, v{G}, v{G}\nv_mul_f32 v5, v{G+1}, v{G+1}")
    for i in range(2, 16, 2): E(f"v_fmac_f32 v6, v{G+i}, v{G+i}\nv_fmac_f32 v5, v{G+i+1}, v{G+i+1}")
    E("v_add_f32 v6, v6, v5")
    wave_allreduce(6, 5, "v_add_f32")
    E(f"v_mul_f32 v6, {f2u(1/1024):#x}, v6")
    rnd_bf16(1); rnd_bf16(6)
    E(f"v_add_f32 v6, {f2u(1e-5):#x}, v6")
    rnd_bf16(6)
    E("v_sqrt_f32 v6, v6")
    rnd_bf16(6)
    E("v_rcp_f32 v6, v6\ns_waitcnt vmcnt(8)")
    unpack(G, XR, 4)
    for i in range(8): E(f"v_sub_f32 v{G+i}, v{G+i}, v1")
    pack(XR, G, 4); unpack(G, XR, 4)
    for i in range(8): E(f"v_mul_f32 v{G+i}, v{G+i}, v6")
    pack(XR, G, 4)
    build_A(AX, XR, SELA)
    stamp(1)
    E("s_cmp_lt_u32 s31, 56\ns_cbranch_scc1 L_gd1\ns_waitcnt vmcnt(0)\nL_gd1:")
    nis = 0
    for i in range(8):
        E(f"s_waitcnt vmcnt({7 - i + nis})")
        if 7 - i + nis < gw:
            gu_issue(); nis += 1
        mm1(G, AX, WF, i)
    E(f"""
s_waitcnt lgkmcnt(0)
s_add_u32 s36, s36, 0x01010101
s_and_b32 s58, s36, 0xff
v_mov_b32 v{TG}, s58
s_bfe_u32 s58, s36, 0x80008
v_mov_b32 v{TG+1}, s58
s_bfe_u32 s58, s36, 0x80010
v_mov_b32 v{TG+2}, s58
s_lshr_b32 s58, s36, 24
v_mov_b32 v{TG+3}, s58
v_mov_b32 v5, {FLG}
v_mov_b32 v6, 1
ds_write_b128 v2, v[{G}:{G+3}]
s_mov_b64 exec, 1
ds_add_u32 v5, v6 offset:20
s_mov_b64 exec, -1
""")
    stamp(2)
    E(f"""
s_cmp_lg_u32 s3, 0
s_cbranch_scc1 L_qpub
L_xw:
ds_read_b32 v6, v5 offset:20
s_waitcnt lgkmcnt(0)
v_cmp_ne_u32 vcc, 5, v6
s_cbranch_vccnz L_xw
""")
    for k in range(8):
        E(f"ds_read_b128 v[{G+4*k}:{G+4*k+3}], v3 offset:{(k // 2) * 1024 + (k % 2) * 640}")
    E(f"""
s_lshl4_add_u32 s58, s28, s30
s_lshl2_add_u32 s58, s58, s29
s_lshl_b32 s58, s58, 8
s_add_u32 s58, s58, {QP}
v_lshl_add_u32 v1, v0, 4, s58
s_waitcnt lgkmcnt(0)
""")
    for st in (16, 8, 4):
        for i in range(st): E(f"v_add_f32 v{G+i}, v{G+i}, v{G+st+i}")
    embed(G)
    E(f"s_mov_b64 exec, 0xffff\nglobal_store_dwordx4 v1, v[{G}:{G+3}], s[26:27] sc1\ns_mov_b64 exec, -1\nL_qpub:")
    stamp(3)
    E(f"""
s_lshl2_add_u32 s58, s28, s3
s_lshl_b32 s58, s58, 12
s_add_u32 s58, s58, {QP}
v_lshrrev_b32 v1, 4, v0
v_and_b32 v4, 15, v0
v_lshl_add_u32 v4, v4, 4, s58
v_lshl_add_u32 v4, v1, 10, v4
v_mov_b32 v19, {FLG}
v_mov_b32 v20, 1
""")
    PASS = "s_mov_b64 exec, 1\nds_add_u32 v19, v20\ns_mov_b64 exec, -1"
    while Q_:
        E(f"s_waitcnt vmcnt({gw - 1})"); gu_issue()
    E(f"s_waitcnt vmcnt({gy})\n{PASS}\ns_waitcnt vmcnt(0)\ns_cmp_lt_u32 s31, 56\ns_cbranch_scc1 L_qgo\nL_lw:\ns_sleep 4\nds_read_b32 v6, v19\ns_waitcnt lgkmcnt(0)\nv_cmp_gt_u32 vcc, {ltok}, v6\ns_cbranch_vccnz L_lw\nL_qgo:")
    poll([f"global_load_dwordx4 v[{G+4*k}:{G+4*k+3}], v4, s[26:27] offset:{256*k} sc1" for k in range(4)],
         [G+4*k for k in range(4)], 5, 4)
    strip(G, 16)
    for st in (8, 4):
        for i in range(st): E(f"v_add_f32 v{G+i}, v{G+i}, v{G+st+i}")
    pack(G, G, 2)
    E(f"""
s_lshl_b32 s58, s3, 9
s_add_u32 s58, s58, {QL}
v_lshl_add_u32 v1, v0, 3, s58
ds_write_b64 v1, v[{G}:{G+1}]
v_mov_b32 v5, {FLG}
v_mov_b32 v6, 1
s_mov_b64 exec, 1
ds_add_u32 v5, v6 offset:8
s_mov_b64 exec, -1
""")
    stamp(4)
    E(f"""
s_cmp_ge_u32 s31, 56
s_cbranch_scc1 L_noffn
v_and_b32 v4, 7, v0
""")
    E(f"""
s_lshl2_add_u32 s58, s31, s29
s_lshl_b32 s58, s58, 9
s_add_u32 s58, s58, {GP}
v_lshl_add_u32 v5, v4, 5, s58
v_bfe_u32 v4, v0, 4, 1
v_lshl_add_u32 v5, v4, 4, v5
v_lshrrev_b32 v4, 5, v0
v_lshl_add_u32 v5, v4, 8, v5
s_waitcnt vmcnt(0)
""")
    mm(G, AX, WG_); mm(G+4, AX, WU_)
    for i in range(4): E(f"v_permlane32_swap_b32 v{G+i}, v{G+4+i}")
    for i in range(4): E(f"v_add_f32_dpp v{G+i}, v{G+4+i}, v{G+i} row_ror:8 {DPP}")
    E(f"""
ds_write_b128 v2, v[{G}:{G+3}] offset:4096
s_mov_b64 exec, 1
ds_add_rtn_u32 v6, v19, v20 offset:16
s_mov_b64 exec, -1
v_lshlrev_b32 v7, 4, v0
v_add_u32 v7, {SCR + 4096}, v7
s_waitcnt lgkmcnt(0)
v_readfirstlane_b32 s58, v6
s_cmp_lg_u32 s58, 3
s_cbranch_scc1 L_gpd
""")
    for k in range(4): E(f"ds_read_b128 v[{G+4*k}:{G+4*k+3}], v7 offset:{1024*k}")
    E("s_waitcnt lgkmcnt(0)")
    for st in (8, 4):
        for i in range(st): E(f"v_add_f32 v{G+i}, v{G+i}, v{G+st+i}")
    embed(G)
    E(f"""
s_mov_b32 exec_lo, 0x00ff00ff
s_mov_b32 exec_hi, 0x00ff00ff
global_store_dwordx4 v5, v[{G}:{G+3}], s[26:27] sc1
s_mov_b64 exec, -1
L_gpd:
s_cmp_lg_u32 s3, 0
s_cbranch_scc1 L_noffn
s_lshl_b32 s58, s31, 11
s_add_u32 s58, s58, {GP}
v_and_b32 v4, 15, v0
v_lshl_add_u32 v5, v4, 4, s58
v_lshrrev_b32 v1, 4, v0
v_lshl_add_u32 v5, v1, 9, v5
L_gt:
s_sleep 20
ds_read_b64 v[22:23], v19
s_waitcnt lgkmcnt(0)
v_cmp_gt_u32 vcc, {gtok}, v22
v_cmp_eq_u32 s[58:59], 0, v23
s_and_b64 vcc, vcc, s[58:59]
s_cbranch_scc1 L_gt
""")
    poll([f"global_load_dwordx4 v[{G+4*u}:{G+4*u+3}], v5, s[26:27] offset:{256*u} sc1" for u in range(2)],
         [G, G+4], G+32, 10)
    strip(G, 8)
    fold4(G, G+4)
    rnd_bf16(G); rnd_bf16(G+4)
    c1 = -2 * 0.7978845608028654 * LOG2E
    E(f"""
v_mul_f32 v{G+1}, v{G}, v{G}
v_mov_b32 v{G+2}, {f2u(c1):#x}
v_mul_f32 v{G+1}, {f2u(c1*0.044715):#x}, v{G+1}
v_add_f32 v{G+1}, v{G+1}, v{G+2}
v_mul_f32 v{G+1}, v{G+1}, v{G}
v_exp_f32 v{G+1}, v{G+1}
v_add_f32 v{G+1}, 1.0, v{G+1}
v_rcp_f32 v{G+1}, v{G+1}
v_mul_f32 v{G}, v{G}, v{G+1}
""")
    rnd_bf16(G)
    E(f"""
v_mul_f32 v{G}, v{G}, v{G+4}
v_cvt_pk_bf16_f32 v{G}, v{G}, v{G}
v_lshl_add_u32 v4, v4, 2, v1
v_lshlrev_b32 v4, 1, v4
v_add_u32 v4, {HS}, v4
ds_write_b16 v4, v{G}
v_mov_b32 v4, {FLG}
v_mov_b32 v5, 1
ds_write_b32 v4, v5 offset:24
s_branch L_noffn
""")
    E("L_e2:\n.p2align 12\nL_noffn:")
    if warm: E("s_mov_b64 exec, 0\ns_branch L_ret3 ;;W3_0\nL_ret3:\ns_mov_b64 exec, -1")
    CA, CB, CM, OW, FS, FD, XO, OA, SA, PI, PM = 8, 9, 10, 11, 12, 13, 14, 15, 16, 17, 18
    E(f"""
s_lshl4_add_u32 s58, s28, s30
s_lshl2_add_u32 s58, s58, s3
s_mul_i32 s58, s58, {16*384}
s_add_u32 s58, s58, {AP + 3072}
v_lshrrev_b32 v1, 4, v0
v_and_b32 v4, 15, v0
v_mul_u32_u24 v5, 384, v1
v_add_u32 v5, s58, v5
v_lshl_add_u32 v{CA}, v4, 4, v5
v_and_b32 v6, 3, v0
v_mul_u32_u24 v6, 1536, v6
v_add_u32 v{CM}, v5, v6
s_lshl_b32 s58, s3, 3
s_add_u32 s58, s58, {OS + 1024}
v_mov_b32 v{CB}, s58
v_lshl_add_u32 v5, v4, 2, v1
s_lshl_b32 s58, s3, 8
s_add_u32 s58, s58, {OS}
v_lshl_add_u32 v{OW}, v5, 2, s58
s_and_b32 s58, s2, 7
s_lshl_b32 s58, s58, 5
s_lshr_b32 s59, s2, 3
s_add_u32 s63, s58, s59
s_lshr_b32 s58, s63, 3
s_lshl_b32 s58, s58, 14
s_and_b32 s59, s63, 7
s_lshl4_add_u32 s58, s59, s58
s_add_u32 s58, s58, {FP}
v_lshl_add_u32 v{FS}, v0, 7, s58
s_add_u32 s58, s58, {64*128}
v_min_u32 v5, 55, v0
v_lshl_add_u32 v{FD}, v5, 7, s58
s_lshl_b32 s63, s63, 3
v_lshl_add_u32 v{OA}, v1, 1, s63
global_load_ushort v{XO}, v{OA}, s[4:5]
s_lshl_b32 s58, s2, 7
s_add_u32 s58, s58, {NF}
s_add_u32 s34, s26, s58
s_addc_u32 s35, s27, 0
s_mov_b32 s61, {f2u(LOG2E):#x}
v_lshlrev_b32 v{SA}, 2, v0
v_add_u32 v{SA}, {SCR}, v{SA}
""")
    stamp(5)
    E(f"""
v_mov_b32 v5, {FLG}
L_aw:
s_sleep 30
ds_read_b32 v6, v5 offset:4
s_waitcnt lgkmcnt(0)
v_cmp_eq_u32 vcc, 0, v6
s_cbranch_vccnz L_aw
""")
    E(f"""
L_aw2:
s_sleep 2
ds_read_b32 v6, v5 offset:4
s_waitcnt lgkmcnt(0)
v_cmp_gt_u32 vcc, {c1thr}, v6
s_cbranch_vccnz L_aw2
""")
    stamp(6)
    E(f"""
s_mov_b32 s62, 0
L_hint:
s_load_dword s58, s[34:35], 0 glc
s_waitcnt lgkmcnt(0)
s_cmp_eq_u32 s58, s36
s_cbranch_scc1 L_hinted
s_sleep {hintsleep}
s_add_u32 s62, s62, 1
s_cmp_ge_u32 s62, 0x100
s_cbranch_scc0 L_hint
L_hinted:
""")
    stamp(7)
    M_ = G + 16
    loads = [f"global_load_dwordx4 v[{M_}:{M_+3}], v{CM}, s[26:27] offset:{256-3072} sc1"] + \
            [f"global_load_dwordx4 v[{G+4*k}:{G+4*k+3}], v{CA}, s[26:27] offset:{1536*k-3072} sc1" for k in range(4)]
    ST = 32
    def stp(k): return '\n'.join(f'v_and_b32 v{ST+4*k+i}, s37, v{G+4*k+i}' for i in range(4))
    AC, TW = G + 20, 24
    def tagw(k, r):
        return [f"v_perm_b32 v{TW+k}, v{r+1}, v{r}, s38", f"v_perm_b32 v{TW+5}, v{r+3}, v{r+2}, s39", f"v_bitop3_b32 v{TW+k}, v{TW+k}, v{TW+5}, s36 bitop3:0x56"]
    E("s_mov_b32 s62, 0")
    for l in loads: E(l)
    E("s_branch L_c1\nL_rp:")
    for k in range(5): E(f"v_cmp_ne_u32 s[{40+2*k}:{41+2*k}], 0, v{TW+k}")
    E(f"s_add_u32 s62, s62, 1\ns_cmp_ge_u32 s62, 0x200000\ns_cbranch_scc1 L_c2")
    if hsleep: E(f"s_sleep {hsleep}")
    for k, l in enumerate(loads):
        E(f"s_mov_b64 exec, s[{40+2*k}:{41+2*k}] ;nopad\ns_cbranch_execz L_rp{k} ;nopad\n{l} ;nopad\nL_rp{k}:")
    E("s_mov_b64 exec, -1 ;nopad\ns_waitcnt vmcnt(0)\nL_c1:\ns_waitcnt vmcnt(4)")
    t0 = tagw(0, M_)
    E(f"""
v_and_b32 v22, s37, v{M_}
{t0[0]}
{t0[1]}
v_max_f32_dpp v6, v22, v22 quad_perm:[1,0,3,2] {DPP}
{t0[2]}
s_waitcnt vmcnt(3)
v_max_f32_dpp v6, v6, v6 quad_perm:[2,3,0,1] {DPP}
v_mov_b32 v7, v6
""")
    t1 = tagw(1, G)
    E(f"{t1[0]}\n{t1[1]}\nv_permlane32_swap_b32 v7, v6\nv_max_f32 v6, v6, v7\nv_mov_b32 v7, v6\n{t1[2]}\ns_waitcnt vmcnt(2)")
    t2 = tagw(2, G+4)
    E(f"v_permlane16_swap_b32 v7, v6\nv_max_f32 v6, v6, v7\nv_sub_f32 v5, v22, v6\nv_mul_f32 v5, s61, v5\nv_exp_f32 v5, v5\nv_and_b32 v23, s37, v{M_+1}\n{stp(0)}\n{t2[0]}\n{t2[1]}\n{t2[2]}")
    E(f"v_mul_f32 v7, v5, v23")
    for i in range(4): E(f"v_mul_f32_dpp v{AC+i}, v5, v{ST+i} quad_perm:[0,0,0,0] {DPP}")
    E(stp(1))
    E(f"v_add_f32_dpp v7, v7, v7 quad_perm:[1,0,3,2] {DPP}\ns_waitcnt vmcnt(1)")
    for l in tagw(3, G+8): E(l)
    E(stp(2))
    E(f"v_add_f32_dpp v7, v7, v7 quad_perm:[2,3,0,1] {DPP}\ns_waitcnt vmcnt(0)")
    for l in tagw(4, G+12): E(l)
    E(f"v_mov_b32 v21, v7\nv_or3_b32 v{TW+5}, v{TW}, v{TW+1}, v{TW+2}\nv_or3_b32 v{TW+5}, v{TW+5}, v{TW+3}, v{TW+4}\nv_cmp_ne_u32 vcc, 0, v{TW+5}\ns_cbranch_vccnz L_rp\nL_c2:")
    stamp(8)
    E("v_permlane32_swap_b32 v21, v7")
    E(stp(3))
    for i in range(4): E(f"v_fmac_f32_dpp v{AC+i}, v5, v{ST+4+i} quad_perm:[1,1,1,1] {DPP}")
    E("v_add_f32 v7, v7, v21\nv_mov_b32 v21, v7")
    for i in range(4): E(f"v_fmac_f32_dpp v{AC+i}, v5, v{ST+8+i} quad_perm:[2,2,2,2] {DPP}")
    E("v_permlane16_swap_b32 v21, v7")
    for i in range(4): E(f"v_fmac_f32_dpp v{AC+i}, v5, v{ST+12+i} quad_perm:[3,3,3,3] {DPP}")
    E(f"""
v_add_f32 v7, v7, v21
ds_write_b64 v{CB}, v[6:7]
v_permlane32_swap_b32 v{AC}, v{AC+2}
v_permlane32_swap_b32 v{AC+1}, v{AC+3}
v_add_f32 v{AC}, v{AC}, v{AC+2}
v_add_f32 v{AC+1}, v{AC+1}, v{AC+3}
v_permlane16_swap_b32 v{AC}, v{AC+1}
v_add_f32 v{AC}, v{AC}, v{AC+1}
ds_write_b32 v{OW}, v{AC}
s_waitcnt lgkmcnt(0)
s_barrier
s_cmp_eq_u32 s3, 0
s_cbranch_scc1 L_sred
s_cmp_lg_u32 s3, 1
s_cbranch_scc1 L_end
""")
    poll([f"global_load_dwordx4 v[{G+4}:{G+7}], v{FD}, s[26:27] sc1"], [G+4], 5, sleep)
    strip(G+4, 4)
    E("v_cmp_gt_u32 vcc, 56, v0")
    for i in range(4): E(f"v_cndmask_b32 v{G+4+i}, 0, v{G+4+i}, vcc")
    fold4(G+4)
    row_allreduce([G+4], "v_add_f32")
    rnd_bf16(G+4)
    E(f"""
v_mul_f32 v21, {f2u(-LOG2E):#x}, v{G+4}
v_exp_f32 v21, v21
v_add_f32 v21, 1.0, v21
v_rcp_f32 v21, v21
v_mul_f32 v21, v21, v{G+4}
""")
    rnd_bf16(21)
    E(f"ds_write_b32 v{SA}, v21\ns_waitcnt lgkmcnt(0)\ns_barrier\ns_endpgm\nL_sred:")
    stamp(9)
    E(f"v_lshlrev_b32 v{XO}, 16, v{XO}")
    if ssleep: E(f"s_sleep {ssleep}")
    poll([f"global_load_dwordx4 v[{G}:{G+3}], v{FS}, s[26:27] sc1"], [G], 5, sleep)
    stamp(10)
    E(f"s_barrier\nds_read_b32 v21, v{SA}")
    stamp(11)
    strip(G, 4)
    fold4(G)
    row_allreduce([G], "v_add_f32")
    rnd_bf16(G)
    E(f"s_waitcnt lgkmcnt(0)\nv_mul_f32 v5, v21, v{G}")
    rnd_bf16(5)
    E(f"""
v_add_f32 v5, v5, v{XO}
v_cvt_pk_bf16_f32 v5, v5, v5
s_mov_b32 exec_lo, 0x00010001
s_mov_b32 exec_hi, 0x00010001
global_store_short v{OA}, v5, s[22:23]
s_cmp_lg_u32 s2, 0
s_cbranch_scc1 L_fin
s_mov_b64 exec, 1
v_mov_b32 v5, 0
v_mov_b32 v6, s36
global_store_dword v5, v6, s[26:27] sc1
L_fin:
""")
    if stamps:
        stamp(12); dump_stamps(1, 13)
    if diag is not None:
        k, cond = diag
        E(f"s_sub_u32 s58, s{64+2*k}, s64\ns_lshl_b32 s58, s58, 2")
        if cond is not None: E(cond + "\ns_cselect_b32 s58, s58, 0")
        E("s_add_u32 s58, s58, 6000\nL_spin:\ns_memrealtime s[60:61]\ns_waitcnt lgkmcnt(0)\ns_sub_u32 s59, s60, s64\ns_cmp_lt_u32 s59, s58\ns_cbranch_scc1 L_spin")
    E("L_end:\ns_endpgm")

    E("L_stail:")
    if stamps: E("s_mul_i32 s84, s33, 100\ns_add_u32 s84, s84, s64")
    R = KF
    E(f"v_readfirstlane_b32 s33, v{ORD}")
    cross_rows(VL, T1, "v_add_f32")
    E(f"""
s_cmp_eq_u32 s33, 0
s_cbranch_scc1 L_first
v_cmp_ne_u32 vcc, s33, v{S_+4}
s_cbranch_vccz L_pw2
L_pw:
""")
    rd_part()
    E(f"""
ds_read_b32 v{S_+5}, v{FLA}
s_waitcnt lgkmcnt(1)
v_cmp_ne_u32 vcc, s33, v{S_+4}
s_cbranch_vccnz L_pw
L_pw2:
v_max_f32 v{S_}, v{F}, v{VM}
v_sub_f32 v{VM}, v{VM}, v{S_}
v_sub_f32 v{F}, v{F}, v{S_}
v_mul_f32 v{VM}, s61, v{VM}
v_mul_f32 v{F}, s61, v{F}
v_exp_f32 v{VM}, v{VM}
v_exp_f32 v{F}, v{F}
""")
    for d in range(4):
        for e in range(4): E(f"v_cndmask_b32 v{O+8*d+e}, v{O+8*d+e}, v{O+8*d+4+e}, s[20:21]")
    E(f"v_mul_f32 v{S_+1}, v{VM}, v{VL}\nv_fmac_f32 v{S_+1}, v{F}, v{F+1}")
    for d in range(4):
        for e in (0, 2): E(f"v_pk_mul_f32 v[{R+4*d+e}:{R+4*d+e+1}], v[{R+4*d+e}:{R+4*d+e+1}], v[{F}:{F+1}] op_sel_hi:[1,0]")
    E("s_cmp_eq_u32 s33, 3\ns_cbranch_scc1 L_last")
    for d in range(4):
        for e in (0, 2): E(f"v_pk_fma_f32 v[{O+8*d+e}:{O+8*d+e+1}], v[{O+8*d+e}:{O+8*d+e+1}], v[{VM}:{VM+1}], v[{R+4*d+e}:{R+4*d+e+1}] op_sel_hi:[1,0,1]")
    E("s_branch L_wr\nL_first:")
    for d in range(4):
        for e in range(4): E(f"v_cndmask_b32 v{O+8*d+e}, v{O+8*d+e}, v{O+8*d+4+e}, s[20:21]")
    E(f"v_mov_b32 v{S_}, v{VM}\nv_mov_b32 v{S_+1}, v{VL}\nL_wr:")
    for d in range(4): E(f"ds_write_b128 v{LL}, v[{O+8*d}:{O+8*d+3}] offset:{1024*d}")
    E(f"ds_write_b64 v{MLW}, v[{S_}:{S_+1}]\ns_mov_b64 exec, 1\nds_add_u32 v{FLA}, v{ONE} offset:12\ns_mov_b64 exec, -1")
    E("s_branch L_nt\nL_last:")
    tagS = ["s36", "s16", "s17", "s18"]
    for d in range(4):
        for e in (0, 2): E(f"v_pk_fma_f32 v[{O+8*d+e}:{O+8*d+e+1}], v[{O+8*d+e}:{O+8*d+e+1}], v[{VM}:{VM+1}], v[{R+4*d+e}:{R+4*d+e+1}] op_sel_hi:[1,0,1]")
        for e in range(4): E(f"v_bfi_b32 v{O+8*d+e}, v{MSK}, v{O+8*d+e}, {tagS[e]}")
        E(f"global_store_dwordx4 v{APA if d < 2 else APB}, v[{O+8*d}:{O+8*d+3}], s[26:27] offset:{128*(d&1)} sc1")
    E(f"""
v_bfi_b32 v{S_}, v{MSK}, v{S_}, s36
v_bfi_b32 v{S_+1}, v{MSK}, v{S_+1}, s16
v_mov_b32 v{S_+2}, s17
v_mov_b32 v{S_+3}, s18
s_mov_b64 exec, 0xffff
global_store_dwordx4 v{APM}, v[{S_}:{S_+3}], s[26:27] offset:256 sc1
s_mov_b64 exec, 1
ds_add_u32 v{FLA}, v{ONE} offset:4
s_mov_b64 exec, -1
""")
    if stamps: E("s_memrealtime s[74:75]")
    E(f"""
L_nt:
s_waitcnt lgkmcnt(0)
s_cmp_lg_u32 s19, {63 - hx}
s_cbranch_scc1 L_wj
v_mov_b32 v{T0}, s36
global_store_dword v{NFA}, v{T0}, s[26:27] sc1
L_wj:
""")
    if relth is not None:
        E(f"s_cmp_lt_i32 s19, {relth}\ns_cbranch_scc1 L_nr\nv_mov_b32 v{T0}, 8\ns_mov_b64 exec, 1\nds_add_u32 v{FLA}, v{T0} offset:28\ns_mov_b64 exec, -1\nL_nr:")
    E(f"""
s_lshl_b32 s12, s33, 1
s_sub_u32 s12, s12, {wl}
""")
    def w_wait(lbl):
        E(f"""
s_branch {lbl}_c
{lbl}:
s_sleep {tsl}
{lbl}_c:
ds_read_b64 v[{S_+4}:{S_+5}], v{FLA}
ds_read_b32 v{S_+6}, v{FLA} offset:28
s_waitcnt lgkmcnt(0)
v_cmp_gt_i32 vcc, s39, v{S_+4}
v_cmp_gt_u32 s[58:59], 5, v{S_+5}
s_and_b64 s[58:59], vcc, s[58:59]
v_cmp_gt_i32 vcc, s12, v{S_+6}
s_or_b64 vcc, vcc, s[58:59]
s_cbranch_scc1 {lbl}
""")
    WP = f"s_mov_b64 exec, 1\nds_add_u32 v{FLA}, v{ONE}\nds_add_u32 v{FLA}, v{ONE} offset:28\ns_mov_b64 exec, -1"
    w_wait("L_wa")
    if stamps: E("s_memrealtime s[96:97]")
    ld_w(40, WD)
    E("s_add_u32 s39, s39, 1\ns_add_u32 s12, s12, 1")
    w_wait("L_wb")
    ld_w(44, WO)
    E(f"s_waitcnt vmcnt({8 + YW})\n{WP}")
    E(f"""
s_cmp_ge_u32 s31, 56
s_cbranch_scc1 L_nod
L_hw:
ds_read_b32 v{T1}, v{FLA} offset:24
ds_read_b128 v[{P}:{P+3}], v{HSA}
s_waitcnt lgkmcnt(0)
v_cmp_eq_u32 vcc, 0, v{T1}
s_cbranch_vccnz L_hw
""")
    build_A(KF, P, SELS)
    E("s_waitcnt vmcnt(8)")
    def g2_fin(S_=S_):
        E(f"v_permlane32_swap_b32 v{S_}, v{S_+2}\nv_permlane32_swap_b32 v{S_+1}, v{S_+3}")
        for i in range(2): E(f"v_add_f32_dpp v{S_+i}, v{S_+2+i}, v{S_+i} row_ror:8 {DPP}")
        E(f"v_permlane32_swap_b32 v{S_}, v{S_+2}\nv_permlane32_swap_b32 v{S_+1}, v{S_+3}")
        for e in range(4): E(f"v_bfi_b32 v{S_+e}, v{MSK}, v{S_+e}, {tagS[e]}")
    mm(S_, KF, WD)
    if latewo:
        g2_fin()
        E(f"s_cmp_ge_u32 s33, {latewo}\ns_cbranch_scc1 L_dst\ns_waitcnt vmcnt({YW})\n{WP}")
    else:
        E(f"s_waitcnt vmcnt({YW})\n{WP}")
        g2_fin()
    E(f"s_waitcnt vmcnt(0)\nL_dst:\ns_mov_b64 exec, 0x00ff00ff\nglobal_store_dwordx4 v{FAD}, v[{S_}:{S_+3}], s[26:27] sc1\ns_mov_b64 exec, -1\ns_branch L_x2\nL_nod:\ns_waitcnt vmcnt({YW})\n{WP}\ns_waitcnt vmcnt(0)\nL_x2:")
    E(f"v_mov_b32 v{LL}, {OS + 1024}")
    stamp(6)
    E("s_barrier")
    stamp(7)
    E(f"ds_read_b128 v[{F}:{F+3}], v{LL}\nds_read_b128 v[{F+4}:{F+7}], v{LL} offset:16")
    for k in range(4):
        for h in range(2):
            E(f"ds_read_b128 v[{VF+8*k+4*h}:{VF+8*k+4*h+3}], v{OSA} offset:{256*k + 16*h}")
    E("s_waitcnt lgkmcnt(8)")
    E(f"v_max3_f32 v{T0}, v{F}, v{F+2}, v{F+4}\nv_max_f32 v{T0}, v{T0}, v{F+6}")
    for k in range(4): E(f"v_sub_f32 v{F+2*k}, v{F+2*k}, v{T0}")
    for k in range(4): E(f"v_mul_f32 v{F+2*k}, s61, v{F+2*k}")
    for k in range(4): E(f"v_exp_f32 v{F+2*k}, v{F+2*k}")
    E(f"v_mul_f32 v{T0}, v{F}, v{F+1}")
    for k in range(1, 4): E(f"v_fmac_f32 v{T0}, v{F+2*k}, v{F+2*k+1}")
    E(f"v_rcp_f32 v{T0}, v{T0}\ns_waitcnt lgkmcnt(0)")
    for i in range(0, 8, 2): E(f"v_pk_mul_f32 v[{VF+i}:{VF+i+1}], v[{VF+i}:{VF+i+1}], v[{F}:{F+1}] op_sel_hi:[1,0]")
    for k in range(1, 4):
        for i in range(0, 8, 2): E(f"v_pk_fma_f32 v[{VF+i}:{VF+i+1}], v[{VF+8*k+i}:{VF+8*k+i+1}], v[{F+2*k}:{F+2*k+1}], v[{VF+i}:{VF+i+1}] op_sel_hi:[1,0,1]")
    for i in range(0, 8, 2): E(f"v_pk_mul_f32 v[{VF+i}:{VF+i+1}], v[{VF+i}:{VF+i+1}], v[{T0}:{T0+1}] op_sel_hi:[1,0]")
    pack(P, VF, 4)
    build_A1(KF, P, SELS, 0)
    for i in range(8):
        if i < 7: build_A1(KF, P, SELS, i + 1)
        if latewo: E(f"s_waitcnt vmcnt({8 - i})")
        mm1(S_+4 if latewo else S_, KF, WO, i)
    S2 = S_+4 if latewo else S_
    g2_fin(S2)
    E(f"s_mov_b64 exec, 0x00ff00ff\nglobal_store_dwordx4 v{FAS}, v[{S2}:{S2+3}], s[26:27] sc1")
    if stamps:
        stamp(9)
        E(f"s_mov_b64 exec, 1\ns_lshl2_add_u32 s58, s2, s3\ns_lshl_b32 s58, s58, 4\ns_add_u32 s58, s58, {STAMPS + 0x10000}\nv_mov_b32 v1, s58\nv_mov_b32 v4, s90\nv_mov_b32 v5, s72\ns_sub_u32 s59, s84, s64\nv_mov_b32 v6, s59\nv_mov_b32 v7, s10\nglobal_store_dwordx4 v1, v[4:7], s[26:27]\nv_mov_b32 v8, s96\nv_mov_b32 v9, s76\nv_mov_b32 v10, s33\nv_mov_b32 v11, s62\nv_add_u32 v1, 0x4000, v1\nglobal_store_dwordx4 v1, v[8:11], s[26:27]")
        E(f"s_mov_b64 exec, 0xffff\nv_writelane_b32 v244, s96, 14\nv_writelane_b32 v244, s13, 15\ns_lshl2_add_u32 s58, s2, s3\ns_lshl_b32 s58, s58, 6\ns_add_u32 s58, s58, {STAMPS + 0x20000}\nv_lshl_add_u32 v1, v0, 2, s58\nglobal_store_dword v1, v244, s[26:27]")
        E("s_cmp_lg_u32 s33, 3\ns_cbranch_scc1 L_end2")
        E('s_mov_b32 s86, s94\ns_mov_b32 s88, s90'); dump_stamps(0, 13)
        E("L_end2:")
    E("s_endpgm")
    NV = 248
    E(f'''.section .rodata,"a"
.p2align 6
.amdhsa_kernel {KN}
.amdhsa_next_free_vgpr {NV}
.amdhsa_next_free_sgpr 102
.amdhsa_accum_offset {NV}
.amdhsa_group_segment_fixed_size 0
.amdhsa_kernarg_size 96
.amdhsa_user_sgpr_count 2
.amdhsa_user_sgpr_kernarg_segment_ptr 1
.amdhsa_system_sgpr_workgroup_id_x 1
.amdhsa_float_denorm_mode_32 3
.end_amdhsa_kernel''')
    hdr = f"; fused decode block: LN -> (GQA attention -> wo) * silu(GEGLU FFN) + x ; generated by dev/gen.py\n; @launch grid=(256,1,1) block=(512,1,1) lds={LDS_TOTAL}\n"
    if "wlin" in exp:
        i = E.L.index(f"v_lshl_add_u32 v{VW}, v{T0}, 14, v{T1}")
        E.L[i] = f"v_lshlrev_b32 v{VW}, 4, v0"
        i = E.L.index("s_cselect_b32 s42, 131072, 0")
        assert E.L[i+2] == "s_lshl_b32 s59, s59, 7"
        E.L[i+2] = "s_lshl_b32 s59, s59, 13"
    if "w512" in exp:
        i = E.L.index(f"v_lshl_add_u32 v{VW}, v{T0}, 14, v{T1}")
        E.L[i:i+1] = [f"v_lshrrev_b32 v{VW}, 5, v0", f"v_lshlrev_b32 v{VW}, 14, v{VW}", f"v_and_b32 v{T1}, 31, v0", f"v_lshl_add_u32 v{VW}, v{T1}, 4, v{VW}"]
        i = E.L.index("s_cselect_b32 s42, 131072, 0")
        E.L[i+1:i+3] = ["s_lshl_b32 s59, s29, 9", "s_lshl_b32 s58, s3, 15", "s_add_u32 s59, s59, s58"]
    if "nohop1" in exp:
        i0 = E.L.index("L_hint:"); i1 = E.L.index("L_c2:")
        E.L[i0:i1+1] = []
    if "noap" in exp:
        E.L = [l for l in E.L if not (l.startswith(f"global_store_dwordx4 v{APA},") or l.startswith(f"global_store_dwordx4 v{APB},") or l.startswith(f"global_store_dwordx4 v{APM},"))]
    if "noq" in exp:
        i0 = E.L.index("L_qgo:"); i1 = E.L.index("L_pok0:")
        E.L[i0+1:i1+1] = []
    if "q1" in exp:
        E.L = [l for l in E.L if not (l.startswith("global_load_dwordx4") and ", v4, s[26:27] offset:" in l and "offset:0 " not in l)]
        i0 = E.L.index("L_chk0:"); i1 = E.L.index("L_pok0:")
        E.L[i0+2:i1] = []
    if "nogp" in exp:
        E.L = [l for l in E.L if not l.startswith("global_store_dwordx4 v5, v[160:163]")]
        i0 = E.L.index("L_gt:"); i1 = E.L.index("L_pok1:")
        E.L[i0:i1+1] = []
    text = hdr + E.finish()
    if warm:
        import pads
        text, cnt = pads.place(text, [(KN, "L_e0", "PS", False), ("L_loop", "L_e1", "PL", True), ("L_aux", "L_e2", "PA", True), ("L_noffn", None, "PT", False)])
        names = lambda p: [f"{p}{i}" for i in range(cnt[p])]
        PS, PL, PA, PT = names("PS"), names("PL"), names("PA"), names("PT")
        early = PA[:2] + PS[:2]
        rest = PA[2:] + PL + PS[2:]
        chains = {"W1": [[x] for x in early] + [[]] * (4 - len(early)), "W2": [rest[i::4] for i in range(4)], "W3": [PT]}
        for ph, ret in (("W1", "L_ret1"), ("W2", "L_ret2"), ("W3", "L_ret3")):
            for w, ch in enumerate(chains[ph]):
                seq = ch + [ret]
                text = re.sub(rf"{ret} ;;{ph}_{w}\b", seq[0], text)
                for a_, b_ in zip(seq, seq[1:]): text = text.replace(f"@{a_}@", b_)
        assert "@P" not in text
    return text

if __name__ == "__main__":
    import json
    kw = json.loads(sys.argv[2]) if len(sys.argv) > 2 else {}
    open(sys.argv[1], "w").write(gen(**kw))
```

```python
import sys, struct, re
from asmlib import Asm
KN = "recurrent_scan__gqa_block_cached__glu_gated_geglu__decode_kernel"

def f2u(x): return struct.unpack("<I", struct.pack("<f", x))[0]

CNT, QP, NF, FP, AP, GP, STAMPS = 0x300000, 0x10000, 0x40000, 0x80000, 0x100000, 0x280000, 0x400000
PART = 131072
MLL  = PART + 4096
QL   = MLL + 512
SCR  = QL + 2048
OS   = SCR + 8192
HS   = OS + 1024 + 32
FLG  = HS + 128
LDS_TOTAL = FLG + 64
LOG2E = 1.4426950408889634
DPP = "row_mask:0xf bank_mask:0xf"

def gen(pk="nt", pw="nt", stamps=False, diag=None, warm=True, Y=4, YW=4, wl=2, Li=2, tk=12, nret=464, tlate=True, hoff=72, hx=8,
        ltok=9, gy=4, gw=7, latewo=0, relth=32, np2=False, esc=1, nesc=None, gtok=40, sleep=1, hsleep=1, hintsleep=1, tsl=1, ssleep=0, c1thr=5, cstr=256, um=3, fast1=True, swap=True, earr=False, S=6, exp=()):
    NK = S // 2
    NV0 = (S + 1) // 2
    E = Asm()
    def stamp(i):
        if stamps: E(f"s_memrealtime s[{64+2*i}:{65+2*i}]\ns_waitcnt lgkmcnt(0)")
    nls = [0]
    def lstamp(i, t):
        if stamps:
            nls[0] += 1
            E(f"s_cmp_eq_u32 s33, {t}\ns_cbranch_scc0 L_ls{nls[0]}"); stamp(i); E(f"L_ls{nls[0]}:")
    def dump_stamps(role, n):
        E(f"s_mov_b64 exec, 1\ns_lshl_b32 s58, s2, 8\ns_add_u32 s58, s58, {STAMPS + role*128}\nv_mov_b32 v1, s58")
        for i in range(n):
            E(f"v_mov_b32 v2, s{64+2*i}\nglobal_store_dword v1, v2, s[26:27] offset:{4*i}")
    def row_allreduce(regs, op, rs=(8, 4, 2, 1)):
        for r in rs:
            for v in regs: E(f"{op}_dpp v{v}, v{v}, v{v} row_ror:{r} {DPP}")
    def cross_rows(v, t, op):
        E(f"v_mov_b32 v{t}, v{v}\nv_permlane32_swap_b32 v{t}, v{v}\n{op} v{v}, v{v}, v{t}")
        E(f"v_mov_b32 v{t}, v{v}\nv_permlane16_swap_b32 v{t}, v{v}\n{op} v{v}, v{v}, v{t}")
    def wave_allreduce(v, t, op):
        row_allreduce([v], op); cross_rows(v, t, op)
    def fold4(*aa):
        for a in aa: E(f"v_permlane32_swap_b32 v{a}, v{a+2}\nv_permlane32_swap_b32 v{a+1}, v{a+3}")
        for a in aa: E(f"v_add_f32 v{a}, v{a}, v{a+2}\nv_add_f32 v{a+1}, v{a+1}, v{a+3}")
        for a in aa: E(f"v_permlane16_swap_b32 v{a}, v{a+1}")
        for a in aa: E(f"v_add_f32 v{a}, v{a}, v{a+1}")
    def rnd_bf16(v):
        E(f"v_cvt_pk_bf16_f32 v{v}, v{v}, v{v}\nv_and_b32 v{v}, 0xffff0000, v{v}")
    def unpack(dst, src, n):
        for i in range(n): E(f"v_lshlrev_b32 v{dst+2*i}, 16, v{src+i}\nv_and_b32 v{dst+2*i+1}, 0xffff0000, v{src+i}")
    def pack(dst, src, n):
        for i in range(n): E(f"v_cvt_pk_bf16_f32 v{dst+i}, v{src+2*i}, v{src+2*i+1}")
    def make_sel(SEL, t):
        E(f"""
v_and_b32 v{t}, 1, v0
v_cmp_eq_u32 vcc, 1, v{t}
v_mov_b32 v{t+1}, 0x0c0c0100
v_mov_b32 v{t+2}, 0x01000c0c
v_cndmask_b32 v{t+1}, v{t+1}, v{t+2}, vcc
v_mov_b32 v{t+2}, 0x0c0c0302
v_mov_b32 v{t+3}, 0x03020c0c
v_cndmask_b32 v{t+2}, v{t+2}, v{t+3}, vcc
v_bfe_u32 v{t}, v0, 1, 2
v_mov_b32 v{t+3}, 0x0c0c0c0c
""")
        for k in range(4):
            E(f"v_cmp_eq_u32 vcc, {k}, v{t}\nv_cndmask_b32 v{SEL+2*k}, v{t+3}, v{t+1}, vcc\nv_cndmask_b32 v{SEL+2*k+1}, v{t+3}, v{t+2}, vcc")
    def build_A1(dst, pk_, SEL, i):
        for k in range(4):
            E(f"v_perm_b32 v{dst+4*i+k}, v{pk_+i//2}, v{pk_+i//2}, v{SEL+2*k+(i&1)}")
    def build_A(dst, pk_, SEL):
        for i in range(8): build_A1(dst, pk_, SEL, i)
    def mm1(d, a, b, i):
        c = "0" if i == 0 else f"v[{d}:{d+3}]"
        E(f"v_mfma_f32_16x16x32_bf16 v[{d}:{d+3}], v[{a+4*i}:{a+4*i+3}], v[{b+4*i}:{b+4*i+3}], {c}")
    def mm(d, a, b, wait=None):
        for i in range(8):
            if wait: E(wait(i))
            mm1(d, a, b, i)
    def calc_cl():
        E("""
s_and_b32 s59, s2, 7
s_lshl3_add_u32 s31, s28, s59
s_sub_u32 s59, s59, s28
s_sub_u32 s59, s59, s28
s_sub_u32 s59, s59, 2
s_and_b32 s59, s59, 7
s_mul_i32 s58, s28, 6
s_add_u32 s58, s58, s59
s_add_u32 s58, s58, 32
s_cmp_lt_u32 s59, 6
s_cselect_b32 s58, s58, 63
s_bitcmp1_b32 s2, 5
s_cselect_b32 s31, s58, s31
""")

    E(f'.amdgcn_target "amdgcn-amd-amdhsa--gfx950"\n.text\n.p2align 12\n.globl {KN}\n.p2align 8\n.type {KN},@function\n{KN}:')
    E(f"""
s_load_dwordx16 s[4:19], s[0:1], 0
s_load_dwordx8 s[20:27], s[0:1], 64
s_cmp_ge_u32 s2, 256
s_cbranch_scc1 L_end0
v_and_b32 v2, 60, v0
v_add_u32 v2, {FLG}, v2
v_mov_b32 v5, 0
ds_write_b32 v2, v5
v_lshrrev_b32 v1, 6, v0
v_and_b32 v0, 63, v0
""")
    if stamps: E("s_memrealtime s[64:65]")
    E("""
v_readfirstlane_b32 s3, v1
s_bfe_u32 s29, s2, 0x20003
s_lshr_b32 s28, s2, 6
s_bfe_u32 s58, s2, 0x10005
s_and_b32 s59, s2, 7
s_lshl3_add_u32 s30, s58, s59
s_and_b32 s32, s2, 63
""")
    if swap: E("s_bitcmp1_b32 s3, 2\ns_cbranch_scc1 L_str")
    else: E("s_cmp_lt_u32 s3, 4\ns_cbranch_scc1 L_str")
    XF, XR, WF, AX, WG_, WU_, SELA, TG, G = 8, 16, 20, 52, 84, 116, 148, 156, 160
    E(f"""
s_setprio 3
s_and_b32 s3, s3, 3
v_lshlrev_b32 v1, 5, v0
v_lshrrev_b32 v2, 3, v0
v_and_b32 v4, 7, v0
v_lshlrev_b32 v4, 4, v4
v_lshl_add_u32 v4, v2, 16, v4
s_lshl2_add_u32 s58, s29, s3
s_lshl_b32 s59, s58, 7
v_lshl_add_u32 v3, v2, 4, s59
s_lshl_b32 s58, s58, 19
s_lshl4_add_u32 s59, s28, s30
s_lshl_b32 s59, s59, 7
s_add_u32 s58, s58, s59
s_waitcnt lgkmcnt(0)
global_load_dwordx4 v[{XF}:{XF+3}], v1, s[4:5]
global_load_dwordx4 v[{XF+4}:{XF+7}], v1, s[4:5] offset:16
global_load_dwordx4 v[{XR}:{XR+3}], v3, s[4:5]
s_add_u32 s10, s10, s58
s_addc_u32 s11, s11, 0
""")
    for i in range(8):
        E(f"global_load_dwordx4 v[{WF+4*i}:{WF+4*i+3}], v4, s[10:11] {pw}")
        if i < 7: E("v_add_u32 v4, 0x2000, v4")
    E("s_load_dword s36, s[26:27], 0")
    E("s_barrier")
    E("s_branch L_aux\nL_end0:\ns_endpgm")

    LDA, LDB, LDA2, LDB2, VW, LL = 2, 3, 4, 5, 6, 7
    KA, VA = 8, 12
    VM, VL, T0, T1 = 20, 21, 22, 23
    QF, KF, VF, S_, F, P, O, WD, WO, SELS = 24, 40, 72, 104, 112, 120, 124, 156, 188, 220
    FAS, FAD, OSA, APA, APM, FLA, ONE, MSK, ORD, HSA, APB, NFA, MLW, AR2, TWO = 228, 229, 230, 231, 232, 233, 234, 235, 236, 237, 238, 239, 240, 241, 242
    SS = WD
    E("L_str:\ns_and_b32 s3, s3, 3")
    if warm:
        E("s_mov_b64 exec, 0")
        for w in range(3): E(f"s_cmp_eq_u32 s3, {w}\ns_cbranch_scc1 L_ret1 ;;W1_{w}")
        E("s_branch L_ret1 ;;W1_3\nL_ret1:\ns_mov_b64 exec, -1")
    E(f"""
s_waitcnt lgkmcnt(0)
s_barrier
s_load_dword s36, s[26:27], 0
v_mov_b32 v{FLA}, {FLG}
v_mov_b32 v{ONE}, 1
v_mov_b32 v{TWO}, 2
s_cmp_lg_u32 s3, 0
s_cbranch_scc1 L_noini2
s_cmp_lg_u32 s32, 0
s_cbranch_scc1 L_noinit
s_mul_i32 s59, s28, {8*cstr}
s_add_u32 s59, s59, {CNT}
v_mul_u32_u24 v{T0}, {cstr}, v0
v_add_u32 v{T0}, s59, v{T0}
v_mov_b32 v{T1}, 0
s_mov_b64 exec, 15
v_mov_b32 v{T1}, {64*S}
s_mov_b64 exec, 31
global_store_dword v{T0}, v{T1}, s[26:27] sc1
s_waitcnt vmcnt(0)
L_noinit:
s_mov_b64 exec, 1
ds_add_u32 v{FLA}, v{ONE} offset:20
s_mov_b64 exec, -1
L_noini2:
""")
    if warm:
        E("s_mov_b64 exec, 0")
        for w in range(3): E(f"s_cmp_eq_u32 s3, {w}\ns_cbranch_scc1 L_ret2 ;;W2_{w}")
        E("s_branch L_ret2 ;;W2_3\nL_ret2:\ns_mov_b64 exec, -1")
    E(f"""
v_lshrrev_b32 v1, 4, v0
v_and_b32 v{LDA}, 15, v0
v_lshlrev_b32 v{LDB}, 1, v1
v_xor_b32 v{LDA}, v{LDA}, v{LDB}
v_lshlrev_b32 v{LDA}, 4, v{LDA}
v_lshl_add_u32 v{LDA}, v1, 8, v{LDA}
v_xor_b32 v{LDB}, 0x80, v{LDA}
v_add_u32 v{LDA2}, 0x1000, v{LDA}
v_add_u32 v{LDB2}, 0x1000, v{LDB}
s_mul_i32 s38, s28, {hoff}
s_add_u32 s38, s38, s3
s_lshl2_add_u32 s35, s32, s38
s_lshl_b32 s59, s28, 24
s_lshl_b32 s34, s3, 15
s_add_u32 s54, s6, s59
s_addc_u32 s55, s7, 0
s_add_u32 s56, s8, s59
s_addc_u32 s57, s9, 0
s_lshr_b32 s39, s2, 3
s_add_u32 s39, s39, s3
s_and_b32 s39, s39, 3
""")
    if um == 3: E("s_lshr_b32 s58, s32, 3\ns_xor_b32 s35, s32, s58\ns_lshl_b32 s58, s39, 6\ns_add_u32 s35, s35, s58\ns_add_u32 s35, s35, s38\ns_sub_u32 s35, s35, s3")
    E(f"s_lshl_b32 s39, s39, 1\ns_add_u32 s39, s39, {4 - Li}")
    def ld_w(srd, dst):
        for i in range(8):
            so = "0" if i < 2 else f"s{50 + i//2}"
            if "wlin" in exp:
                so = "0" if i < 4 else "s51"
                E(f"buffer_load_dwordx4 v[{dst+4*i}:{dst+4*i+3}], v{VW}, s[{srd}:{srd+3}], {so} offen offset:{(i&3)*1024} {pw}")
                continue
            E(f"buffer_load_dwordx4 v[{dst+4*i}:{dst+4*i+3}], v{VW}, s[{srd}:{srd+3}], {so} offen offset:{(i&1)*2048} {pw}")
    def tok_wait(lbl, kv=False):
        if kv and esc:
            E(f"""
s_branch {lbl}_c
{lbl}:
s_sleep {tsl}
{lbl}_c:
ds_read_b64 v[{S_+4}:{S_+5}], v{FLA}
s_waitcnt lgkmcnt(0)
v_cmp_gt_i32 vcc, s39, v{S_+4}
v_cmp_gt_u32 s[58:59], {esc}, v{S_+5}
s_and_b64 vcc, vcc, s[58:59]
s_cbranch_scc1 {lbl}
""")
            return
        E(f"""
s_branch {lbl}_c
{lbl}:
s_sleep {tsl}
{lbl}_c:
ds_read_b32 v{S_+4}, v{FLA}
s_waitcnt lgkmcnt(0)
v_cmp_gt_i32 vcc, s39, v{S_+4}
s_cbranch_vccnz {lbl}
""")
    def take_turn():
        E(f"s_mov_b64 exec, 1\nds_add_rtn_u32 v{S_+4}, v{FLA}, v{TWO} offset:28\ns_mov_b64 exec, -1\ns_waitcnt lgkmcnt(0)\nv_readfirstlane_b32 s39, v{S_+4}\ns_add_u32 s39, s39, {8 + 4 - Li}")
    def tok_pass(fla, one):
        E(f"s_mov_b64 exec, 1\nds_add_u32 v{fla}, v{one}\ns_mov_b64 exec, -1")
    E(f"""
s_lshl4_add_u32 s31, s28, s30
s_mov_b32 s42, {56*2048}
s_lshl2_add_u32 s59, s29, s3
s_lshl_b32 s59, s59, 7
s_mul_i32 s58, s31, {56*2048}
s_add_u32 s58, s58, s59
s_add_u32 s40, s20, s58
s_addc_u32 s41, s21, 0
s_mov_b32 s43, 0x20000
s_lshl4_add_u32 s58, s28, s30
s_lshl_b32 s58, s58, 17
s_add_u32 s58, s58, s59
s_add_u32 s44, s12, s58
s_addc_u32 s45, s13, 0
s_mov_b32 s46, {64*2048}
s_mov_b32 s47, 0x20000
s_movk_i32 s51, 0x1000
s_movk_i32 s52, 0x2000
s_movk_i32 s53, 0x3000
v_lshrrev_b32 v{T0}, 3, v0
v_and_b32 v{T1}, 7, v0
v_lshlrev_b32 v{T1}, 4, v{T1}
v_lshl_add_u32 v{VW}, v{T0}, 14, v{T1}
v_lshlrev_b32 v{OSA}, 5, v{T0}
v_add_u32 v{OSA}, {OS}, v{OSA}
v_lshlrev_b32 v{HSA}, 4, v{T0}
v_add_u32 v{HSA}, {HS}, v{HSA}
s_lshl_b32 s58, s3, 15
v_and_b32 v{T0}, 15, v0
v_and_b32 v{T1}, 7, v0
v_lshlrev_b32 v{T1}, 1, v{T1}
v_xor_b32 v{T1}, v{T1}, v1
v_lshlrev_b32 v{T1}, 4, v{T1}
v_lshl_add_u32 v{KA}, v{T0}, 8, v{T1}
v_add_u32 v{KA}, s58, v{KA}
v_xor_b32 v{KA+1}, 64, v{KA}
v_xor_b32 v{KA+2}, 0x80, v{KA}
v_xor_b32 v{KA+3}, 0xc0, v{KA}
s_add_u32 s58, s58, 0x4000
v_lshrrev_b32 v{T0}, 2, v0
v_and_b32 v{T1}, 7, v{T0}
v_lshlrev_b32 v{T1}, 5, v{T1}
v_lshl_add_u32 v{VA}, v{T0}, 8, v{T1}
v_and_b32 v{T1}, 3, v0
v_lshl_add_u32 v{VA}, v{T1}, 3, v{VA}
v_add_u32 v{VA}, s58, v{VA}
""")
    for db in range(1, 8): E(f"v_xor_b32 v{VA+db}, {db*32}, v{VA}")
    E(f"v_mov_b32 v{VM}, 0xff7f0000\nv_mov_b32 v{VL}, 0")
    for i in range(32): E(f"v_mov_b32 v{O+i}, 0")
    E("s_waitcnt lgkmcnt(0)")
    make_sel(SELS, F)
    E(f"""
v_lshlrev_b32 v{LL}, 4, v0
v_add_u32 v{LL}, {PART}, v{LL}
v_lshlrev_b32 v{MLW}, 3, v0
v_add_u32 v{MLW}, {MLL}, v{MLW}
s_lshl_b32 s58, s28, 10
s_add_u32 s58, s58, s32
s_mul_i32 s58, s58, 384
s_add_u32 s58, s58, {AP}
v_and_b32 v{T0}, 7, v0
v_bfe_u32 v{T1}, v0, 3, 1
v_mul_u32_u24 v{APA}, {2*64*384}, v{T0}
v_add_u32 v{APA}, s58, v{APA}
v_mul_u32_u24 v{APM}, {64*384}, v{T1}
v_add_u32 v{APM}, v{APM}, v{APA}
v_lshl_add_u32 v{APA}, v{T1}, 6, v{APA}
v_lshl_add_u32 v{APA}, v1, 4, v{APA}
v_add_u32 v{APB}, {64*384}, v{APA}
s_lshl_b32 s58, s28, 13
s_add_u32 s58, s58, {NF}
v_lshl_add_u32 v{NFA}, v0, 7, s58
s_mul_i32 s58, s28, {8*cstr}
s_add_u32 s58, s58, {CNT + 4*cstr}
s_add_u32 s14, s26, s58
s_addc_u32 s15, s27, 0
v_mov_b32 v{MSK}, 0xffffff00
s_lshl3_add_u32 s58, s28, s3
s_mul_i32 s58, s58, {cstr}
s_add_u32 s58, s58, {CNT}
s_add_u32 s48, s26, s58
s_addc_u32 s49, s27, 0
s_lshl2_add_u32 s58, s29, s3
s_lshl_b32 s58, s58, 15
s_add_u32 s58, s58, {FP}
v_bfe_u32 v{T0}, v0, 2, 1
v_lshl_add_u32 v{FAS}, v{T0}, 14, s58
v_and_b32 v{T0}, 3, v0
v_lshl_add_u32 v{FAS}, v{T0}, 5, v{FAS}
v_bfe_u32 v{T0}, v0, 4, 1
v_lshl_add_u32 v{FAS}, v{T0}, 4, v{FAS}
s_add_u32 s59, s31, 64
s_lshl_b32 s59, s59, 7
v_add_u32 v{FAD}, s59, v{FAS}
s_lshl4_add_u32 s58, s28, s30
s_lshl_b32 s58, s58, 7
v_add_u32 v{FAS}, s58, v{FAS}
s_add_u32 s36, s36, 0x01010101
s_lshr_b32 s16, s36, 8
s_lshr_b32 s17, s36, 16
s_lshr_b32 s18, s36, 24
s_mov_b32 s33, 0
s_mov_b32 s60, {f2u(128 ** -0.5):#x}
s_mov_b32 s61, {f2u(LOG2E):#x}
s_mov_b32 s10, 0
s_mov_b32 s20, 0xff00ff00
s_mov_b32 s21, 0xff00ff00
""")
    E(f"""
v_and_b32 v{T0}, 7, v0
v_lshlrev_b32 v{T0}, 8, v{T0}
v_lshl_add_u32 v{T0}, v1, 4, v{T0}
v_add_u32 v{T0}, {QL}, v{T0}
s_mov_b32 s13, 0
s_mov_b32 s62, 0
s_mov_b32 s11, 0
s_mov_b32 s19, -1
s_branch L_loop
L_pro:
s_waitcnt vmcnt({Y})
""")
    tok_pass(FLA, ONE)
    E(f"""
s_cmp_eq_u32 s13, 1
s_cbranch_scc1 L_loop
L_qw:
s_sleep 1
ds_read_b32 v{T1}, v{FLA} offset:8
s_waitcnt lgkmcnt(0)
v_cmp_ne_u32 vcc, 4, v{T1}
s_cbranch_vccnz L_qw
s_branch L_qr
L_t1:
s_sleep 1
ds_read_b96 v[{S_+4}:{S_+6}], v{FLA}
ds_read_b32 v{S_+7}, v{FLA} offset:28
s_waitcnt lgkmcnt(0)
v_cmp_eq_u32 vcc, 4, v{S_+6}
s_cbranch_vccnz L_qr
v_sub_u32 v{S_+4}, v{S_+4}, v{S_+7}
v_cmp_gt_i32 vcc, {8 + 4 - Li}, v{S_+4}
s_cbranch_vccnz L_t1
s_branch L_tk
L_qr:
""")
    stamp(3)
    for j in range(4): E(f"ds_read_b128 v[{QF+4*j}:{QF+4*j+3}], v{T0} offset:{64*j}")
    E("s_mov_b32 s10, 1\ns_mov_b32 s12, s13\ns_branch L_kjob\nL_e0:\n.p2align 12")

    def k_reads(regs, slot):
        for s in range(2):
            for j in range(4):
                r = regs + (s*4+j)*4
                E(f"ds_read_b128 v[{r}:{r+3}], v{KA+j} offset:{slot*8192 + s*4096}")
        E(f"ds_read_b32 v{ORD}, v{FLA}")
        for s in range(2):
            for j in range(4):
                r = regs + (s*4+j)*4
                E(f"s_waitcnt lgkmcnt({8-(s*4+j)})")
                c = "0" if j == 0 else f"v[{S_+4*s}:{S_+4*s+3}]"
                E(f"v_mfma_f32_16x16x32_bf16 v[{S_+4*s}:{S_+4*s+3}], v[{r}:{r+3}], v[{QF+4*j}:{QF+4*j+3}], {c}")
    def round_scores(dst):
        pack(P, S_, 4); unpack(F, P, 4)
        for i in range(8): E(f"v_mul_f32 v{F+i}, s60, v{F+i}")
        pack(dst, F, 4); unpack(F, dst, 4)
    def exps(m):
        for i in range(8): E(f"v_sub_f32 v{F+i}, v{F+i}, v{m}")
        for i in range(8): E(f"v_mul_f32 v{F+i}, s61, v{F+i}")
        for i in range(8): E(f"v_exp_f32 v{F+i}, v{F+i}")
    def sum8():
        E(f"""
v_add_f32 v{F}, v{F}, v{F+1}
v_add_f32 v{F+2}, v{F+2}, v{F+3}
v_add_f32 v{F+4}, v{F+4}, v{F+5}
v_add_f32 v{F+6}, v{F+6}, v{F+7}
v_add_f32 v{F}, v{F}, v{F+2}
v_add_f32 v{F+4}, v{F+4}, v{F+6}
v_add_f32 v{F}, v{F}, v{F+4}
""")
    def pv(regs, slot, p, dummy, toggle, after0=None, pre=None):
        for db in range(8):
            for s in range(2):
                r = regs + db*4 + s*2
                E(f"ds_read_b64_tr_b16 v[{r}:{r+1}], v{VA+db} offset:{slot*8192 + s*4096}")
        E(f"ds_read_b32 v{dummy}, v{FLA}")
        if pre: pre()
        for db in range(8):
            r = regs + db*4
            E(f"s_waitcnt lgkmcnt({min(14, 15-2*db)})")
            E(f"v_mfma_f32_16x16x32_bf16 v[{O+4*db}:{O+4*db+3}], v[{r}:{r+3}], v[{p}:{p+3}], v[{O+4*db}:{O+4*db+3}]")
            if toggle: E(f"v_xor_b32 v{VA+db}, 0x4000, v{VA+db}")
            if db == 0 and after0: E(after0)
    R = KF
    def rd_part():
        E(f"ds_read_b32 v{S_+4}, v{FLA} offset:12\nds_read_b64 v[{F}:{F+1}], v{MLW}")
        for d in range(4): E(f"ds_read_b128 v[{R+4*d}:{R+4*d+3}], v{LL} offset:{1024*d}")
    ARR = f"""
v_readfirstlane_b32 s63, v{AR2 if earr else ORD}
s_cmp_lg_u32 s63, 3
s_cbranch_scc1 LBL
s_mov_b32 s19, 1
s_atomic_add s19, s[14:15], 0 glc
"""
    E(f"""
L_loop:
s_cmp_ge_u32 s13, {S}
s_cbranch_scc1 L_dynp
s_lshl_b32 s58, s13, 9
s_add_u32 s58, s58, s35
s_cmp_lt_u32 s13, {NK}
s_cselect_b64 s[8:9], s[54:55], s[56:57]
s_cselect_b32 s59, 0, {-256*S}
s_add_u32 s59, s59, s58
s_add_u32 s59, s59, 256
s_cmp_lt_u32 s13, {NV0}
s_cselect_b64 s[6:7], s[54:55], s[56:57]
s_cselect_b32 s63, 0, {-256*S}
s_add_u32 s58, s58, s63
s_and_b32 s58, s58, 2047
s_lshl_b32 s58, s58, 13
s_and_b32 s59, s59, 2047
s_lshl_b32 s59, s59, 13
s_add_u32 s8, s8, s59
s_addc_u32 s9, s9, 0
s_add_u32 s6, s6, s58
s_addc_u32 s7, s7, 0
s_lshl1_add_u32 s58, s10, s13
s_cmp_eq_u32 s58, 1
s_cbranch_scc1 L_t1
s_cmp_eq_u32 s13, 0
s_cbranch_scc1 L_tw_c
s_cmp_lt_u32 s13, {NV0}
s_cbranch_scc1 L_tk
""")
    for h, p in ((0, P), (1, S_)):
        unpack(F, SS + 4*h, 4); exps(VM); pack(p, F, 4); sum8()
        E(f"v_add_f32 v{VL}, v{VL}, v{F}")
    for i in range(16): E(f"v_mov_b32 v{SS+i}, v{SS+8+i}")
    E(f"""
s_branch L_tk
L_dynp:
s_lshl2_add_u32 s63, s62, s38
s_and_b32 s63, s63, 2047
s_lshl_b32 s63, s63, 13
s_add_u32 s6, s54, s63
s_addc_u32 s7, s55, 0
s_add_u32 s8, s56, s63
s_addc_u32 s9, s57, 0
""")
    E("L_tk:")
    take_turn()
    if nesc: E(f"s_cmp_ge_u32 s62, {nesc}\ns_cselect_b32 s39, 0, s39")
    tok_wait("L_tw", True)
    if stamps: E("s_memrealtime s[90:91]\ns_waitcnt lgkmcnt(0)\ns_mov_b32 m0, s13\nv_writelane_b32 v244, s90, m0")
    for j in range(16):
        if j == 8:
            E("s_add_u32 s39, s39, 1")
            tok_wait("L_tb", True)
        if j % 4 == 0: E(f"s_mov_b32 m0, s34" if j == 0 else f"s_add_u32 m0, s34, {hex(1024*j)}")
        v = [[LDA, LDB], [LDA2, LDB2]][(j >> 2) & 1][j & 1]
        base = 6 if j < 8 else 8
        E(f"global_load_lds_dwordx4 v{v}, s[{base}:{base+1}] offset:{(j&3)*1024} {pk}")
    E(f"""
s_xor_b32 s34, s34, 0x4000
s_add_u32 s13, s13, 1
s_waitcnt vmcnt({8 + Y})
""")
    tok_pass(FLA, ONE)
    E(f"""
s_cmp_ge_u32 s33, {S}
s_cbranch_scc1 L_mix
s_cmp_eq_u32 s10, 0
s_cbranch_scc1 L_pro
s_cmp_ge_u32 s33, {NV0}
s_cbranch_scc1 L_vjob
s_waitcnt vmcnt(8)
""")
    if S & 1: E(f"s_cmp_eq_u32 s33, {NK}\ns_cbranch_scc1 L_hyb")
    E("L_kjob:")
    k_reads(KF, 0)
    E(f"s_cmp_lt_u32 s33, s12\ns_cbranch_scc1 L_nopass\ns_waitcnt vmcnt({Y})"); tok_pass(FLA, ONE); E("L_nopass:")
    for i in range(16): E(f"v_mov_b32 v{SS+i}, v{SS+8+i}")
    def accmax():
        E(f"v_max3_f32 v{VM}, v{VM}, v{F}, v{F+1}\nv_max3_f32 v{T1}, v{F+2}, v{F+3}, v{F+4}\nv_max3_f32 v{VM}, v{VM}, v{F+5}, v{F+6}\nv_max3_f32 v{VM}, v{VM}, v{F+7}, v{T1}")
    round_scores(SS+16); accmax()
    E("s_waitcnt vmcnt(0)")
    k_reads(VF, 1)
    for i in range(4): E(f"v_xor_b32 v{KA+i}, 0x4000, v{KA+i}")
    round_scores(SS+20); accmax()
    E(f"""
s_add_u32 s33, s33, 1
s_cmp_lt_u32 s33, s13
s_cbranch_scc1 L_kjob
""")
    if S & 1:
        E("s_branch L_loop\nL_hyb:")
        k_reads(KF, 0)
        E(f"s_waitcnt vmcnt({Y})"); tok_pass(FLA, ONE)
        round_scores(SS+24); accmax()
        cross_rows(VM, T1, "v_max_f32")
        unpack(F, SS, 4); exps(VM); pack(P, F, 4); sum8()
        E(f"v_add_f32 v{VL}, v{VL}, v{F}\ns_waitcnt vmcnt(0)")
        def sh():
            for i in range(24): E(f"v_mov_b32 v{SS+i}, v{SS+4+i}")
        pv(VF, 1, P, ORD, True, pre=sh)
        E("s_add_u32 s33, s33, 1\ns_branch L_loop")
    else:
        E(f"s_cmp_lt_u32 s33, {NK}\ns_cbranch_scc1 L_loop")
        cross_rows(VM, T1, "v_max_f32")
        for i in range(4): E(f"v_xor_b32 v{KA+i}, 0x4000, v{KA+i}")
        E("s_branch L_loop")
    E("L_vjob:")
    E(f"""
s_cmp_lg_u32 s33, {S-1}
s_cbranch_scc1 L_notk
s_waitcnt vmcnt({tk})
s_mov_b32 s62, 1
s_atomic_add s62, s[48:49], 0 glc
L_notk:
s_waitcnt vmcnt(8)
""")
    pv(KF, 0, P, ORD, False)
    E(f"s_waitcnt vmcnt({Y})"); tok_pass(FLA, ONE)
    E("s_waitcnt vmcnt(0)")
    pv(VF, 1, S_, ORD, True)
    E(f"""
s_add_u32 s33, s33, 1
L_vend:
s_waitcnt lgkmcnt(0)
s_cmp_lt_u32 s62, 512
s_cbranch_scc1 L_loop
s_mov_b64 exec, 1
ds_add_rtn_u32 v{ORD}, v{FLA}, v{ONE} offset:4
ds_add_rtn_u32 v{AR2}, v{FLA}, v{ONE} offset:32
s_mov_b64 exec, -1
""")
    if stamps: E("s_memrealtime s[80:81]\ns_memrealtime s[94:95]\ns_waitcnt lgkmcnt(0)\ns_mov_b32 s72, s80")
    rd_part()
    E("s_waitcnt lgkmcnt(0)")
    E(ARR.replace("LBL", "L_stail"))
    E("s_branch L_stail")
    E(f"""
L_mix:
s_waitcnt vmcnt({tk})
s_add_u32 s62, s62, 64
s_cmp_ge_u32 s62, {nret + 64}
s_cselect_b32 s11, 1, 0
s_cbranch_scc1 {"L_ret" if earr else "L_static"}
s_mov_b32 s62, 1
s_atomic_add s62, s[48:49], 0 glc
""")
    if earr:
        E(f"s_branch L_static\nL_ret:\ns_mov_b32 s11, 1\ns_mov_b64 exec, 1\nds_add_rtn_u32 v{AR2}, v{FLA}, v{ONE} offset:32\ns_mov_b64 exec, -1\ns_waitcnt lgkmcnt(0)")
        E(ARR.replace("LBL", "L_static"))
    E("L_static:\ns_waitcnt vmcnt(8)")
    k_reads(KF, 0)
    E(f"s_waitcnt vmcnt({Y})"); tok_pass(FLA, ONE)
    for i in range(4): E(f"v_xor_b32 v{KA+i}, 0x4000, v{KA+i}")
    round_scores(P)
    E(f"""
v_max3_f32 v{T0}, v{F}, v{F+1}, v{F+2}
v_max3_f32 v{T1}, v{F+3}, v{F+4}, v{F+5}
v_max3_f32 v{T0}, v{T0}, v{F+6}, v{F+7}
v_max_f32 v{T0}, v{T0}, v{T1}
""")
    cross_rows(T0, T1, "v_max_f32")
    E(f"""
v_max_f32 v{T1}, v{T0}, v{VM}
v_sub_f32 v{T0}, v{VM}, v{T1}
v_mul_f32 v{T0}, s61, v{T0}
v_exp_f32 v{T0}, v{T0}
v_mov_b32 v{VM}, v{T1}
""")
    exps(T1)
    pack(P, F, 4); sum8()
    E(f"v_fma_f32 v{VL}, v{VL}, v{T0}, v{F}")
    if stamps: E("s_memrealtime s[94:95]")
    if tlate:
        E("s_cmp_eq_u32 s11, 0\ns_cbranch_scc1 L_pv")
    else:
        if earr: E("s_cmp_eq_u32 s11, 1\ns_cbranch_scc1 L_lt")
        E("s_waitcnt lgkmcnt(0)\ns_cmp_lt_u32 s62, 512\ns_cbranch_scc1 L_pv")
        if earr: E(f"s_mov_b64 exec, 1\nds_add_rtn_u32 v{AR2}, v{FLA}, v{ONE} offset:32\nL_lt:")
    if stamps: E("s_mov_b32 s80, s90\ns_mov_b32 s72, s90")
    E(f"s_mov_b64 exec, 1\nds_add_rtn_u32 v{ORD}, v{FLA}, v{ONE} offset:4\ns_mov_b64 exec, -1")
    rd_part()
    E("L_pv:\ns_waitcnt vmcnt(0)")
    def resc():
        for i in range(0, 32, 2): E(f"v_pk_mul_f32 v[{O+i}:{O+i+1}], v[{O+i}:{O+i+1}], v[{T0}:{T0+1}] op_sel_hi:[1,0]")
    if tlate:
        a0 = None if earr else "s_cmp_eq_u32 s11, 0\ns_cbranch_scc1 L_noat" + ARR.replace("LBL", "L_noat") + "L_noat:"
        pv(VF, 1, P, S_+5, True, after0=a0, pre=resc)
        E("s_add_u32 s33, s33, 1\ns_cmp_eq_u32 s11, 0\ns_cbranch_scc1 L_vend\ns_branch L_stail")
    else:
        pv(VF, 1, P, S_+5, True, after0="s_cmp_lt_u32 s62, 512\ns_cbranch_scc1 L_noat" + ("\ns_cmp_eq_u32 s11, 1\ns_cbranch_scc1 L_noat" if earr else "") + ARR.replace("LBL", "L_noat") + "L_noat:", pre=resc)
        E("s_add_u32 s33, s33, 1\ns_cmp_lt_u32 s62, 512\ns_cbranch_scc1 L_loop\ns_branch L_stail")

    def embed(r, n=4):
        for i in range(n): E(f"v_and_or_b32 v{r+i}, v{r+i}, s37, v{TG+i%4}")
    def strip(r, n=4):
        for i in range(n): E(f"v_and_b32 v{r+i}, s37, v{r+i}")
    npoll = [0]
    def poll(loads, grs, t, slp):
        n = npoll[0]; npoll[0] += 1
        MK = 40
        E("s_mov_b32 s62, 0")
        def tagw(r): E(f"v_perm_b32 v{t+1}, v{r+1}, v{r}, s38\nv_perm_b32 v{t+2}, v{r+3}, v{r+2}, s39\nv_or_b32 v{t+1}, v{t+1}, v{t+2}")
        if len(loads) == 1:
            E(f"L_poll{n}:\n{loads[0]}\ns_waitcnt vmcnt(0)")
            tagw(grs[0])
            E(f"v_cmp_ne_u32 vcc, s36, v{t+1}\ns_cbranch_vccz L_pok{n}\ns_mov_b64 exec, vcc")
        else:
            for l in loads: E(l)
            E(f"s_branch L_chk{n}\nL_poll{n}:")
            for k, l in enumerate(loads):
                E(f"s_mov_b64 exec, s[{MK+2*k}:{MK+2*k+1}] ;nopad\ns_cbranch_execz L_pl{n}_{k} ;nopad\n{l} ;nopad\nL_pl{n}_{k}:")
            E(f"s_mov_b64 exec, -1 ;nopad\nL_chk{n}:\ns_waitcnt vmcnt(0)")
            for k, r in enumerate(grs):
                tagw(r)
                E(f"v_cmp_ne_u32 s[{MK+2*k}:{MK+2*k+1}], s36, v{t+1}")
            E(f"s_or_b64 vcc, s[{MK}:{MK+1}], s[{MK+2}:{MK+3}]")
            for k in range(2, len(loads)): E(f"s_or_b64 vcc, vcc, s[{MK+2*k}:{MK+2*k+1}]")
            E(f"s_cbranch_scc0 L_pok{n}")
        E("s_add_u32 s62, s62, 1\ns_cmp_ge_u32 s62, 0x200000")
        if slp: E(f"s_sleep {slp}")
        E(f"s_cbranch_scc0 L_poll{n}\nL_pok{n}:")
        if len(loads) == 1: E("s_mov_b64 exec, -1")

    E("L_e1:\n.p2align 12\nL_aux:")
    E("s_mov_b32 s37, 0xffffff00\ns_mov_b32 s38, 0x0c0c0400\ns_mov_b32 s39, 0x04000c0c\ns_mov_b32 s62, 0")
    make_sel(SELA, 4)
    calc_cl()
    E(f"""
s_lshl_b32 s58, s3, 10
s_add_u32 s58, s58, {SCR}
v_lshl_add_u32 v2, v0, 4, s58
v_bfe_u32 v3, v0, 1, 3
v_and_b32 v1, 1, v0
v_lshl_add_u32 v3, v1, 4, v3
v_lshlrev_b32 v3, 4, v3
v_add_u32 v3, {SCR}, v3
""")
    GV = 200
    Q_ = [("g", i) for i in range(8)] + [("u", i) for i in range(8)]
    def gu_issue():
        m, i = Q_.pop(0)
        srd, dst = (40, WG_) if m == "g" else (44, WU_)
        if i == 0: E("s_mov_b32 s48, 0")
        E(f"buffer_load_dwordx4 v[{dst+4*i}:{dst+4*i+3}], v{GV}, s[{srd}:{srd+3}], s48 offen {pw}")
        if i < 7: E("s_add_u32 s48, s48, 7168")
    if True:
        E(f"""
s_lshl2_add_u32 s58, s29, s3
s_mul_i32 s59, s58, {64*7168}
s_lshl_b32 s58, s31, 7
s_add_u32 s59, s59, s58
s_add_u32 s40, s16, s59
s_addc_u32 s41, s17, 0
s_add_u32 s44, s18, s59
s_addc_u32 s45, s19, 0
s_cmp_lt_u32 s31, 56
s_cselect_b32 s42, {64*7168}, 0
s_mov_b32 s46, s42
s_mov_b32 s43, 0x20000
s_mov_b32 s47, 0x20000
v_lshrrev_b32 v1, 3, v0
v_and_b32 v4, 7, v0
v_lshlrev_b32 v5, 4, v4
v_mul_u32_u24 v{GV}, {8*7168}, v1
v_add_u32 v{GV}, v{GV}, v5
""")
    E("s_waitcnt vmcnt(9)")
    unpack(G, XF, 8)
    E(f"v_add_f32 v1, v{G}, v{G+1}\nv_add_f32 v5, v{G+2}, v{G+3}")
    for i in range(4, 16, 2): E(f"v_add_f32 v1, v1, v{G+i}\nv_add_f32 v5, v5, v{G+i+1}")
    E("v_add_f32 v1, v1, v5")
    wave_allreduce(1, 5, "v_add_f32")
    E(f"v_mul_f32 v1, {f2u(1/1024):#x}, v1")
    for i in range(16): E(f"v_sub_f32 v{G+i}, v{G+i}, v1")
    E(f"v_mul_f32 v6, v{G}, v{G}\nv_mul_f32 v5, v{G+1}, v{G+1}")
    for i in range(2, 16, 2): E(f"v_fmac_f32 v6, v{G+i}, v{G+i}\nv_fmac_f32 v5, v{G+i+1}, v{G+i+1}")
    E("v_add_f32 v6, v6, v5")
    wave_allreduce(6, 5, "v_add_f32")
    E(f"v_mul_f32 v6, {f2u(1/1024):#x}, v6")
    rnd_bf16(1); rnd_bf16(6)
    E(f"v_add_f32 v6, {f2u(1e-5):#x}, v6")
    rnd_bf16(6)
    E("v_sqrt_f32 v6, v6")
    rnd_bf16(6)
    E("v_rcp_f32 v6, v6\ns_waitcnt vmcnt(8)")
    unpack(G, XR, 4)
    for i in range(8): E(f"v_sub_f32 v{G+i}, v{G+i}, v1")
    pack(XR, G, 4); unpack(G, XR, 4)
    for i in range(8): E(f"v_mul_f32 v{G+i}, v{G+i}, v6")
    pack(XR, G, 4)
    build_A(AX, XR, SELA)
    stamp(1)
    E("s_cmp_lt_u32 s31, 56\ns_cbranch_scc1 L_gd1\ns_waitcnt vmcnt(0)\nL_gd1:")
    nis = 0
    for i in range(8):
        E(f"s_waitcnt vmcnt({7 - i + nis})")
        if 7 - i + nis < gw:
            gu_issue(); nis += 1
        mm1(G, AX, WF, i)
    E(f"""
s_waitcnt lgkmcnt(0)
s_add_u32 s36, s36, 0x01010101
s_and_b32 s58, s36, 0xff
v_mov_b32 v{TG}, s58
s_bfe_u32 s58, s36, 0x80008
v_mov_b32 v{TG+1}, s58
s_bfe_u32 s58, s36, 0x80010
v_mov_b32 v{TG+2}, s58
s_lshr_b32 s58, s36, 24
v_mov_b32 v{TG+3}, s58
v_mov_b32 v5, {FLG}
v_mov_b32 v6, 1
ds_write_b128 v2, v[{G}:{G+3}]
s_mov_b64 exec, 1
ds_add_u32 v5, v6 offset:20
s_mov_b64 exec, -1
""")
    stamp(2)
    E(f"""
s_cmp_lg_u32 s3, 0
s_cbranch_scc1 L_qpub
L_xw:
ds_read_b32 v6, v5 offset:20
s_waitcnt lgkmcnt(0)
v_cmp_ne_u32 vcc, 5, v6
s_cbranch_vccnz L_xw
""")
    for k in range(8):
        E(f"ds_read_b128 v[{G+4*k}:{G+4*k+3}], v3 offset:{(k // 2) * 1024 + (k % 2) * 640}")
    E(f"""
s_lshl4_add_u32 s58, s28, s30
s_lshl2_add_u32 s58, s58, s29
s_lshl_b32 s58, s58, 8
s_add_u32 s58, s58, {QP}
v_lshl_add_u32 v1, v0, 4, s58
s_waitcnt lgkmcnt(0)
""")
    for st in (16, 8, 4):
        for i in range(st): E(f"v_add_f32 v{G+i}, v{G+i}, v{G+st+i}")
    embed(G)
    E(f"s_mov_b64 exec, 0xffff\nglobal_store_dwordx4 v1, v[{G}:{G+3}], s[26:27] sc1\ns_mov_b64 exec, -1\nL_qpub:")
    stamp(3)
    E(f"""
s_lshl2_add_u32 s58, s28, s3
s_lshl_b32 s58, s58, 12
s_add_u32 s58, s58, {QP}
v_lshrrev_b32 v1, 4, v0
v_and_b32 v4, 15, v0
v_lshl_add_u32 v4, v4, 4, s58
v_lshl_add_u32 v4, v1, 10, v4
v_mov_b32 v19, {FLG}
v_mov_b32 v20, 1
""")
    PASS = "s_mov_b64 exec, 1\nds_add_u32 v19, v20\ns_mov_b64 exec, -1"
    while Q_:
        E(f"s_waitcnt vmcnt({gw - 1})"); gu_issue()
    E(f"s_waitcnt vmcnt({gy})\n{PASS}\ns_waitcnt vmcnt(0)\ns_cmp_lt_u32 s31, 56\ns_cbranch_scc1 L_qgo\nL_lw:\ns_sleep 4\nds_read_b32 v6, v19\ns_waitcnt lgkmcnt(0)\nv_cmp_gt_u32 vcc, {ltok}, v6\ns_cbranch_vccnz L_lw\nL_qgo:")
    poll([f"global_load_dwordx4 v[{G+4*k}:{G+4*k+3}], v4, s[26:27] offset:{256*k} sc1" for k in range(4)],
         [G+4*k for k in range(4)], 5, 4)
    strip(G, 16)
    for st in (8, 4):
        for i in range(st): E(f"v_add_f32 v{G+i}, v{G+i}, v{G+st+i}")
    pack(G, G, 2)
    E(f"""
s_lshl_b32 s58, s3, 9
s_add_u32 s58, s58, {QL}
v_lshl_add_u32 v1, v0, 3, s58
ds_write_b64 v1, v[{G}:{G+1}]
v_mov_b32 v5, {FLG}
v_mov_b32 v6, 1
s_mov_b64 exec, 1
ds_add_u32 v5, v6 offset:8
s_mov_b64 exec, -1
""")
    stamp(4)
    E(f"""
s_cmp_ge_u32 s31, 56
s_cbranch_scc1 L_gpd
v_and_b32 v4, 7, v0
""")
    E(f"""
s_lshl2_add_u32 s58, s31, s29
s_lshl_b32 s58, s58, 9
s_add_u32 s58, s58, {GP}
v_lshl_add_u32 v5, v4, 5, s58
v_bfe_u32 v4, v0, 4, 1
v_lshl_add_u32 v5, v4, 4, v5
v_lshrrev_b32 v4, 5, v0
v_lshl_add_u32 v5, v4, 8, v5
s_waitcnt vmcnt(0)
""")
    mm(G, AX, WG_); mm(G+4, AX, WU_)
    for i in range(4): E(f"v_permlane32_swap_b32 v{G+i}, v{G+4+i}")
    for i in range(4): E(f"v_add_f32_dpp v{G+i}, v{G+4+i}, v{G+i} row_ror:8 {DPP}")
    E(f"""
ds_write_b128 v2, v[{G}:{G+3}] offset:4096
s_mov_b64 exec, 1
ds_add_rtn_u32 v6, v19, v20 offset:16
s_mov_b64 exec, -1
v_lshlrev_b32 v7, 4, v0
v_add_u32 v7, {SCR + 4096}, v7
s_waitcnt lgkmcnt(0)
v_readfirstlane_b32 s58, v6
s_cmp_lg_u32 s58, 3
s_cbranch_scc1 L_gpd
""")
    for k in range(4): E(f"ds_read_b128 v[{G+4*k}:{G+4*k+3}], v7 offset:{1024*k}")
    E("s_waitcnt lgkmcnt(0)")
    for st in (8, 4):
        for i in range(st): E(f"v_add_f32 v{G+i}, v{G+i}, v{G+st+i}")
    embed(G)
    E(f"""
s_mov_b32 exec_lo, 0x00ff00ff
s_mov_b32 exec_hi, 0x00ff00ff
global_store_dwordx4 v5, v[{G}:{G+3}], s[26:27] sc1
s_mov_b64 exec, -1
L_gpd:
s_cmp_lg_u32 s3, 0
s_cbranch_scc1 L_noffn
s_lshl4_add_u32 s58, s28, s30
s_mul_i32 s58, s58, 14
v_and_b32 v4, 15, v0
v_min_u32 v5, 13, v4
v_add_u32 v5, s58, v5
v_lshrrev_b32 v6, 4, v5
v_and_b32 v5, 15, v5
v_lshlrev_b32 v5, 4, v5
v_lshl_add_u32 v5, v6, 11, v5
v_lshrrev_b32 v1, 4, v0
v_lshl_add_u32 v5, v1, 9, v5
v_add_u32 v5, {GP}, v5
L_gt:
s_sleep 20
ds_read_b64 v[22:23], v19
s_waitcnt lgkmcnt(0)
v_cmp_gt_u32 vcc, {gtok}, v22
v_cmp_eq_u32 s[58:59], 0, v23
s_and_b64 vcc, vcc, s[58:59]
s_cbranch_scc1 L_gt
""")
    poll([f"global_load_dwordx4 v[{G+4*u}:{G+4*u+3}], v5, s[26:27] offset:{256*u} sc1" for u in range(2)],
         [G, G+4], G+32, 10)
    strip(G, 8)
    fold4(G, G+4)
    rnd_bf16(G); rnd_bf16(G+4)
    c1 = -2 * 0.7978845608028654 * LOG2E
    E(f"""
v_mul_f32 v{G+1}, v{G}, v{G}
v_mov_b32 v{G+2}, {f2u(c1):#x}
v_mul_f32 v{G+1}, {f2u(c1*0.044715):#x}, v{G+1}
v_add_f32 v{G+1}, v{G+1}, v{G+2}
v_mul_f32 v{G+1}, v{G+1}, v{G}
v_exp_f32 v{G+1}, v{G+1}
v_add_f32 v{G+1}, 1.0, v{G+1}
v_rcp_f32 v{G+1}, v{G+1}
v_mul_f32 v{G}, v{G}, v{G+1}
""")
    rnd_bf16(G)
    E(f"""
v_mul_f32 v{G}, v{G}, v{G+4}
v_cvt_pk_bf16_f32 v{G}, v{G}, v{G}
v_lshl_add_u32 v4, v4, 2, v1
v_lshlrev_b32 v4, 1, v4
v_add_u32 v4, {HS}, v4
ds_write_b16 v4, v{G}
v_mov_b32 v4, {FLG}
v_mov_b32 v5, 1
ds_write_b32 v4, v5 offset:24
s_branch L_noffn
""")
    E("L_e2:\n.p2align 12\nL_noffn:")
    if warm: E("s_mov_b64 exec, 0\ns_branch L_ret3 ;;W3_0\nL_ret3:\ns_mov_b64 exec, -1")
    CA, CB, CM, OW, FS, FD, XO, OA, SA, PI, PM = 8, 9, 10, 11, 12, 13, 14, 15, 16, 17, 18
    E(f"""
s_lshl4_add_u32 s58, s28, s30
s_lshl2_add_u32 s58, s58, s3
s_mul_i32 s58, s58, {16*384}
s_add_u32 s58, s58, {AP + 3072}
v_lshrrev_b32 v1, 4, v0
v_and_b32 v4, 15, v0
v_mul_u32_u24 v5, 384, v1
v_add_u32 v5, s58, v5
v_lshl_add_u32 v{CA}, v4, 4, v5
v_and_b32 v6, 3, v0
v_mul_u32_u24 v6, 1536, v6
v_add_u32 v{CM}, v5, v6
s_lshl_b32 s58, s3, 3
s_add_u32 s58, s58, {OS + 1024}
v_mov_b32 v{CB}, s58
v_lshl_add_u32 v5, v4, 2, v1
s_lshl_b32 s58, s3, 8
s_add_u32 s58, s58, {OS}
v_lshl_add_u32 v{OW}, v5, 2, s58
s_and_b32 s58, s2, 7
s_lshl_b32 s58, s58, 5
s_lshr_b32 s59, s2, 3
s_add_u32 s63, s58, s59
s_lshr_b32 s58, s63, 3
s_lshl_b32 s58, s58, 14
s_and_b32 s59, s63, 7
s_lshl4_add_u32 s58, s59, s58
s_add_u32 s58, s58, {FP}
v_lshl_add_u32 v{FS}, v0, 7, s58
s_add_u32 s58, s58, {64*128}
v_lshl_add_u32 v{FD}, v0, 7, s58
s_lshl_b32 s63, s63, 3
v_lshl_add_u32 v{OA}, v1, 1, s63
global_load_ushort v{XO}, v{OA}, s[4:5]
s_lshl_b32 s58, s2, 7
s_add_u32 s58, s58, {NF}
s_add_u32 s34, s26, s58
s_addc_u32 s35, s27, 0
s_mov_b32 s61, {f2u(LOG2E):#x}
v_lshlrev_b32 v{SA}, 2, v0
v_add_u32 v{SA}, {SCR}, v{SA}
""")
    stamp(5)
    E(f"""
v_mov_b32 v5, {FLG}
L_aw:
s_sleep 30
ds_read_b32 v6, v5 offset:4
s_waitcnt lgkmcnt(0)
v_cmp_eq_u32 vcc, 0, v6
s_cbranch_vccnz L_aw
""")
    E(f"""
L_aw2:
s_sleep 2
ds_read_b32 v6, v5 offset:4
s_waitcnt lgkmcnt(0)
v_cmp_gt_u32 vcc, {c1thr}, v6
s_cbranch_vccnz L_aw2
""")
    stamp(6)
    E(f"""
s_mov_b32 s62, 0
L_hint:
s_load_dword s58, s[34:35], 0 glc
s_waitcnt lgkmcnt(0)
s_cmp_eq_u32 s58, s36
s_cbranch_scc1 L_hinted
s_sleep {hintsleep}
s_add_u32 s62, s62, 1
s_cmp_ge_u32 s62, 0x100
s_cbranch_scc0 L_hint
L_hinted:
""")
    stamp(7)
    M_ = G + 16
    loads = [f"global_load_dwordx4 v[{M_}:{M_+3}], v{CM}, s[26:27] offset:{256-3072} sc1"] + \
            [f"global_load_dwordx4 v[{G+4*k}:{G+4*k+3}], v{CA}, s[26:27] offset:{1536*k-3072} sc1" for k in range(4)]
    ST = 32
    def stp(k): return '\n'.join(f'v_and_b32 v{ST+4*k+i}, s37, v{G+4*k+i}' for i in range(4))
    AC, TW = G + 20, 24
    def tagw(k, r):
        return [f"v_perm_b32 v{TW+k}, v{r+1}, v{r}, s38", f"v_perm_b32 v{TW+5}, v{r+3}, v{r+2}, s39", f"v_bitop3_b32 v{TW+k}, v{TW+k}, v{TW+5}, s36 bitop3:0x56"]
    E("s_mov_b32 s62, 0")
    for l in loads: E(l)
    E("s_branch L_c1\nL_rp:")
    for k in range(5): E(f"v_cmp_ne_u32 s[{40+2*k}:{41+2*k}], 0, v{TW+k}")
    E(f"s_add_u32 s62, s62, 1\ns_cmp_ge_u32 s62, 0x200000\ns_cbranch_scc1 L_c2")
    if hsleep: E(f"s_sleep {hsleep}")
    for k, l in enumerate(loads):
        E(f"s_mov_b64 exec, s[{40+2*k}:{41+2*k}] ;nopad\ns_cbranch_execz L_rp{k} ;nopad\n{l} ;nopad\nL_rp{k}:")
    E("s_mov_b64 exec, -1 ;nopad\ns_waitcnt vmcnt(0)\nL_c1:\ns_waitcnt vmcnt(4)")
    t0 = tagw(0, M_)
    E(f"""
v_and_b32 v22, s37, v{M_}
{t0[0]}
{t0[1]}
v_max_f32_dpp v6, v22, v22 quad_perm:[1,0,3,2] {DPP}
{t0[2]}
s_waitcnt vmcnt(3)
v_max_f32_dpp v6, v6, v6 quad_perm:[2,3,0,1] {DPP}
v_mov_b32 v7, v6
""")
    t1 = tagw(1, G)
    E(f"{t1[0]}\n{t1[1]}\nv_permlane32_swap_b32 v7, v6\nv_max_f32 v6, v6, v7\nv_mov_b32 v7, v6\n{t1[2]}\ns_waitcnt vmcnt(2)")
    t2 = tagw(2, G+4)
    E(f"v_permlane16_swap_b32 v7, v6\nv_max_f32 v6, v6, v7\nv_sub_f32 v5, v22, v6\nv_mul_f32 v5, s61, v5\nv_exp_f32 v5, v5\nv_and_b32 v23, s37, v{M_+1}\n{stp(0)}\n{t2[0]}\n{t2[1]}\n{t2[2]}")
    E(f"v_mul_f32 v7, v5, v23")
    for i in range(4): E(f"v_mul_f32_dpp v{AC+i}, v5, v{ST+i} quad_perm:[0,0,0,0] {DPP}")
    E(stp(1))
    E(f"v_add_f32_dpp v7, v7, v7 quad_perm:[1,0,3,2] {DPP}\ns_waitcnt vmcnt(1)")
    for l in tagw(3, G+8): E(l)
    E(stp(2))
    E(f"v_add_f32_dpp v7, v7, v7 quad_perm:[2,3,0,1] {DPP}\ns_waitcnt vmcnt(0)")
    for l in tagw(4, G+12): E(l)
    E(f"v_mov_b32 v21, v7\nv_or3_b32 v{TW+5}, v{TW}, v{TW+1}, v{TW+2}\nv_or3_b32 v{TW+5}, v{TW+5}, v{TW+3}, v{TW+4}\nv_cmp_ne_u32 vcc, 0, v{TW+5}\ns_cbranch_vccnz L_rp\nL_c2:")
    stamp(8)
    E("v_permlane32_swap_b32 v21, v7")
    E(stp(3))
    for i in range(4): E(f"v_fmac_f32_dpp v{AC+i}, v5, v{ST+4+i} quad_perm:[1,1,1,1] {DPP}")
    E("v_add_f32 v7, v7, v21\nv_mov_b32 v21, v7")
    for i in range(4): E(f"v_fmac_f32_dpp v{AC+i}, v5, v{ST+8+i} quad_perm:[2,2,2,2] {DPP}")
    E("v_permlane16_swap_b32 v21, v7")
    for i in range(4): E(f"v_fmac_f32_dpp v{AC+i}, v5, v{ST+12+i} quad_perm:[3,3,3,3] {DPP}")
    E(f"""
v_add_f32 v7, v7, v21
ds_write_b64 v{CB}, v[6:7]
v_permlane32_swap_b32 v{AC}, v{AC+2}
v_permlane32_swap_b32 v{AC+1}, v{AC+3}
v_add_f32 v{AC}, v{AC}, v{AC+2}
v_add_f32 v{AC+1}, v{AC+1}, v{AC+3}
v_permlane16_swap_b32 v{AC}, v{AC+1}
v_add_f32 v{AC}, v{AC}, v{AC+1}
ds_write_b32 v{OW}, v{AC}
s_waitcnt lgkmcnt(0)
s_barrier
s_cmp_eq_u32 s3, 0
s_cbranch_scc1 L_sred
s_cmp_lg_u32 s3, 1
s_cbranch_scc1 L_end
""")
    poll([f"global_load_dwordx4 v[{G+4}:{G+7}], v{FD}, s[26:27] sc1"], [G+4], 5, sleep)
    strip(G+4, 4)
    fold4(G+4)
    row_allreduce([G+4], "v_add_f32")
    rnd_bf16(G+4)
    E(f"""
v_mul_f32 v21, {f2u(-LOG2E):#x}, v{G+4}
v_exp_f32 v21, v21
v_add_f32 v21, 1.0, v21
v_rcp_f32 v21, v21
v_mul_f32 v21, v21, v{G+4}
""")
    rnd_bf16(21)
    E(f"ds_write_b32 v{SA}, v21\ns_waitcnt lgkmcnt(0)\ns_barrier\ns_endpgm\nL_sred:")
    stamp(9)
    E(f"v_lshlrev_b32 v{XO}, 16, v{XO}")
    if ssleep: E(f"s_sleep {ssleep}")
    poll([f"global_load_dwordx4 v[{G}:{G+3}], v{FS}, s[26:27] sc1"], [G], 5, sleep)
    stamp(10)
    E(f"s_barrier\nds_read_b32 v21, v{SA}")
    stamp(11)
    strip(G, 4)
    fold4(G)
    row_allreduce([G], "v_add_f32")
    rnd_bf16(G)
    E(f"s_waitcnt lgkmcnt(0)\nv_mul_f32 v5, v21, v{G}")
    rnd_bf16(5)
    E(f"""
v_add_f32 v5, v5, v{XO}
v_cvt_pk_bf16_f32 v5, v5, v5
s_mov_b32 exec_lo, 0x00010001
s_mov_b32 exec_hi, 0x00010001
global_store_short v{OA}, v5, s[22:23]
s_cmp_lg_u32 s2, 0
s_cbranch_scc1 L_fin
s_mov_b64 exec, 1
v_mov_b32 v5, 0
v_mov_b32 v6, s36
global_store_dword v5, v6, s[26:27] sc1
L_fin:
""")
    if stamps:
        stamp(12); dump_stamps(1, 13)
    if diag is not None:
        k, cond = diag
        E(f"s_sub_u32 s58, s{64+2*k}, s64\ns_lshl_b32 s58, s58, 2")
        if cond is not None: E(cond + "\ns_cselect_b32 s58, s58, 0")
        E("s_add_u32 s58, s58, 6000\nL_spin:\ns_memrealtime s[60:61]\ns_waitcnt lgkmcnt(0)\ns_sub_u32 s59, s60, s64\ns_cmp_lt_u32 s59, s58\ns_cbranch_scc1 L_spin")
    E("L_end:\ns_endpgm")

    E("L_stail:")
    if stamps: E("s_mul_i32 s84, s33, 100\ns_add_u32 s84, s84, s64")
    R = KF
    E(f"v_readfirstlane_b32 s33, v{ORD}")
    cross_rows(VL, T1, "v_add_f32")
    E(f"""
s_cmp_eq_u32 s33, 0
s_cbranch_scc1 L_first
v_cmp_ne_u32 vcc, s33, v{S_+4}
s_cbranch_vccz L_pw2
L_pw:
""")
    rd_part()
    E(f"""
ds_read_b32 v{S_+5}, v{FLA}
s_waitcnt lgkmcnt(1)
v_cmp_ne_u32 vcc, s33, v{S_+4}
s_cbranch_vccnz L_pw
L_pw2:
v_max_f32 v{S_}, v{F}, v{VM}
v_sub_f32 v{VM}, v{VM}, v{S_}
v_sub_f32 v{F}, v{F}, v{S_}
v_mul_f32 v{VM}, s61, v{VM}
v_mul_f32 v{F}, s61, v{F}
v_exp_f32 v{VM}, v{VM}
v_exp_f32 v{F}, v{F}
""")
    for d in range(4):
        for e in range(4): E(f"v_cndmask_b32 v{O+8*d+e}, v{O+8*d+e}, v{O+8*d+4+e}, s[20:21]")
    E(f"v_mul_f32 v{S_+1}, v{VM}, v{VL}\nv_fmac_f32 v{S_+1}, v{F}, v{F+1}")
    for d in range(4):
        for e in (0, 2): E(f"v_pk_mul_f32 v[{R+4*d+e}:{R+4*d+e+1}], v[{R+4*d+e}:{R+4*d+e+1}], v[{F}:{F+1}] op_sel_hi:[1,0]")
    E("s_cmp_eq_u32 s33, 3\ns_cbranch_scc1 L_last")
    for d in range(4):
        for e in (0, 2): E(f"v_pk_fma_f32 v[{O+8*d+e}:{O+8*d+e+1}], v[{O+8*d+e}:{O+8*d+e+1}], v[{VM}:{VM+1}], v[{R+4*d+e}:{R+4*d+e+1}] op_sel_hi:[1,0,1]")
    E("s_branch L_wr\nL_first:")
    for d in range(4):
        for e in range(4): E(f"v_cndmask_b32 v{O+8*d+e}, v{O+8*d+e}, v{O+8*d+4+e}, s[20:21]")
    E(f"v_mov_b32 v{S_}, v{VM}\nv_mov_b32 v{S_+1}, v{VL}\nL_wr:")
    for d in range(4): E(f"ds_write_b128 v{LL}, v[{O+8*d}:{O+8*d+3}] offset:{1024*d}")
    E(f"ds_write_b64 v{MLW}, v[{S_}:{S_+1}]\ns_mov_b64 exec, 1\nds_add_u32 v{FLA}, v{ONE} offset:12\ns_mov_b64 exec, -1")
    E("s_branch L_nt\nL_last:")
    tagS = ["s36", "s16", "s17", "s18"]
    for d in range(4):
        for e in (0, 2): E(f"v_pk_fma_f32 v[{O+8*d+e}:{O+8*d+e+1}], v[{O+8*d+e}:{O+8*d+e+1}], v[{VM}:{VM+1}], v[{R+4*d+e}:{R+4*d+e+1}] op_sel_hi:[1,0,1]")
        for e in range(4): E(f"v_bfi_b32 v{O+8*d+e}, v{MSK}, v{O+8*d+e}, {tagS[e]}")
        E(f"global_store_dwordx4 v{APA if d < 2 else APB}, v[{O+8*d}:{O+8*d+3}], s[26:27] offset:{128*(d&1)} sc1")
    E(f"""
v_bfi_b32 v{S_}, v{MSK}, v{S_}, s36
v_bfi_b32 v{S_+1}, v{MSK}, v{S_+1}, s16
v_mov_b32 v{S_+2}, s17
v_mov_b32 v{S_+3}, s18
s_mov_b64 exec, 0xffff
global_store_dwordx4 v{APM}, v[{S_}:{S_+3}], s[26:27] offset:256 sc1
s_mov_b64 exec, 1
ds_add_u32 v{FLA}, v{ONE} offset:4
s_mov_b64 exec, -1
""")
    if stamps: E("s_memrealtime s[74:75]")
    E(f"""
L_nt:
s_waitcnt lgkmcnt(0)
s_cmp_lg_u32 s19, {63 - hx}
s_cbranch_scc1 L_wj
v_mov_b32 v{T0}, s36
global_store_dword v{NFA}, v{T0}, s[26:27] sc1
L_wj:
""")
    if relth is not None:
        E(f"s_cmp_lt_i32 s19, {relth}\ns_cbranch_scc1 L_nr\nv_mov_b32 v{T0}, 8\ns_mov_b64 exec, 1\nds_add_u32 v{FLA}, v{T0}\ns_mov_b64 exec, -1\nL_nr:")
    WP = f"s_mov_b64 exec, 1\nds_add_u32 v{FLA}, v{ONE}\ns_mov_b64 exec, -1"
    take_turn()
    if wl != 2: E(f"s_sub_u32 s39, s39, {wl - 2}")
    tok_wait("L_wa")
    if stamps: E("s_memrealtime s[96:97]")
    ld_w(40, WD)
    E("s_add_u32 s39, s39, 1")
    tok_wait("L_wb")
    ld_w(44, WO)
    E(f"s_waitcnt vmcnt({8 + YW})\n{WP}")
    E(f"""
L_hw:
ds_read_b32 v{T1}, v{FLA} offset:24
ds_read_b128 v[{P}:{P+3}], v{HSA}
s_waitcnt lgkmcnt(0)
v_cmp_eq_u32 vcc, 0, v{T1}
s_cbranch_vccnz L_hw
""")
    build_A(KF, P, SELS)
    E("s_waitcnt vmcnt(8)")
    def g2_fin(S_=S_):
        E(f"v_permlane32_swap_b32 v{S_}, v{S_+2}\nv_permlane32_swap_b32 v{S_+1}, v{S_+3}")
        for i in range(2): E(f"v_add_f32_dpp v{S_+i}, v{S_+2+i}, v{S_+i} row_ror:8 {DPP}")
        E(f"v_permlane32_swap_b32 v{S_}, v{S_+2}\nv_permlane32_swap_b32 v{S_+1}, v{S_+3}")
        for e in range(4): E(f"v_bfi_b32 v{S_+e}, v{MSK}, v{S_+e}, {tagS[e]}")
    mm(S_, KF, WD)
    if latewo:
        g2_fin()
        E(f"s_cmp_ge_u32 s33, {latewo}\ns_cbranch_scc1 L_dst\ns_waitcnt vmcnt({YW})\n{WP}")
    else:
        E(f"s_waitcnt vmcnt({YW})\n{WP}")
        g2_fin()
    E(f"s_waitcnt vmcnt(0)\nL_dst:\ns_mov_b64 exec, 0x00ff00ff\nglobal_store_dwordx4 v{FAD}, v[{S_}:{S_+3}], s[26:27] sc1\ns_mov_b64 exec, -1")
    E(f"v_mov_b32 v{LL}, {OS + 1024}")
    stamp(6)
    E("s_barrier")
    stamp(7)
    E(f"ds_read_b128 v[{F}:{F+3}], v{LL}\nds_read_b128 v[{F+4}:{F+7}], v{LL} offset:16")
    for k in range(4):
        for h in range(2):
            E(f"ds_read_b128 v[{VF+8*k+4*h}:{VF+8*k+4*h+3}], v{OSA} offset:{256*k + 16*h}")
    E("s_waitcnt lgkmcnt(8)")
    E(f"v_max3_f32 v{T0}, v{F}, v{F+2}, v{F+4}\nv_max_f32 v{T0}, v{T0}, v{F+6}")
    for k in range(4): E(f"v_sub_f32 v{F+2*k}, v{F+2*k}, v{T0}")
    for k in range(4): E(f"v_mul_f32 v{F+2*k}, s61, v{F+2*k}")
    for k in range(4): E(f"v_exp_f32 v{F+2*k}, v{F+2*k}")
    E(f"v_mul_f32 v{T0}, v{F}, v{F+1}")
    for k in range(1, 4): E(f"v_fmac_f32 v{T0}, v{F+2*k}, v{F+2*k+1}")
    E(f"v_rcp_f32 v{T0}, v{T0}\ns_waitcnt lgkmcnt(0)")
    for i in range(0, 8, 2): E(f"v_pk_mul_f32 v[{VF+i}:{VF+i+1}], v[{VF+i}:{VF+i+1}], v[{F}:{F+1}] op_sel_hi:[1,0]")
    for k in range(1, 4):
        for i in range(0, 8, 2): E(f"v_pk_fma_f32 v[{VF+i}:{VF+i+1}], v[{VF+8*k+i}:{VF+8*k+i+1}], v[{F+2*k}:{F+2*k+1}], v[{VF+i}:{VF+i+1}] op_sel_hi:[1,0,1]")
    for i in range(0, 8, 2): E(f"v_pk_mul_f32 v[{VF+i}:{VF+i+1}], v[{VF+i}:{VF+i+1}], v[{T0}:{T0+1}] op_sel_hi:[1,0]")
    pack(P, VF, 4)
    build_A1(KF, P, SELS, 0)
    for i in range(8):
        if i < 7: build_A1(KF, P, SELS, i + 1)
        if latewo: E(f"s_waitcnt vmcnt({8 - i})")
        mm1(S_+4 if latewo else S_, KF, WO, i)
    S2 = S_+4 if latewo else S_
    g2_fin(S2)
    E(f"s_mov_b64 exec, 0x00ff00ff\nglobal_store_dwordx4 v{FAS}, v[{S2}:{S2+3}], s[26:27] sc1")
    if stamps:
        stamp(9)
        E(f"s_mov_b64 exec, 1\ns_lshl2_add_u32 s58, s2, s3\ns_lshl_b32 s58, s58, 4\ns_add_u32 s58, s58, {STAMPS + 0x10000}\nv_mov_b32 v1, s58\nv_mov_b32 v4, s90\nv_mov_b32 v5, s72\ns_sub_u32 s59, s84, s64\nv_mov_b32 v6, s59\nv_mov_b32 v7, s10\nglobal_store_dwordx4 v1, v[4:7], s[26:27]\nv_mov_b32 v8, s96\nv_mov_b32 v9, s76\nv_mov_b32 v10, s33\nv_mov_b32 v11, s62\nv_add_u32 v1, 0x4000, v1\nglobal_store_dwordx4 v1, v[8:11], s[26:27]")
        E(f"s_mov_b64 exec, 0xffff\nv_writelane_b32 v244, s96, 14\nv_writelane_b32 v244, s13, 15\ns_lshl2_add_u32 s58, s2, s3\ns_lshl_b32 s58, s58, 6\ns_add_u32 s58, s58, {STAMPS + 0x20000}\nv_lshl_add_u32 v1, v0, 2, s58\nglobal_store_dword v1, v244, s[26:27]")
        E("s_cmp_lg_u32 s33, 3\ns_cbranch_scc1 L_end2")
        E('s_mov_b32 s86, s94\ns_mov_b32 s88, s90'); dump_stamps(0, 13)
        E("L_end2:")
    E("s_endpgm")
    NV = 248
    E(f'''.section .rodata,"a"
.p2align 6
.amdhsa_kernel {KN}
.amdhsa_next_free_vgpr {NV}
.amdhsa_next_free_sgpr 102
.amdhsa_accum_offset {NV}
.amdhsa_group_segment_fixed_size 0
.amdhsa_kernarg_size 96
.amdhsa_user_sgpr_count 2
.amdhsa_user_sgpr_kernarg_segment_ptr 1
.amdhsa_system_sgpr_workgroup_id_x 1
.amdhsa_float_denorm_mode_32 3
.end_amdhsa_kernel''')
    hdr = f"""; out = x + (attn(LN(x)) @ wo) * silu(GEGLU_FFN(LN(x)))   -- one persistent launch, 256 WGs (1 per CU) x 8 waves.
; @launch grid=(256,1,1) block=(512,1,1) lds={LDS_TOTAL}
"""
    if "wlin" in exp:
        i = E.L.index(f"v_lshl_add_u32 v{VW}, v{T0}, 14, v{T1}")
        E.L[i] = f"v_lshlrev_b32 v{VW}, 4, v0"
        i = E.L.index("s_cselect_b32 s42, 131072, 0")
        assert E.L[i+2] == "s_lshl_b32 s59, s59, 7"
        E.L[i+2] = "s_lshl_b32 s59, s59, 13"
    if "w512" in exp:
        i = E.L.index(f"v_lshl_add_u32 v{VW}, v{T0}, 14, v{T1}")
        E.L[i:i+1] = [f"v_lshrrev_b32 v{VW}, 5, v0", f"v_lshlrev_b32 v{VW}, 14, v{VW}", f"v_and_b32 v{T1}, 31, v0", f"v_lshl_add_u32 v{VW}, v{T1}, 4, v{VW}"]
        i = E.L.index("s_cselect_b32 s42, 131072, 0")
        E.L[i+1:i+3] = ["s_lshl_b32 s59, s29, 9", "s_lshl_b32 s58, s3, 15", "s_add_u32 s59, s59, s58"]
    if "nohop1" in exp:
        i0 = E.L.index("L_hint:"); i1 = E.L.index("L_c2:")
        E.L[i0:i1+1] = []
    if "noap" in exp:
        E.L = [l for l in E.L if not (l.startswith(f"global_store_dwordx4 v{APA},") or l.startswith(f"global_store_dwordx4 v{APB},") or l.startswith(f"global_store_dwordx4 v{APM},"))]
    if "noq" in exp:
        i0 = E.L.index("L_qgo:"); i1 = E.L.index("L_pok0:")
        E.L[i0+1:i1+1] = []
    if "q1" in exp:
        E.L = [l for l in E.L if not (l.startswith("global_load_dwordx4") and ", v4, s[26:27] offset:" in l and "offset:0 " not in l)]
        i0 = E.L.index("L_chk0:"); i1 = E.L.index("L_pok0:")
        E.L[i0+2:i1] = []
    if "nogp" in exp:
        E.L = [l for l in E.L if not l.startswith("global_store_dwordx4 v5, v[160:163]")]
        i0 = E.L.index("L_gt:"); i1 = E.L.index("L_pok1:")
        E.L[i0:i1+1] = []
    text = hdr + E.finish()
    if warm:
        import pads
        text, cnt = pads.place(text, [(KN, "L_e0", "PS", False), ("L_loop", "L_e1", "PL", True), ("L_aux", "L_e2", "PA", True), ("L_noffn", None, "PT", False)])
        names = lambda p: [f"{p}{i}" for i in range(cnt[p])]
        PS, PL, PA, PT = names("PS"), names("PL"), names("PA"), names("PT")
        early = PA[:2] + PS[:2]
        rest = PA[2:] + PL + PS[2:]
        chains = {"W1": [[x] for x in early] + [[]] * (4 - len(early)), "W2": [rest[i::4] for i in range(4)], "W3": [PT]}
        for ph, ret in (("W1", "L_ret1"), ("W2", "L_ret2"), ("W3", "L_ret3")):
            for w, ch in enumerate(chains[ph]):
                seq = ch + [ret]
                text = re.sub(rf"{ret} ;;{ph}_{w}\b", seq[0], text)
                for a_, b_ in zip(seq, seq[1:]): text = text.replace(f"@{a_}@", b_)
        assert "@P" not in text
    return text

if __name__ == "__main__":
    import json
    kw = json.loads(sys.argv[2]) if len(sys.argv) > 2 else {}
    open(sys.argv[1], "w").write(gen(**kw))
```

```python
import sys, struct, re
from asmlib import Asm
KN = "recurrent_scan__gqa_block_cached__glu_gated_geglu__decode_kernel"

def f2u(x): return struct.unpack("<I", struct.pack("<f", x))[0]

CNT, QP, NF, FP, AP, GP, STAMPS = 0x300000, 0x10000, 0x40000, 0x80000, 0x100000, 0x280000, 0x400000
PART = 131072
MLL  = PART + 4096
QL   = MLL + 512
SCR  = QL + 2048
OS   = SCR + 8192
HS   = OS + 1024 + 32
FLG  = HS + 128
LDS_TOTAL = FLG + 64
LOG2E = 1.4426950408889634
DPP = "row_mask:0xf bank_mask:0xf"

def gen(pk="nt", pw="nt", stamps=False, diag=None, warm=True, Y=4, YW=4, wl=2, Li=2, tk=12, nret=464, tlate=True, hoff=72, hx=8,
        ltok=9, gy=4, gw=7, latewo=0, relth=32, np2=False, esc=1, nesc=None, gtok=40, sleep=1, hsleep=1, hintsleep=1, tsl=1, ssleep=0, c1thr=5, cstr=256, um=3, fast1=True, swap=True, earr=False, S=6, TB=10, exp=()):
    TM = (1 << TB) - 1
    TMASK = hex(0xffffffff ^ TM)
    NK = S // 2
    NV0 = (S + 1) // 2
    E = Asm()
    def stamp(i):
        if stamps: E(f"s_memrealtime s[{64+2*i}:{65+2*i}]\ns_waitcnt lgkmcnt(0)")
    nls = [0]
    def lstamp(i, t):
        if stamps:
            nls[0] += 1
            E(f"s_cmp_eq_u32 s33, {t}\ns_cbranch_scc0 L_ls{nls[0]}"); stamp(i); E(f"L_ls{nls[0]}:")
    def dump_stamps(role, n):
        E(f"s_mov_b64 exec, 1\ns_lshl_b32 s58, s2, 8\ns_add_u32 s58, s58, {STAMPS + role*128}\nv_mov_b32 v1, s58")
        for i in range(n):
            E(f"v_mov_b32 v2, s{64+2*i}\nglobal_store_dword v1, v2, s[26:27] offset:{4*i}")
    def row_allreduce(regs, op, rs=(8, 4, 2, 1)):
        for r in rs:
            for v in regs: E(f"{op}_dpp v{v}, v{v}, v{v} row_ror:{r} {DPP}")
    def cross_rows(v, t, op):
        E(f"v_mov_b32 v{t}, v{v}\nv_permlane32_swap_b32 v{t}, v{v}\n{op} v{v}, v{v}, v{t}")
        E(f"v_mov_b32 v{t}, v{v}\nv_permlane16_swap_b32 v{t}, v{v}\n{op} v{v}, v{v}, v{t}")
    def wave_allreduce(v, t, op):
        row_allreduce([v], op); cross_rows(v, t, op)
    def fold4(*aa):
        for a in aa: E(f"v_permlane32_swap_b32 v{a}, v{a+2}\nv_permlane32_swap_b32 v{a+1}, v{a+3}")
        for a in aa: E(f"v_add_f32 v{a}, v{a}, v{a+2}\nv_add_f32 v{a+1}, v{a+1}, v{a+3}")
        for a in aa: E(f"v_permlane16_swap_b32 v{a}, v{a+1}")
        for a in aa: E(f"v_add_f32 v{a}, v{a}, v{a+1}")
    def rnd_bf16(v):
        E(f"v_cvt_pk_bf16_f32 v{v}, v{v}, v{v}\nv_and_b32 v{v}, 0xffff0000, v{v}")
    def unpack(dst, src, n):
        for i in range(n): E(f"v_lshlrev_b32 v{dst+2*i}, 16, v{src+i}\nv_and_b32 v{dst+2*i+1}, 0xffff0000, v{src+i}")
    def pack(dst, src, n):
        for i in range(n): E(f"v_cvt_pk_bf16_f32 v{dst+i}, v{src+2*i}, v{src+2*i+1}")
    def make_sel(SEL, t):
        E(f"""
v_and_b32 v{t}, 1, v0
v_cmp_eq_u32 vcc, 1, v{t}
v_mov_b32 v{t+1}, 0x0c0c0100
v_mov_b32 v{t+2}, 0x01000c0c
v_cndmask_b32 v{t+1}, v{t+1}, v{t+2}, vcc
v_mov_b32 v{t+2}, 0x0c0c0302
v_mov_b32 v{t+3}, 0x03020c0c
v_cndmask_b32 v{t+2}, v{t+2}, v{t+3}, vcc
v_bfe_u32 v{t}, v0, 1, 2
v_mov_b32 v{t+3}, 0x0c0c0c0c
""")
        for k in range(4):
            E(f"v_cmp_eq_u32 vcc, {k}, v{t}\nv_cndmask_b32 v{SEL+2*k}, v{t+3}, v{t+1}, vcc\nv_cndmask_b32 v{SEL+2*k+1}, v{t+3}, v{t+2}, vcc")
    def build_A1(dst, pk_, SEL, i):
        for k in range(4):
            E(f"v_perm_b32 v{dst+4*i+k}, v{pk_+i//2}, v{pk_+i//2}, v{SEL+2*k+(i&1)}")
    def build_A(dst, pk_, SEL):
        for i in range(8): build_A1(dst, pk_, SEL, i)
    def mm1(d, a, b, i):
        c = "0" if i == 0 else f"v[{d}:{d+3}]"
        E(f"v_mfma_f32_16x16x32_bf16 v[{d}:{d+3}], v[{a+4*i}:{a+4*i+3}], v[{b+4*i}:{b+4*i+3}], {c}")
    def mm(d, a, b, wait=None):
        for i in range(8):
            if wait: E(wait(i))
            mm1(d, a, b, i)
    def calc_cl():
        E("""
s_and_b32 s59, s2, 7
s_lshl3_add_u32 s31, s28, s59
s_sub_u32 s59, s59, s28
s_sub_u32 s59, s59, s28
s_sub_u32 s59, s59, 2
s_and_b32 s59, s59, 7
s_mul_i32 s58, s28, 6
s_add_u32 s58, s58, s59
s_add_u32 s58, s58, 32
s_cmp_lt_u32 s59, 6
s_cselect_b32 s58, s58, 63
s_bitcmp1_b32 s2, 5
s_cselect_b32 s31, s58, s31
""")

    E(f'.amdgcn_target "amdgcn-amd-amdhsa--gfx950"\n.text\n.p2align 12\n.globl {KN}\n.p2align 8\n.type {KN},@function\n{KN}:')
    E(f"""
s_load_dwordx16 s[4:19], s[0:1], 0
s_load_dwordx8 s[20:27], s[0:1], 64
s_cmp_ge_u32 s2, 256
s_cbranch_scc1 L_end0
v_and_b32 v2, 60, v0
v_add_u32 v2, {FLG}, v2
v_mov_b32 v5, 0
ds_write_b32 v2, v5
v_lshrrev_b32 v1, 6, v0
v_and_b32 v0, 63, v0
""")
    if stamps: E("s_memrealtime s[64:65]")
    E("""
v_readfirstlane_b32 s3, v1
s_bfe_u32 s29, s2, 0x20003
s_lshr_b32 s28, s2, 6
s_bfe_u32 s58, s2, 0x10005
s_and_b32 s59, s2, 7
s_lshl3_add_u32 s30, s58, s59
s_and_b32 s32, s2, 63
""")
    if swap: E("s_bitcmp1_b32 s3, 2\ns_cbranch_scc1 L_str")
    else: E("s_cmp_lt_u32 s3, 4\ns_cbranch_scc1 L_str")
    XF, XR, WF, AX, WG_, WU_, SELA, TG, G = 8, 16, 20, 52, 84, 116, 148, 156, 160
    E(f"""
s_setprio 3
s_and_b32 s3, s3, 3
v_lshlrev_b32 v1, 5, v0
v_lshrrev_b32 v2, 3, v0
v_and_b32 v4, 7, v0
v_lshlrev_b32 v4, 4, v4
v_lshl_add_u32 v4, v2, 16, v4
s_lshl2_add_u32 s58, s29, s3
s_lshl_b32 s59, s58, 7
v_lshl_add_u32 v3, v2, 4, s59
s_lshl_b32 s58, s58, 19
s_lshl4_add_u32 s59, s28, s30
s_lshl_b32 s59, s59, 7
s_add_u32 s58, s58, s59
s_waitcnt lgkmcnt(0)
global_load_dwordx4 v[{XF}:{XF+3}], v1, s[4:5]
global_load_dwordx4 v[{XF+4}:{XF+7}], v1, s[4:5] offset:16
global_load_dwordx4 v[{XR}:{XR+3}], v3, s[4:5]
s_add_u32 s10, s10, s58
s_addc_u32 s11, s11, 0
""")
    for i in range(8):
        E(f"global_load_dwordx4 v[{WF+4*i}:{WF+4*i+3}], v4, s[10:11] {pw}")
        if i < 7: E("v_add_u32 v4, 0x2000, v4")
    E("s_load_dword s36, s[26:27], 0")
    E("s_barrier")
    E("s_branch L_aux\nL_end0:\ns_endpgm")

    LDA, LDB, LDA2, LDB2, VW, LL = 2, 3, 4, 5, 6, 7
    KA, VA = 8, 12
    VM, VL, T0, T1 = 20, 21, 22, 23
    QF, KF, VF, S_, F, P, O, WD, WO, SELS = 24, 40, 72, 104, 112, 120, 124, 156, 188, 220
    FAS, FAD, OSA, APA, APM, FLA, ONE, MSK, ORD, HSA, APB, NFA, MLW, AR2, TWO = 228, 229, 230, 231, 232, 233, 234, 235, 236, 237, 238, 239, 240, 241, 242
    SS = WD
    E("L_str:\ns_and_b32 s3, s3, 3")
    if warm:
        E("s_mov_b64 exec, 0")
        for w in range(3): E(f"s_cmp_eq_u32 s3, {w}\ns_cbranch_scc1 L_ret1 ;;W1_{w}")
        E("s_branch L_ret1 ;;W1_3\nL_ret1:\ns_mov_b64 exec, -1")
    E(f"""
s_waitcnt lgkmcnt(0)
s_barrier
s_load_dword s36, s[26:27], 0
v_mov_b32 v{FLA}, {FLG}
v_mov_b32 v{ONE}, 1
v_mov_b32 v{TWO}, 2
s_cmp_lg_u32 s3, 0
s_cbranch_scc1 L_noini2
s_cmp_lg_u32 s32, 0
s_cbranch_scc1 L_noinit
s_mul_i32 s59, s28, {8*cstr}
s_add_u32 s59, s59, {CNT}
v_mul_u32_u24 v{T0}, {cstr}, v0
v_add_u32 v{T0}, s59, v{T0}
v_mov_b32 v{T1}, 0
s_mov_b64 exec, 15
v_mov_b32 v{T1}, {64*S}
s_mov_b64 exec, 31
global_store_dword v{T0}, v{T1}, s[26:27] sc1
s_waitcnt vmcnt(0)
L_noinit:
s_mov_b64 exec, 1
ds_add_u32 v{FLA}, v{ONE} offset:20
s_mov_b64 exec, -1
L_noini2:
""")
    if warm:
        E("s_mov_b64 exec, 0")
        for w in range(3): E(f"s_cmp_eq_u32 s3, {w}\ns_cbranch_scc1 L_ret2 ;;W2_{w}")
        E("s_branch L_ret2 ;;W2_3\nL_ret2:\ns_mov_b64 exec, -1")
    E(f"""
v_lshrrev_b32 v1, 4, v0
v_and_b32 v{LDA}, 15, v0
v_lshlrev_b32 v{LDB}, 1, v1
v_xor_b32 v{LDA}, v{LDA}, v{LDB}
v_lshlrev_b32 v{LDA}, 4, v{LDA}
v_lshl_add_u32 v{LDA}, v1, 8, v{LDA}
v_xor_b32 v{LDB}, 0x80, v{LDA}
v_add_u32 v{LDA2}, 0x1000, v{LDA}
v_add_u32 v{LDB2}, 0x1000, v{LDB}
s_mul_i32 s38, s28, {hoff}
s_add_u32 s38, s38, s3
s_lshl2_add_u32 s35, s32, s38
s_lshl_b32 s59, s28, 24
s_lshl_b32 s34, s3, 15
s_add_u32 s54, s6, s59
s_addc_u32 s55, s7, 0
s_add_u32 s56, s8, s59
s_addc_u32 s57, s9, 0
s_lshr_b32 s39, s2, 3
s_add_u32 s39, s39, s3
s_and_b32 s39, s39, 3
""")
    if um == 3: E("s_lshr_b32 s58, s32, 3\ns_xor_b32 s35, s32, s58\ns_lshl_b32 s58, s39, 6\ns_add_u32 s35, s35, s58\ns_add_u32 s35, s35, s38\ns_sub_u32 s35, s35, s3")
    E(f"s_lshl_b32 s39, s39, 1\ns_add_u32 s39, s39, {4 - Li}")
    def ld_w(srd, dst):
        for i in range(8):
            so = "0" if i < 2 else f"s{50 + i//2}"
            if "wlin" in exp:
                so = "0" if i < 4 else "s51"
                E(f"buffer_load_dwordx4 v[{dst+4*i}:{dst+4*i+3}], v{VW}, s[{srd}:{srd+3}], {so} offen offset:{(i&3)*1024} {pw}")
                continue
            E(f"buffer_load_dwordx4 v[{dst+4*i}:{dst+4*i+3}], v{VW}, s[{srd}:{srd+3}], {so} offen offset:{(i&1)*2048} {pw}")
    def tok_wait(lbl, kv=False):
        if kv and esc:
            E(f"""
s_branch {lbl}_c
{lbl}:
s_sleep {tsl}
{lbl}_c:
ds_read_b64 v[{S_+4}:{S_+5}], v{FLA}
s_waitcnt lgkmcnt(0)
v_cmp_gt_i32 vcc, s39, v{S_+4}
v_cmp_gt_u32 s[58:59], {esc}, v{S_+5}
s_and_b64 vcc, vcc, s[58:59]
s_cbranch_scc1 {lbl}
""")
            return
        E(f"""
s_branch {lbl}_c
{lbl}:
s_sleep {tsl}
{lbl}_c:
ds_read_b32 v{S_+4}, v{FLA}
s_waitcnt lgkmcnt(0)
v_cmp_gt_i32 vcc, s39, v{S_+4}
s_cbranch_vccnz {lbl}
""")
    def take_turn():
        E(f"s_mov_b64 exec, 1\nds_add_rtn_u32 v{S_+4}, v{FLA}, v{TWO} offset:28\ns_mov_b64 exec, -1\ns_waitcnt lgkmcnt(0)\nv_readfirstlane_b32 s39, v{S_+4}\ns_add_u32 s39, s39, {8 + 4 - Li}")
    def tok_pass(fla, one):
        E(f"s_mov_b64 exec, 1\nds_add_u32 v{fla}, v{one}\ns_mov_b64 exec, -1")
    E(f"""
s_lshl4_add_u32 s31, s28, s30
s_mov_b32 s42, {56*2048}
s_lshl2_add_u32 s59, s29, s3
s_lshl_b32 s59, s59, 7
s_mul_i32 s58, s31, {56*2048}
s_add_u32 s58, s58, s59
s_add_u32 s40, s20, s58
s_addc_u32 s41, s21, 0
s_mov_b32 s43, 0x20000
s_lshl4_add_u32 s58, s28, s30
s_lshl_b32 s58, s58, 17
s_add_u32 s58, s58, s59
s_add_u32 s44, s12, s58
s_addc_u32 s45, s13, 0
s_mov_b32 s46, {64*2048}
s_mov_b32 s47, 0x20000
s_movk_i32 s51, 0x1000
s_movk_i32 s52, 0x2000
s_movk_i32 s53, 0x3000
v_lshrrev_b32 v{T0}, 3, v0
v_and_b32 v{T1}, 7, v0
v_lshlrev_b32 v{T1}, 4, v{T1}
v_lshl_add_u32 v{VW}, v{T0}, 14, v{T1}
v_lshlrev_b32 v{OSA}, 5, v{T0}
v_add_u32 v{OSA}, {OS}, v{OSA}
v_lshlrev_b32 v{HSA}, 4, v{T0}
v_add_u32 v{HSA}, {HS}, v{HSA}
s_lshl_b32 s58, s3, 15
v_and_b32 v{T0}, 15, v0
v_and_b32 v{T1}, 7, v0
v_lshlrev_b32 v{T1}, 1, v{T1}
v_xor_b32 v{T1}, v{T1}, v1
v_lshlrev_b32 v{T1}, 4, v{T1}
v_lshl_add_u32 v{KA}, v{T0}, 8, v{T1}
v_add_u32 v{KA}, s58, v{KA}
v_xor_b32 v{KA+1}, 64, v{KA}
v_xor_b32 v{KA+2}, 0x80, v{KA}
v_xor_b32 v{KA+3}, 0xc0, v{KA}
s_add_u32 s58, s58, 0x4000
v_lshrrev_b32 v{T0}, 2, v0
v_and_b32 v{T1}, 7, v{T0}
v_lshlrev_b32 v{T1}, 5, v{T1}
v_lshl_add_u32 v{VA}, v{T0}, 8, v{T1}
v_and_b32 v{T1}, 3, v0
v_lshl_add_u32 v{VA}, v{T1}, 3, v{VA}
v_add_u32 v{VA}, s58, v{VA}
""")
    for db in range(1, 8): E(f"v_xor_b32 v{VA+db}, {db*32}, v{VA}")
    E(f"v_mov_b32 v{VM}, 0xff7f0000\nv_mov_b32 v{VL}, 0")
    for i in range(32): E(f"v_mov_b32 v{O+i}, 0")
    E("s_waitcnt lgkmcnt(0)")
    make_sel(SELS, F)
    E(f"""
v_lshlrev_b32 v{LL}, 4, v0
v_add_u32 v{LL}, {PART}, v{LL}
v_lshlrev_b32 v{MLW}, 3, v0
v_add_u32 v{MLW}, {MLL}, v{MLW}
s_lshl_b32 s58, s28, 10
s_add_u32 s58, s58, s32
s_mul_i32 s58, s58, 384
s_add_u32 s58, s58, {AP}
v_and_b32 v{T0}, 7, v0
v_bfe_u32 v{T1}, v0, 3, 1
v_mul_u32_u24 v{APA}, {2*64*384}, v{T0}
v_add_u32 v{APA}, s58, v{APA}
v_mul_u32_u24 v{APM}, {64*384}, v{T1}
v_add_u32 v{APM}, v{APM}, v{APA}
v_lshl_add_u32 v{APA}, v{T1}, 6, v{APA}
v_lshl_add_u32 v{APA}, v1, 4, v{APA}
v_add_u32 v{APB}, {64*384}, v{APA}
s_lshl_b32 s58, s28, 13
s_add_u32 s58, s58, {NF}
v_lshl_add_u32 v{NFA}, v0, 7, s58
s_mul_i32 s58, s28, {8*cstr}
s_add_u32 s58, s58, {CNT + 4*cstr}
s_add_u32 s14, s26, s58
s_addc_u32 s15, s27, 0
v_mov_b32 v{MSK}, {TMASK}
s_lshl3_add_u32 s58, s28, s3
s_mul_i32 s58, s58, {cstr}
s_add_u32 s58, s58, {CNT}
s_add_u32 s48, s26, s58
s_addc_u32 s49, s27, 0
s_lshl2_add_u32 s58, s29, s3
s_lshl_b32 s58, s58, 15
s_add_u32 s58, s58, {FP}
v_bfe_u32 v{T0}, v0, 2, 1
v_lshl_add_u32 v{FAS}, v{T0}, 14, s58
v_and_b32 v{T0}, 3, v0
v_lshl_add_u32 v{FAS}, v{T0}, 5, v{FAS}
v_bfe_u32 v{T0}, v0, 4, 1
v_lshl_add_u32 v{FAS}, v{T0}, 4, v{FAS}
s_add_u32 s59, s31, 64
s_lshl_b32 s59, s59, 7
v_add_u32 v{FAD}, s59, v{FAS}
s_lshl4_add_u32 s58, s28, s30
s_lshl_b32 s58, s58, 7
v_add_u32 v{FAS}, s58, v{FAS}
s_add_u32 s36, s36, 0x01010101
s_lshr_b32 s16, s36, 8
s_lshr_b32 s17, s36, 16
s_lshr_b32 s18, s36, 24
s_mov_b32 s33, 0
s_mov_b32 s60, {f2u(128 ** -0.5):#x}
s_mov_b32 s61, {f2u(LOG2E):#x}
s_mov_b32 s10, 0
s_mov_b32 s20, 0xff00ff00
s_mov_b32 s21, 0xff00ff00
""")
    E(f"""
v_and_b32 v{T0}, 7, v0
v_lshlrev_b32 v{T0}, 8, v{T0}
v_lshl_add_u32 v{T0}, v1, 4, v{T0}
v_add_u32 v{T0}, {QL}, v{T0}
s_mov_b32 s13, 0
s_mov_b32 s62, 0
s_mov_b32 s11, 0
s_mov_b32 s19, -1
s_branch L_loop
L_pro:
s_waitcnt vmcnt({Y})
""")
    tok_pass(FLA, ONE)
    E(f"""
s_cmp_eq_u32 s13, 1
s_cbranch_scc1 L_loop
L_qw:
s_sleep 1
ds_read_b32 v{T1}, v{FLA} offset:8
s_waitcnt lgkmcnt(0)
v_cmp_ne_u32 vcc, 4, v{T1}
s_cbranch_vccnz L_qw
s_branch L_qr
L_t1:
s_sleep 1
ds_read_b96 v[{S_+4}:{S_+6}], v{FLA}
ds_read_b32 v{S_+7}, v{FLA} offset:28
s_waitcnt lgkmcnt(0)
v_cmp_eq_u32 vcc, 4, v{S_+6}
s_cbranch_vccnz L_qr
v_sub_u32 v{S_+4}, v{S_+4}, v{S_+7}
v_cmp_gt_i32 vcc, {8 + 4 - Li}, v{S_+4}
s_cbranch_vccnz L_t1
s_branch L_tk
L_qr:
""")
    stamp(3)
    for j in range(4): E(f"ds_read_b128 v[{QF+4*j}:{QF+4*j+3}], v{T0} offset:{64*j}")
    E("s_mov_b32 s10, 1\ns_mov_b32 s12, s13\ns_branch L_kjob\nL_e0:\n.p2align 12")

    def k_reads(regs, slot):
        for s in range(2):
            for j in range(4):
                r = regs + (s*4+j)*4
                E(f"ds_read_b128 v[{r}:{r+3}], v{KA+j} offset:{slot*8192 + s*4096}")
        E(f"ds_read_b32 v{ORD}, v{FLA}")
        for s in range(2):
            for j in range(4):
                r = regs + (s*4+j)*4
                E(f"s_waitcnt lgkmcnt({8-(s*4+j)})")
                c = "0" if j == 0 else f"v[{S_+4*s}:{S_+4*s+3}]"
                E(f"v_mfma_f32_16x16x32_bf16 v[{S_+4*s}:{S_+4*s+3}], v[{r}:{r+3}], v[{QF+4*j}:{QF+4*j+3}], {c}")
    def round_scores(dst):
        pack(P, S_, 4); unpack(F, P, 4)
        for i in range(8): E(f"v_mul_f32 v{F+i}, s60, v{F+i}")
        pack(dst, F, 4); unpack(F, dst, 4)
    def exps(m):
        for i in range(8): E(f"v_sub_f32 v{F+i}, v{F+i}, v{m}")
        for i in range(8): E(f"v_mul_f32 v{F+i}, s61, v{F+i}")
        for i in range(8): E(f"v_exp_f32 v{F+i}, v{F+i}")
    def sum8():
        E(f"""
v_add_f32 v{F}, v{F}, v{F+1}
v_add_f32 v{F+2}, v{F+2}, v{F+3}
v_add_f32 v{F+4}, v{F+4}, v{F+5}
v_add_f32 v{F+6}, v{F+6}, v{F+7}
v_add_f32 v{F}, v{F}, v{F+2}
v_add_f32 v{F+4}, v{F+4}, v{F+6}
v_add_f32 v{F}, v{F}, v{F+4}
""")
    def pv(regs, slot, p, dummy, toggle, after0=None, pre=None):
        for db in range(8):
            for s in range(2):
                r = regs + db*4 + s*2
                E(f"ds_read_b64_tr_b16 v[{r}:{r+1}], v{VA+db} offset:{slot*8192 + s*4096}")
        E(f"ds_read_b32 v{dummy}, v{FLA}")
        if pre: pre()
        for db in range(8):
            r = regs + db*4
            E(f"s_waitcnt lgkmcnt({min(14, 15-2*db)})")
            E(f"v_mfma_f32_16x16x32_bf16 v[{O+4*db}:{O+4*db+3}], v[{r}:{r+3}], v[{p}:{p+3}], v[{O+4*db}:{O+4*db+3}]")
            if toggle: E(f"v_xor_b32 v{VA+db}, 0x4000, v{VA+db}")
            if db == 0 and after0: E(after0)
    R = KF
    def rd_part():
        E(f"ds_read_b32 v{S_+4}, v{FLA} offset:12\nds_read_b64 v[{F}:{F+1}], v{MLW}")
        for d in range(4): E(f"ds_read_b128 v[{R+4*d}:{R+4*d+3}], v{LL} offset:{1024*d}")
    ARR = f"""
v_readfirstlane_b32 s63, v{AR2 if earr else ORD}
s_cmp_lg_u32 s63, 3
s_cbranch_scc1 LBL
s_mov_b32 s19, 1
s_atomic_add s19, s[14:15], 0 glc
"""
    E(f"""
L_loop:
s_cmp_ge_u32 s13, {S}
s_cbranch_scc1 L_dynp
s_lshl_b32 s58, s13, 9
s_add_u32 s58, s58, s35
s_cmp_lt_u32 s13, {NK}
s_cselect_b64 s[8:9], s[54:55], s[56:57]
s_cselect_b32 s59, 0, {-256*S}
s_add_u32 s59, s59, s58
s_add_u32 s59, s59, 256
s_cmp_lt_u32 s13, {NV0}
s_cselect_b64 s[6:7], s[54:55], s[56:57]
s_cselect_b32 s63, 0, {-256*S}
s_add_u32 s58, s58, s63
s_and_b32 s58, s58, 2047
s_lshl_b32 s58, s58, 13
s_and_b32 s59, s59, 2047
s_lshl_b32 s59, s59, 13
s_add_u32 s8, s8, s59
s_addc_u32 s9, s9, 0
s_add_u32 s6, s6, s58
s_addc_u32 s7, s7, 0
s_lshl1_add_u32 s58, s10, s13
s_cmp_eq_u32 s58, 1
s_cbranch_scc1 L_t1
s_cmp_eq_u32 s13, 0
s_cbranch_scc1 L_tw_c
s_cmp_lt_u32 s13, {NV0}
s_cbranch_scc1 L_tk
""")
    for h, p in ((0, P), (1, S_)):
        unpack(F, SS + 4*h, 4); exps(VM); pack(p, F, 4); sum8()
        E(f"v_add_f32 v{VL}, v{VL}, v{F}")
    for i in range(16): E(f"v_mov_b32 v{SS+i}, v{SS+8+i}")
    E(f"""
s_branch L_tk
L_dynp:
s_lshl2_add_u32 s63, s62, s38
s_and_b32 s63, s63, 2047
s_lshl_b32 s63, s63, 13
s_add_u32 s6, s54, s63
s_addc_u32 s7, s55, 0
s_add_u32 s8, s56, s63
s_addc_u32 s9, s57, 0
""")
    E("L_tk:")
    take_turn()
    if nesc: E(f"s_cmp_ge_u32 s62, {nesc}\ns_cselect_b32 s39, 0, s39")
    tok_wait("L_tw", True)
    if stamps: E("s_memrealtime s[90:91]\ns_waitcnt lgkmcnt(0)\ns_mov_b32 m0, s13\nv_writelane_b32 v244, s90, m0")
    for j in range(16):
        if j == 8:
            E("s_add_u32 s39, s39, 1")
            tok_wait("L_tb", True)
        if j % 4 == 0: E(f"s_mov_b32 m0, s34" if j == 0 else f"s_add_u32 m0, s34, {hex(1024*j)}")
        v = [[LDA, LDB], [LDA2, LDB2]][(j >> 2) & 1][j & 1]
        base = 6 if j < 8 else 8
        E(f"global_load_lds_dwordx4 v{v}, s[{base}:{base+1}] offset:{(j&3)*1024} {pk}")
    E(f"""
s_xor_b32 s34, s34, 0x4000
s_add_u32 s13, s13, 1
s_waitcnt vmcnt({8 + Y})
""")
    tok_pass(FLA, ONE)
    E(f"""
s_cmp_ge_u32 s33, {S}
s_cbranch_scc1 L_mix
s_cmp_eq_u32 s10, 0
s_cbranch_scc1 L_pro
s_cmp_ge_u32 s33, {NV0}
s_cbranch_scc1 L_vjob
s_waitcnt vmcnt(8)
""")
    if S & 1: E(f"s_cmp_eq_u32 s33, {NK}\ns_cbranch_scc1 L_hyb")
    E("L_kjob:")
    k_reads(KF, 0)
    E(f"s_cmp_lt_u32 s33, s12\ns_cbranch_scc1 L_nopass\ns_waitcnt vmcnt({Y})"); tok_pass(FLA, ONE); E("L_nopass:")
    for i in range(16): E(f"v_mov_b32 v{SS+i}, v{SS+8+i}")
    def accmax():
        E(f"v_max3_f32 v{VM}, v{VM}, v{F}, v{F+1}\nv_max3_f32 v{T1}, v{F+2}, v{F+3}, v{F+4}\nv_max3_f32 v{VM}, v{VM}, v{F+5}, v{F+6}\nv_max3_f32 v{VM}, v{VM}, v{F+7}, v{T1}")
    round_scores(SS+16); accmax()
    E("s_waitcnt vmcnt(0)")
    k_reads(VF, 1)
    for i in range(4): E(f"v_xor_b32 v{KA+i}, 0x4000, v{KA+i}")
    round_scores(SS+20); accmax()
    E(f"""
s_add_u32 s33, s33, 1
s_cmp_lt_u32 s33, s13
s_cbranch_scc1 L_kjob
""")
    if S & 1:
        E("s_branch L_loop\nL_hyb:")
        k_reads(KF, 0)
        E(f"s_waitcnt vmcnt({Y})"); tok_pass(FLA, ONE)
        round_scores(SS+24); accmax()
        cross_rows(VM, T1, "v_max_f32")
        unpack(F, SS, 4); exps(VM); pack(P, F, 4); sum8()
        E(f"v_add_f32 v{VL}, v{VL}, v{F}\ns_waitcnt vmcnt(0)")
        def sh():
            for i in range(24): E(f"v_mov_b32 v{SS+i}, v{SS+4+i}")
        pv(VF, 1, P, ORD, True, pre=sh)
        E("s_add_u32 s33, s33, 1\ns_branch L_loop")
    else:
        E(f"s_cmp_lt_u32 s33, {NK}\ns_cbranch_scc1 L_loop")
        cross_rows(VM, T1, "v_max_f32")
        for i in range(4): E(f"v_xor_b32 v{KA+i}, 0x4000, v{KA+i}")
        E("s_branch L_loop")
    E("L_vjob:")
    E(f"""
s_cmp_lg_u32 s33, {S-1}
s_cbranch_scc1 L_notk
s_waitcnt vmcnt({tk})
s_mov_b32 s62, 1
s_atomic_add s62, s[48:49], 0 glc
L_notk:
s_waitcnt vmcnt(8)
""")
    pv(KF, 0, P, ORD, False)
    E(f"s_waitcnt vmcnt({Y})"); tok_pass(FLA, ONE)
    E("s_waitcnt vmcnt(0)")
    pv(VF, 1, S_, ORD, True)
    E(f"""
s_add_u32 s33, s33, 1
L_vend:
s_waitcnt lgkmcnt(0)
s_cmp_lt_u32 s62, 512
s_cbranch_scc1 L_loop
s_mov_b64 exec, 1
ds_add_rtn_u32 v{ORD}, v{FLA}, v{ONE} offset:4
ds_add_rtn_u32 v{AR2}, v{FLA}, v{ONE} offset:32
s_mov_b64 exec, -1
""")
    if stamps: E("s_memrealtime s[80:81]\ns_memrealtime s[94:95]\ns_waitcnt lgkmcnt(0)\ns_mov_b32 s72, s80")
    rd_part()
    E("s_waitcnt lgkmcnt(0)")
    E(ARR.replace("LBL", "L_stail"))
    E("s_branch L_stail")
    E(f"""
L_mix:
s_waitcnt vmcnt({tk})
s_add_u32 s62, s62, 64
s_cmp_ge_u32 s62, {nret + 64}
s_cselect_b32 s11, 1, 0
s_cbranch_scc1 {"L_ret" if earr else "L_static"}
s_mov_b32 s62, 1
s_atomic_add s62, s[48:49], 0 glc
""")
    if earr:
        E(f"s_branch L_static\nL_ret:\ns_mov_b32 s11, 1\ns_mov_b64 exec, 1\nds_add_rtn_u32 v{AR2}, v{FLA}, v{ONE} offset:32\ns_mov_b64 exec, -1\ns_waitcnt lgkmcnt(0)")
        E(ARR.replace("LBL", "L_static"))
    E("L_static:\ns_waitcnt vmcnt(8)")
    k_reads(KF, 0)
    E(f"s_waitcnt vmcnt({Y})"); tok_pass(FLA, ONE)
    for i in range(4): E(f"v_xor_b32 v{KA+i}, 0x4000, v{KA+i}")
    round_scores(P)
    E(f"""
v_max3_f32 v{T0}, v{F}, v{F+1}, v{F+2}
v_max3_f32 v{T1}, v{F+3}, v{F+4}, v{F+5}
v_max3_f32 v{T0}, v{T0}, v{F+6}, v{F+7}
v_max_f32 v{T0}, v{T0}, v{T1}
""")
    cross_rows(T0, T1, "v_max_f32")
    E(f"""
v_max_f32 v{T1}, v{T0}, v{VM}
v_sub_f32 v{T0}, v{VM}, v{T1}
v_mul_f32 v{T0}, s61, v{T0}
v_exp_f32 v{T0}, v{T0}
v_mov_b32 v{VM}, v{T1}
""")
    exps(T1)
    pack(P, F, 4); sum8()
    E(f"v_fma_f32 v{VL}, v{VL}, v{T0}, v{F}")
    if stamps: E("s_memrealtime s[94:95]")
    if tlate:
        E("s_cmp_eq_u32 s11, 0\ns_cbranch_scc1 L_pv")
    else:
        if earr: E("s_cmp_eq_u32 s11, 1\ns_cbranch_scc1 L_lt")
        E("s_waitcnt lgkmcnt(0)\ns_cmp_lt_u32 s62, 512\ns_cbranch_scc1 L_pv")
        if earr: E(f"s_mov_b64 exec, 1\nds_add_rtn_u32 v{AR2}, v{FLA}, v{ONE} offset:32\nL_lt:")
    if stamps: E("s_mov_b32 s80, s90\ns_mov_b32 s72, s90")
    E(f"s_mov_b64 exec, 1\nds_add_rtn_u32 v{ORD}, v{FLA}, v{ONE} offset:4\ns_mov_b64 exec, -1")
    rd_part()
    E("L_pv:\ns_waitcnt vmcnt(0)")
    def resc():
        for i in range(0, 32, 2): E(f"v_pk_mul_f32 v[{O+i}:{O+i+1}], v[{O+i}:{O+i+1}], v[{T0}:{T0+1}] op_sel_hi:[1,0]")
    if tlate:
        a0 = None if earr else "s_cmp_eq_u32 s11, 0\ns_cbranch_scc1 L_noat" + ARR.replace("LBL", "L_noat") + "L_noat:"
        pv(VF, 1, P, S_+5, True, after0=a0, pre=resc)
        E("s_add_u32 s33, s33, 1\ns_cmp_eq_u32 s11, 0\ns_cbranch_scc1 L_vend\ns_branch L_stail")
    else:
        pv(VF, 1, P, S_+5, True, after0="s_cmp_lt_u32 s62, 512\ns_cbranch_scc1 L_noat" + ("\ns_cmp_eq_u32 s11, 1\ns_cbranch_scc1 L_noat" if earr else "") + ARR.replace("LBL", "L_noat") + "L_noat:", pre=resc)
        E("s_add_u32 s33, s33, 1\ns_cmp_lt_u32 s62, 512\ns_cbranch_scc1 L_loop\ns_branch L_stail")

    def embed(r, n=4):
        for i in range(n): E(f"v_bfi_b32 v{r+i}, s37, v{r+i}, v{TG+i%4}")
    def strip(r, n=4):
        for i in range(n): E(f"v_and_b32 v{r+i}, s37, v{r+i}")
    npoll = [0]
    def poll(loads, grs, t, slp):
        n = npoll[0]; npoll[0] += 1
        MK = 40
        E("s_mov_b32 s62, 0")
        def tagw(r):
            E(f"v_xor_b32 v{t+1}, v{r}, v{TG}")
            for i in range(1, 4): E(f"v_bitop3_b32 v{t+1}, v{r+i}, v{TG+i}, v{t+1} bitop3:0xbe")
            E(f"v_and_b32 v{t+1}, s38, v{t+1}")
        if len(loads) == 1:
            E(f"L_poll{n}:\n{loads[0]}\ns_waitcnt vmcnt(0)")
            tagw(grs[0])
            E(f"v_cmp_ne_u32 vcc, 0, v{t+1}\ns_cbranch_vccz L_pok{n}\ns_mov_b64 exec, vcc")
        else:
            for l in loads: E(l)
            E(f"s_branch L_chk{n}\nL_poll{n}:")
            for k, l in enumerate(loads):
                E(f"s_mov_b64 exec, s[{MK+2*k}:{MK+2*k+1}] ;nopad\ns_cbranch_execz L_pl{n}_{k} ;nopad\n{l} ;nopad\nL_pl{n}_{k}:")
            E(f"s_mov_b64 exec, -1 ;nopad\nL_chk{n}:\ns_waitcnt vmcnt(0)")
            for k, r in enumerate(grs):
                tagw(r)
                E(f"v_cmp_ne_u32 s[{MK+2*k}:{MK+2*k+1}], 0, v{t+1}")
            E(f"s_or_b64 vcc, s[{MK}:{MK+1}], s[{MK+2}:{MK+3}]")
            for k in range(2, len(loads)): E(f"s_or_b64 vcc, vcc, s[{MK+2*k}:{MK+2*k+1}]")
            E(f"s_cbranch_scc0 L_pok{n}")
        E("s_add_u32 s62, s62, 1\ns_cmp_ge_u32 s62, 0x200000")
        if slp: E(f"s_sleep {slp}")
        E(f"s_cbranch_scc0 L_poll{n}\nL_pok{n}:")
        if len(loads) == 1: E("s_mov_b64 exec, -1")

    E("L_e1:\n.p2align 12\nL_aux:")
    E(f"s_mov_b32 s37, 0xffffff00\ns_movk_i32 s38, 0xff")
    make_sel(SELA, 4)
    calc_cl()
    E(f"""
s_lshl_b32 s58, s3, 10
s_add_u32 s58, s58, {SCR}
v_lshl_add_u32 v2, v0, 4, s58
v_bfe_u32 v3, v0, 1, 3
v_and_b32 v1, 1, v0
v_lshl_add_u32 v3, v1, 4, v3
v_lshlrev_b32 v3, 4, v3
v_add_u32 v3, {SCR}, v3
""")
    GV = 200
    Q_ = [("g", i) for i in range(8)] + [("u", i) for i in range(8)]
    def gu_issue():
        m, i = Q_.pop(0)
        srd, dst = (40, WG_) if m == "g" else (44, WU_)
        if i == 0: E("s_mov_b32 s48, 0")
        E(f"buffer_load_dwordx4 v[{dst+4*i}:{dst+4*i+3}], v{GV}, s[{srd}:{srd+3}], s48 offen {pw}")
        if i < 7: E("s_add_u32 s48, s48, 7168")
    if True:
        E(f"""
s_lshl2_add_u32 s58, s29, s3
s_mul_i32 s59, s58, {64*7168}
s_lshl_b32 s58, s31, 7
s_add_u32 s59, s59, s58
s_add_u32 s40, s16, s59
s_addc_u32 s41, s17, 0
s_add_u32 s44, s18, s59
s_addc_u32 s45, s19, 0
s_cmp_lt_u32 s31, 56
s_cselect_b32 s42, {64*7168}, 0
s_mov_b32 s46, s42
s_mov_b32 s43, 0x20000
s_mov_b32 s47, 0x20000
v_lshrrev_b32 v1, 3, v0
v_and_b32 v4, 7, v0
v_lshlrev_b32 v5, 4, v4
v_mul_u32_u24 v{GV}, {8*7168}, v1
v_add_u32 v{GV}, v{GV}, v5
""")
    E("s_waitcnt vmcnt(9)")
    unpack(G, XF, 8)
    E(f"v_add_f32 v1, v{G}, v{G+1}\nv_add_f32 v5, v{G+2}, v{G+3}")
    for i in range(4, 16, 2): E(f"v_add_f32 v1, v1, v{G+i}\nv_add_f32 v5, v5, v{G+i+1}")
    E("v_add_f32 v1, v1, v5")
    wave_allreduce(1, 5, "v_add_f32")
    E(f"v_mul_f32 v1, {f2u(1/1024):#x}, v1")
    for i in range(16): E(f"v_sub_f32 v{G+i}, v{G+i}, v1")
    E(f"v_mul_f32 v6, v{G}, v{G}\nv_mul_f32 v5, v{G+1}, v{G+1}")
    for i in range(2, 16, 2): E(f"v_fmac_f32 v6, v{G+i}, v{G+i}\nv_fmac_f32 v5, v{G+i+1}, v{G+i+1}")
    E("v_add_f32 v6, v6, v5")
    wave_allreduce(6, 5, "v_add_f32")
    E(f"v_mul_f32 v6, {f2u(1/1024):#x}, v6")
    rnd_bf16(1); rnd_bf16(6)
    E(f"v_add_f32 v6, {f2u(1e-5):#x}, v6")
    rnd_bf16(6)
    E("v_sqrt_f32 v6, v6")
    rnd_bf16(6)
    E("v_rcp_f32 v6, v6\ns_waitcnt vmcnt(8)")
    unpack(G, XR, 4)
    for i in range(8): E(f"v_sub_f32 v{G+i}, v{G+i}, v1")
    pack(XR, G, 4); unpack(G, XR, 4)
    for i in range(8): E(f"v_mul_f32 v{G+i}, v{G+i}, v6")
    pack(XR, G, 4)
    build_A(AX, XR, SELA)
    stamp(1)
    E("s_cmp_lt_u32 s31, 56\ns_cbranch_scc1 L_gd1\ns_waitcnt vmcnt(0)\nL_gd1:")
    nis = 0
    for i in range(8):
        E(f"s_waitcnt vmcnt({7 - i + nis})")
        if 7 - i + nis < gw:
            gu_issue(); nis += 1
        mm1(G, AX, WF, i)
    E(f"""
s_waitcnt lgkmcnt(0)
s_add_u32 s36, s36, 0x01010101
v_mov_b32 v{TG}, s36
s_lshr_b32 s58, s36, 8
v_mov_b32 v{TG+1}, s58
s_lshr_b32 s58, s36, 16
v_mov_b32 v{TG+2}, s58
s_lshr_b32 s58, s36, 24
v_mov_b32 v{TG+3}, s58
v_mov_b32 v5, {FLG}
v_mov_b32 v6, 1
ds_write_b128 v2, v[{G}:{G+3}]
s_mov_b64 exec, 1
ds_add_u32 v5, v6 offset:20
s_mov_b64 exec, -1
""")
    stamp(2)
    E(f"""
s_cmp_lg_u32 s3, 0
s_cbranch_scc1 L_qpub
L_xw:
ds_read_b32 v6, v5 offset:20
s_waitcnt lgkmcnt(0)
v_cmp_ne_u32 vcc, 5, v6
s_cbranch_vccnz L_xw
""")
    for k in range(8):
        E(f"ds_read_b128 v[{G+4*k}:{G+4*k+3}], v3 offset:{(k // 2) * 1024 + (k % 2) * 640}")
    E(f"""
s_lshl4_add_u32 s58, s28, s30
s_lshl2_add_u32 s58, s58, s29
s_lshl_b32 s58, s58, 8
s_add_u32 s58, s58, {QP}
v_lshl_add_u32 v1, v0, 4, s58
s_waitcnt lgkmcnt(0)
""")
    for st in (16, 8, 4):
        for i in range(st): E(f"v_add_f32 v{G+i}, v{G+i}, v{G+st+i}")
    embed(G)
    E(f"s_mov_b64 exec, 0xffff\nglobal_store_dwordx4 v1, v[{G}:{G+3}], s[26:27] sc1\ns_mov_b64 exec, -1\nL_qpub:")
    stamp(3)
    E(f"""
s_lshl2_add_u32 s58, s28, s3
s_lshl_b32 s58, s58, 12
s_add_u32 s58, s58, {QP}
v_lshrrev_b32 v1, 4, v0
v_and_b32 v4, 15, v0
v_lshl_add_u32 v4, v4, 4, s58
v_lshl_add_u32 v4, v1, 10, v4
v_mov_b32 v19, {FLG}
v_mov_b32 v20, 1
""")
    PASS = "s_mov_b64 exec, 1\nds_add_u32 v19, v20\ns_mov_b64 exec, -1"
    while Q_:
        E(f"s_waitcnt vmcnt({gw - 1})"); gu_issue()
    E(f"s_waitcnt vmcnt({gy})\n{PASS}\ns_waitcnt vmcnt(0)\ns_cmp_lt_u32 s31, 56\ns_cbranch_scc1 L_qgo\nL_lw:\ns_sleep 4\nds_read_b32 v6, v19\ns_waitcnt lgkmcnt(0)\nv_cmp_gt_u32 vcc, {ltok}, v6\ns_cbranch_vccnz L_lw\nL_qgo:")
    poll([f"global_load_dwordx4 v[{G+4*k}:{G+4*k+3}], v4, s[26:27] offset:{256*k} sc1" for k in range(4)],
         [G+4*k for k in range(4)], 5, 4)
    strip(G, 16)
    for st in (8, 4):
        for i in range(st): E(f"v_add_f32 v{G+i}, v{G+i}, v{G+st+i}")
    pack(G, G, 2)
    E(f"""
s_lshl_b32 s58, s3, 9
s_add_u32 s58, s58, {QL}
v_lshl_add_u32 v1, v0, 3, s58
ds_write_b64 v1, v[{G}:{G+1}]
v_mov_b32 v5, {FLG}
v_mov_b32 v6, 1
s_mov_b64 exec, 1
ds_add_u32 v5, v6 offset:8
s_mov_b64 exec, -1
""")
    stamp(4)
    E(f"""
s_cmp_ge_u32 s31, 56
s_cbranch_scc1 L_gpd
v_and_b32 v4, 7, v0
""")
    E(f"""
s_lshl2_add_u32 s58, s31, s29
s_lshl_b32 s58, s58, 9
s_add_u32 s58, s58, {GP}
v_lshl_add_u32 v5, v4, 5, s58
v_bfe_u32 v4, v0, 4, 1
v_lshl_add_u32 v5, v4, 4, v5
v_lshrrev_b32 v4, 5, v0
v_lshl_add_u32 v5, v4, 8, v5
s_waitcnt vmcnt(0)
""")
    mm(G, AX, WG_); mm(G+4, AX, WU_)
    for i in range(4): E(f"v_permlane32_swap_b32 v{G+i}, v{G+4+i}")
    for i in range(4): E(f"v_add_f32_dpp v{G+i}, v{G+4+i}, v{G+i} row_ror:8 {DPP}")
    E(f"""
ds_write_b128 v2, v[{G}:{G+3}] offset:4096
s_mov_b64 exec, 1
ds_add_rtn_u32 v6, v19, v20 offset:16
s_mov_b64 exec, -1
v_lshlrev_b32 v7, 4, v0
v_add_u32 v7, {SCR + 4096}, v7
s_waitcnt lgkmcnt(0)
v_readfirstlane_b32 s58, v6
s_cmp_lg_u32 s58, 3
s_cbranch_scc1 L_gpd
""")
    for k in range(4): E(f"ds_read_b128 v[{G+4*k}:{G+4*k+3}], v7 offset:{1024*k}")
    E("s_waitcnt lgkmcnt(0)")
    for st in (8, 4):
        for i in range(st): E(f"v_add_f32 v{G+i}, v{G+i}, v{G+st+i}")
    embed(G)
    E(f"""
s_mov_b32 exec_lo, 0x00ff00ff
s_mov_b32 exec_hi, 0x00ff00ff
global_store_dwordx4 v5, v[{G}:{G+3}], s[26:27] sc1
s_mov_b64 exec, -1
L_gpd:
s_cmp_lg_u32 s3, 0
s_cbranch_scc1 L_noffn
s_lshl4_add_u32 s58, s28, s30
s_mul_i32 s58, s58, 14
v_and_b32 v4, 15, v0
v_min_u32 v5, 13, v4
v_add_u32 v5, s58, v5
v_lshrrev_b32 v6, 4, v5
v_and_b32 v5, 15, v5
v_lshlrev_b32 v5, 4, v5
v_lshl_add_u32 v5, v6, 11, v5
v_lshrrev_b32 v1, 4, v0
v_lshl_add_u32 v5, v1, 9, v5
v_add_u32 v5, {GP}, v5
L_gt:
s_sleep 20
ds_read_b64 v[22:23], v19
s_waitcnt lgkmcnt(0)
v_cmp_gt_u32 vcc, {gtok}, v22
v_cmp_eq_u32 s[58:59], 0, v23
s_and_b64 vcc, vcc, s[58:59]
s_cbranch_scc1 L_gt
""")
    poll([f"global_load_dwordx4 v[{G+4*u}:{G+4*u+3}], v5, s[26:27] offset:{256*u} sc1" for u in range(2)],
         [G, G+4], G+32, 10)
    strip(G, 8)
    fold4(G, G+4)
    rnd_bf16(G); rnd_bf16(G+4)
    c1 = -2 * 0.7978845608028654 * LOG2E
    E(f"""
v_mul_f32 v{G+1}, v{G}, v{G}
v_mov_b32 v{G+2}, {f2u(c1):#x}
v_mul_f32 v{G+1}, {f2u(c1*0.044715):#x}, v{G+1}
v_add_f32 v{G+1}, v{G+1}, v{G+2}
v_mul_f32 v{G+1}, v{G+1}, v{G}
v_exp_f32 v{G+1}, v{G+1}
v_add_f32 v{G+1}, 1.0, v{G+1}
v_rcp_f32 v{G+1}, v{G+1}
v_mul_f32 v{G}, v{G}, v{G+1}
""")
    rnd_bf16(G)
    E(f"""
v_mul_f32 v{G}, v{G}, v{G+4}
v_cvt_pk_bf16_f32 v{G}, v{G}, v{G}
v_lshl_add_u32 v4, v4, 2, v1
v_lshlrev_b32 v4, 1, v4
v_add_u32 v4, {HS}, v4
ds_write_b16 v4, v{G}
v_mov_b32 v4, {FLG}
v_mov_b32 v5, 1
ds_write_b32 v4, v5 offset:24
s_branch L_noffn
""")
    E("L_e2:\n.p2align 12\nL_noffn:")
    if warm: E("s_mov_b64 exec, 0\ns_branch L_ret3 ;;W3_0\nL_ret3:\ns_mov_b64 exec, -1")
    CA, CB, CM, OW, FS, FD, XO, OA, SA, PI, PM = 8, 9, 10, 11, 12, 13, 14, 15, 16, 17, 18
    E(f"""
s_lshl4_add_u32 s58, s28, s30
s_lshl2_add_u32 s58, s58, s3
s_mul_i32 s58, s58, {16*384}
s_add_u32 s58, s58, {AP + 3072}
v_lshrrev_b32 v1, 4, v0
v_and_b32 v4, 15, v0
v_mul_u32_u24 v5, 384, v1
v_add_u32 v5, s58, v5
v_lshl_add_u32 v{CA}, v4, 4, v5
v_and_b32 v6, 3, v0
v_mul_u32_u24 v6, 1536, v6
v_add_u32 v{CM}, v5, v6
s_lshl_b32 s58, s3, 3
s_add_u32 s58, s58, {OS + 1024}
v_mov_b32 v{CB}, s58
v_lshl_add_u32 v5, v4, 2, v1
s_lshl_b32 s58, s3, 8
s_add_u32 s58, s58, {OS}
v_lshl_add_u32 v{OW}, v5, 2, s58
s_and_b32 s58, s2, 7
s_lshl_b32 s58, s58, 5
s_lshr_b32 s59, s2, 3
s_add_u32 s63, s58, s59
s_lshr_b32 s58, s63, 3
s_lshl_b32 s58, s58, 14
s_and_b32 s59, s63, 7
s_lshl4_add_u32 s58, s59, s58
s_add_u32 s58, s58, {FP}
v_lshl_add_u32 v{FS}, v0, 7, s58
s_add_u32 s58, s58, {64*128}
v_lshl_add_u32 v{FD}, v0, 7, s58
s_lshl_b32 s63, s63, 3
v_lshl_add_u32 v{OA}, v1, 1, s63
global_load_ushort v{XO}, v{OA}, s[4:5]
s_lshl_b32 s58, s2, 7
s_add_u32 s58, s58, {NF}
s_add_u32 s34, s26, s58
s_addc_u32 s35, s27, 0
s_mov_b32 s61, {f2u(LOG2E):#x}
s_mov_b32 s37, {TMASK}
s_movk_i32 s38, {TM}
v_lshlrev_b32 v{SA}, 2, v0
v_add_u32 v{SA}, {SCR}, v{SA}
""")
    stamp(5)
    E(f"""
v_mov_b32 v5, {FLG}
L_aw:
s_sleep 30
ds_read_b32 v6, v5 offset:4
s_waitcnt lgkmcnt(0)
v_cmp_eq_u32 vcc, 0, v6
s_cbranch_vccnz L_aw
""")
    E(f"""
L_aw2:
s_sleep 2
ds_read_b32 v6, v5 offset:4
s_waitcnt lgkmcnt(0)
v_cmp_gt_u32 vcc, {c1thr}, v6
s_cbranch_vccnz L_aw2
""")
    stamp(6)
    E(f"""
s_mov_b32 s62, 0
L_hint:
s_load_dword s58, s[34:35], 0 glc
s_waitcnt lgkmcnt(0)
s_cmp_eq_u32 s58, s36
s_cbranch_scc1 L_hinted
s_sleep {hintsleep}
s_add_u32 s62, s62, 1
s_cmp_ge_u32 s62, 0x100
s_cbranch_scc0 L_hint
L_hinted:
""")
    stamp(7)
    M_ = G + 16
    loads = [f"global_load_dwordx4 v[{M_}:{M_+3}], v{CM}, s[26:27] offset:{256-3072} sc1"] + \
            [f"global_load_dwordx4 v[{G+4*k}:{G+4*k+3}], v{CA}, s[26:27] offset:{1536*k-3072} sc1" for k in range(4)]
    ST = 32
    def stp(k): return '\n'.join(f'v_and_b32 v{ST+4*k+i}, s37, v{G+4*k+i}' for i in range(4))
    AC, TW = G + 20, 24
    def tagw(k, r):
        b3 = lambda i: f"v_bitop3_b32 v{TW+k}, v{r+i}, v{TG+i}, v{TW+k} bitop3:0xbe"
        return [f"v_xor_b32 v{TW+k}, v{r}, v{TG}", b3(1), b3(2) + "\n" + b3(3)]
    E("s_mov_b32 s62, 0")
    for l in loads: E(l)
    E("s_branch L_c1\nL_rp:")
    for k in range(5): E(f"v_and_b32 v{TW+k}, s38, v{TW+k}\nv_cmp_ne_u32 s[{40+2*k}:{41+2*k}], 0, v{TW+k}")
    E(f"s_add_u32 s62, s62, 1\ns_cmp_ge_u32 s62, 0x200000\ns_cbranch_scc1 L_c2")
    if hsleep: E(f"s_sleep {hsleep}")
    for k, l in enumerate(loads):
        E(f"s_mov_b64 exec, s[{40+2*k}:{41+2*k}] ;nopad\ns_cbranch_execz L_rp{k} ;nopad\n{l} ;nopad\nL_rp{k}:")
    E("s_mov_b64 exec, -1 ;nopad\ns_waitcnt vmcnt(0)\nL_c1:\ns_waitcnt vmcnt(4)")
    t0 = tagw(0, M_)
    E(f"""
v_and_b32 v22, s37, v{M_}
{t0[0]}
{t0[1]}
v_max_f32_dpp v6, v22, v22 quad_perm:[1,0,3,2] {DPP}
{t0[2]}
s_waitcnt vmcnt(3)
v_max_f32_dpp v6, v6, v6 quad_perm:[2,3,0,1] {DPP}
v_mov_b32 v7, v6
""")
    t1 = tagw(1, G)
    E(f"{t1[0]}\n{t1[1]}\nv_permlane32_swap_b32 v7, v6\nv_max_f32 v6, v6, v7\nv_mov_b32 v7, v6\n{t1[2]}\ns_waitcnt vmcnt(2)")
    t2 = tagw(2, G+4)
    E(f"v_permlane16_swap_b32 v7, v6\nv_max_f32 v6, v6, v7\nv_sub_f32 v5, v22, v6\nv_mul_f32 v5, s61, v5\nv_exp_f32 v5, v5\nv_and_b32 v23, s37, v{M_+1}\n{stp(0)}\n{t2[0]}\n{t2[1]}\n{t2[2]}")
    E(f"v_mul_f32 v7, v5, v23")
    for i in range(4): E(f"v_mul_f32_dpp v{AC+i}, v5, v{ST+i} quad_perm:[0,0,0,0] {DPP}")
    E(stp(1))
    E(f"v_add_f32_dpp v7, v7, v7 quad_perm:[1,0,3,2] {DPP}\ns_waitcnt vmcnt(1)")
    for l in tagw(3, G+8): E(l)
    E(stp(2))
    E(f"v_add_f32_dpp v7, v7, v7 quad_perm:[2,3,0,1] {DPP}\ns_waitcnt vmcnt(0)")
    for l in tagw(4, G+12): E(l)
    E(f"v_mov_b32 v21, v7\nv_or3_b32 v{TW+5}, v{TW}, v{TW+1}, v{TW+2}\nv_or3_b32 v{TW+5}, v{TW+5}, v{TW+3}, v{TW+4}\nv_and_b32 v{TW+5}, s38, v{TW+5}\nv_cmp_ne_u32 vcc, 0, v{TW+5}\ns_cbranch_vccnz L_rp\nL_c2:")
    stamp(8)
    E("v_permlane32_swap_b32 v21, v7")
    E(stp(3))
    for i in range(4): E(f"v_fmac_f32_dpp v{AC+i}, v5, v{ST+4+i} quad_perm:[1,1,1,1] {DPP}")
    E("v_add_f32 v7, v7, v21\nv_mov_b32 v21, v7")
    for i in range(4): E(f"v_fmac_f32_dpp v{AC+i}, v5, v{ST+8+i} quad_perm:[2,2,2,2] {DPP}")
    E("v_permlane16_swap_b32 v21, v7")
    for i in range(4): E(f"v_fmac_f32_dpp v{AC+i}, v5, v{ST+12+i} quad_perm:[3,3,3,3] {DPP}")
    E(f"""
v_add_f32 v7, v7, v21
ds_write_b64 v{CB}, v[6:7]
v_permlane32_swap_b32 v{AC}, v{AC+2}
v_permlane32_swap_b32 v{AC+1}, v{AC+3}
v_add_f32 v{AC}, v{AC}, v{AC+2}
v_add_f32 v{AC+1}, v{AC+1}, v{AC+3}
v_permlane16_swap_b32 v{AC}, v{AC+1}
v_add_f32 v{AC}, v{AC}, v{AC+1}
ds_write_b32 v{OW}, v{AC}
s_waitcnt lgkmcnt(0)
s_barrier
s_cmp_eq_u32 s3, 0
s_cbranch_scc1 L_sred
s_cmp_lg_u32 s3, 1
s_cbranch_scc1 L_end
""")
    poll([f"global_load_dwordx4 v[{G+4}:{G+7}], v{FD}, s[26:27] sc1"], [G+4], 5, sleep)
    strip(G+4, 4)
    fold4(G+4)
    row_allreduce([G+4], "v_add_f32")
    rnd_bf16(G+4)
    E(f"""
v_mul_f32 v21, {f2u(-LOG2E):#x}, v{G+4}
v_exp_f32 v21, v21
v_add_f32 v21, 1.0, v21
v_rcp_f32 v21, v21
v_mul_f32 v21, v21, v{G+4}
""")
    rnd_bf16(21)
    E(f"ds_write_b32 v{SA}, v21\ns_waitcnt lgkmcnt(0)\ns_barrier\ns_endpgm\nL_sred:")
    stamp(9)
    E(f"v_lshlrev_b32 v{XO}, 16, v{XO}")
    if ssleep: E(f"s_sleep {ssleep}")
    poll([f"global_load_dwordx4 v[{G}:{G+3}], v{FS}, s[26:27] sc1"], [G], 5, sleep)
    stamp(10)
    E(f"s_barrier\nds_read_b32 v21, v{SA}")
    stamp(11)
    strip(G, 4)
    fold4(G)
    row_allreduce([G], "v_add_f32")
    rnd_bf16(G)
    E(f"s_waitcnt lgkmcnt(0)\nv_mul_f32 v5, v21, v{G}")
    rnd_bf16(5)
    E(f"""
v_add_f32 v5, v5, v{XO}
v_cvt_pk_bf16_f32 v5, v5, v5
s_mov_b32 exec_lo, 0x00010001
s_mov_b32 exec_hi, 0x00010001
global_store_short v{OA}, v5, s[22:23]
s_cmp_lg_u32 s2, 0
s_cbranch_scc1 L_fin
s_mov_b64 exec, 1
v_mov_b32 v5, 0
v_mov_b32 v6, s36
global_store_dword v5, v6, s[26:27] sc1
L_fin:
""")
    if stamps:
        stamp(12); dump_stamps(1, 13)
    if diag is not None:
        k, cond = diag
        E(f"s_sub_u32 s58, s{64+2*k}, s64\ns_lshl_b32 s58, s58, 2")
        if cond is not None: E(cond + "\ns_cselect_b32 s58, s58, 0")
        E("s_add_u32 s58, s58, 6000\nL_spin:\ns_memrealtime s[60:61]\ns_waitcnt lgkmcnt(0)\ns_sub_u32 s59, s60, s64\ns_cmp_lt_u32 s59, s58\ns_cbranch_scc1 L_spin")
    E("L_end:\ns_endpgm")

    E("L_stail:")
    if stamps: E("s_mul_i32 s84, s33, 100\ns_add_u32 s84, s84, s64")
    R = KF
    E(f"v_readfirstlane_b32 s33, v{ORD}")
    cross_rows(VL, T1, "v_add_f32")
    E(f"""
s_cmp_eq_u32 s33, 0
s_cbranch_scc1 L_first
v_cmp_ne_u32 vcc, s33, v{S_+4}
s_cbranch_vccz L_pw2
L_pw:
""")
    rd_part()
    E(f"""
ds_read_b32 v{S_+5}, v{FLA}
s_waitcnt lgkmcnt(1)
v_cmp_ne_u32 vcc, s33, v{S_+4}
s_cbranch_vccnz L_pw
L_pw2:
v_max_f32 v{S_}, v{F}, v{VM}
v_sub_f32 v{VM}, v{VM}, v{S_}
v_sub_f32 v{F}, v{F}, v{S_}
v_mul_f32 v{VM}, s61, v{VM}
v_mul_f32 v{F}, s61, v{F}
v_exp_f32 v{VM}, v{VM}
v_exp_f32 v{F}, v{F}
""")
    for d in range(4):
        for e in range(4): E(f"v_cndmask_b32 v{O+8*d+e}, v{O+8*d+e}, v{O+8*d+4+e}, s[20:21]")
    E(f"v_mul_f32 v{S_+1}, v{VM}, v{VL}\nv_fmac_f32 v{S_+1}, v{F}, v{F+1}")
    for d in range(4):
        for e in (0, 2): E(f"v_pk_mul_f32 v[{R+4*d+e}:{R+4*d+e+1}], v[{R+4*d+e}:{R+4*d+e+1}], v[{F}:{F+1}] op_sel_hi:[1,0]")
    E("s_cmp_eq_u32 s33, 3\ns_cbranch_scc1 L_last")
    for d in range(4):
        for e in (0, 2): E(f"v_pk_fma_f32 v[{O+8*d+e}:{O+8*d+e+1}], v[{O+8*d+e}:{O+8*d+e+1}], v[{VM}:{VM+1}], v[{R+4*d+e}:{R+4*d+e+1}] op_sel_hi:[1,0,1]")
    E("s_branch L_wr\nL_first:")
    for d in range(4):
        for e in range(4): E(f"v_cndmask_b32 v{O+8*d+e}, v{O+8*d+e}, v{O+8*d+4+e}, s[20:21]")
    E(f"v_mov_b32 v{S_}, v{VM}\nv_mov_b32 v{S_+1}, v{VL}\nL_wr:")
    for d in range(4): E(f"ds_write_b128 v{LL}, v[{O+8*d}:{O+8*d+3}] offset:{1024*d}")
    E(f"ds_write_b64 v{MLW}, v[{S_}:{S_+1}]\ns_mov_b64 exec, 1\nds_add_u32 v{FLA}, v{ONE} offset:12\ns_mov_b64 exec, -1")
    E("s_branch L_nt\nL_last:")
    tagS = ["s36", "s16", "s17", "s18"]
    for d in range(4):
        for e in (0, 2): E(f"v_pk_fma_f32 v[{O+8*d+e}:{O+8*d+e+1}], v[{O+8*d+e}:{O+8*d+e+1}], v[{VM}:{VM+1}], v[{R+4*d+e}:{R+4*d+e+1}] op_sel_hi:[1,0,1]")
        for e in range(4): E(f"v_bfi_b32 v{O+8*d+e}, v{MSK}, v{O+8*d+e}, {tagS[e]}")
        E(f"global_store_dwordx4 v{APA if d < 2 else APB}, v[{O+8*d}:{O+8*d+3}], s[26:27] offset:{128*(d&1)} sc1")
    E(f"""
v_bfi_b32 v{S_}, v{MSK}, v{S_}, s36
v_bfi_b32 v{S_+1}, v{MSK}, v{S_+1}, s16
v_mov_b32 v{S_+2}, s17
v_mov_b32 v{S_+3}, s18
s_mov_b64 exec, 0xffff
global_store_dwordx4 v{APM}, v[{S_}:{S_+3}], s[26:27] offset:256 sc1
s_mov_b64 exec, 1
ds_add_u32 v{FLA}, v{ONE} offset:4
s_mov_b64 exec, -1
""")
    if stamps: E("s_memrealtime s[74:75]")
    E(f"""
L_nt:
s_waitcnt lgkmcnt(0)
s_cmp_lg_u32 s19, {63 - hx}
s_cbranch_scc1 L_wj
v_mov_b32 v{T0}, s36
global_store_dword v{NFA}, v{T0}, s[26:27] sc1
L_wj:
""")
    if relth is not None:
        E(f"s_cmp_lt_i32 s19, {relth}\ns_cbranch_scc1 L_nr\nv_mov_b32 v{T0}, 8\ns_mov_b64 exec, 1\nds_add_u32 v{FLA}, v{T0}\ns_mov_b64 exec, -1\nL_nr:")
    WP = f"s_mov_b64 exec, 1\nds_add_u32 v{FLA}, v{ONE}\ns_mov_b64 exec, -1"
    take_turn()
    if wl != 2: E(f"s_sub_u32 s39, s39, {wl - 2}")
    tok_wait("L_wa")
    if stamps: E("s_memrealtime s[96:97]")
    ld_w(40, WD)
    E("s_add_u32 s39, s39, 1")
    tok_wait("L_wb")
    ld_w(44, WO)
    E(f"s_waitcnt vmcnt({8 + YW})\n{WP}")
    E(f"""
L_hw:
ds_read_b32 v{T1}, v{FLA} offset:24
ds_read_b128 v[{P}:{P+3}], v{HSA}
s_waitcnt lgkmcnt(0)
v_cmp_eq_u32 vcc, 0, v{T1}
s_cbranch_vccnz L_hw
""")
    build_A(KF, P, SELS)
    E("s_waitcnt vmcnt(8)")
    def g2_fin(S_=S_):
        E(f"v_permlane32_swap_b32 v{S_}, v{S_+2}\nv_permlane32_swap_b32 v{S_+1}, v{S_+3}")
        for i in range(2): E(f"v_add_f32_dpp v{S_+i}, v{S_+2+i}, v{S_+i} row_ror:8 {DPP}")
        E(f"v_permlane32_swap_b32 v{S_}, v{S_+2}\nv_permlane32_swap_b32 v{S_+1}, v{S_+3}")
        for e in range(4): E(f"v_bfi_b32 v{S_+e}, v{MSK}, v{S_+e}, {tagS[e]}")
    mm(S_, KF, WD)
    if latewo:
        g2_fin()
        E(f"s_cmp_ge_u32 s33, {latewo}\ns_cbranch_scc1 L_dst\ns_waitcnt vmcnt({YW})\n{WP}")
    else:
        E(f"s_waitcnt vmcnt({YW})\n{WP}")
        g2_fin()
    E(f"s_waitcnt vmcnt(0)\nL_dst:\ns_mov_b64 exec, 0x00ff00ff\nglobal_store_dwordx4 v{FAD}, v[{S_}:{S_+3}], s[26:27] sc1\ns_mov_b64 exec, -1")
    E(f"v_mov_b32 v{LL}, {OS + 1024}")
    stamp(6)
    E("s_barrier")
    stamp(7)
    E(f"ds_read_b128 v[{F}:{F+3}], v{LL}\nds_read_b128 v[{F+4}:{F+7}], v{LL} offset:16")
    for k in range(4):
        for h in range(2):
            E(f"ds_read_b128 v[{VF+8*k+4*h}:{VF+8*k+4*h+3}], v{OSA} offset:{256*k + 16*h}")
    E("s_waitcnt lgkmcnt(8)")
    E(f"v_max3_f32 v{T0}, v{F}, v{F+2}, v{F+4}\nv_max_f32 v{T0}, v{T0}, v{F+6}")
    for k in range(4): E(f"v_sub_f32 v{F+2*k}, v{F+2*k}, v{T0}")
    for k in range(4): E(f"v_mul_f32 v{F+2*k}, s61, v{F+2*k}")
    for k in range(4): E(f"v_exp_f32 v{F+2*k}, v{F+2*k}")
    E(f"v_mul_f32 v{T0}, v{F}, v{F+1}")
    for k in range(1, 4): E(f"v_fmac_f32 v{T0}, v{F+2*k}, v{F+2*k+1}")
    E(f"v_rcp_f32 v{T0}, v{T0}\ns_waitcnt lgkmcnt(0)")
    for i in range(0, 8, 2): E(f"v_pk_mul_f32 v[{VF+i}:{VF+i+1}], v[{VF+i}:{VF+i+1}], v[{F}:{F+1}] op_sel_hi:[1,0]")
    for k in range(1, 4):
        for i in range(0, 8, 2): E(f"v_pk_fma_f32 v[{VF+i}:{VF+i+1}], v[{VF+8*k+i}:{VF+8*k+i+1}], v[{F+2*k}:{F+2*k+1}], v[{VF+i}:{VF+i+1}] op_sel_hi:[1,0,1]")
    for i in range(0, 8, 2): E(f"v_pk_mul_f32 v[{VF+i}:{VF+i+1}], v[{VF+i}:{VF+i+1}], v[{T0}:{T0+1}] op_sel_hi:[1,0]")
    pack(P, VF, 4)
    build_A1(KF, P, SELS, 0)
    for i in range(8):
        if i < 7: build_A1(KF, P, SELS, i + 1)
        if latewo: E(f"s_waitcnt vmcnt({8 - i})")
        mm1(S_+4 if latewo else S_, KF, WO, i)
    S2 = S_+4 if latewo else S_
    g2_fin(S2)
    E(f"s_mov_b64 exec, 0x00ff00ff\nglobal_store_dwordx4 v{FAS}, v[{S2}:{S2+3}], s[26:27] sc1")
    if stamps:
        stamp(9)
        E(f"s_mov_b64 exec, 1\ns_lshl2_add_u32 s58, s2, s3\ns_lshl_b32 s58, s58, 4\ns_add_u32 s58, s58, {STAMPS + 0x10000}\nv_mov_b32 v1, s58\nv_mov_b32 v4, s90\nv_mov_b32 v5, s72\ns_sub_u32 s59, s84, s64\nv_mov_b32 v6, s59\nv_mov_b32 v7, s10\nglobal_store_dwordx4 v1, v[4:7], s[26:27]\nv_mov_b32 v8, s96\nv_mov_b32 v9, s76\nv_mov_b32 v10, s33\nv_mov_b32 v11, s62\nv_add_u32 v1, 0x4000, v1\nglobal_store_dwordx4 v1, v[8:11], s[26:27]")
        E(f"s_mov_b64 exec, 0xffff\nv_writelane_b32 v244, s96, 14\nv_writelane_b32 v244, s13, 15\ns_lshl2_add_u32 s58, s2, s3\ns_lshl_b32 s58, s58, 6\ns_add_u32 s58, s58, {STAMPS + 0x20000}\nv_lshl_add_u32 v1, v0, 2, s58\nglobal_store_dword v1, v244, s[26:27]")
        E("s_cmp_lg_u32 s33, 3\ns_cbranch_scc1 L_end2")
        E('s_mov_b32 s86, s94\ns_mov_b32 s88, s90'); dump_stamps(0, 13)
        E("L_end2:")
    E("s_endpgm")
    NV = 248
    E(f'''.section .rodata,"a"
.p2align 6
.amdhsa_kernel {KN}
.amdhsa_next_free_vgpr {NV}
.amdhsa_next_free_sgpr 102
.amdhsa_accum_offset {NV}
.amdhsa_group_segment_fixed_size 0
.amdhsa_kernarg_size 96
.amdhsa_user_sgpr_count 2
.amdhsa_user_sgpr_kernarg_segment_ptr 1
.amdhsa_system_sgpr_workgroup_id_x 1
.amdhsa_float_denorm_mode_32 3
.end_amdhsa_kernel''')
    hdr = f"""; out = x + (attn(LN(x)) @ wo) * silu(GEGLU_FFN(LN(x)))   -- one persistent launch, 256 WGs (1 per CU) x 8 waves.
; @launch grid=(256,1,1) block=(512,1,1) lds={LDS_TOTAL}
"""
    if "wlin" in exp:
        i = E.L.index(f"v_lshl_add_u32 v{VW}, v{T0}, 14, v{T1}")
        E.L[i] = f"v_lshlrev_b32 v{VW}, 4, v0"
        i = E.L.index("s_cselect_b32 s42, 131072, 0")
        assert E.L[i+2] == "s_lshl_b32 s59, s59, 7"
        E.L[i+2] = "s_lshl_b32 s59, s59, 13"
    if "w512" in exp:
        i = E.L.index(f"v_lshl_add_u32 v{VW}, v{T0}, 14, v{T1}")
        E.L[i:i+1] = [f"v_lshrrev_b32 v{VW}, 5, v0", f"v_lshlrev_b32 v{VW}, 14, v{VW}", f"v_and_b32 v{T1}, 31, v0", f"v_lshl_add_u32 v{VW}, v{T1}, 4, v{VW}"]
        i = E.L.index("s_cselect_b32 s42, 131072, 0")
        E.L[i+1:i+3] = ["s_lshl_b32 s59, s29, 9", "s_lshl_b32 s58, s3, 15", "s_add_u32 s59, s59, s58"]
    if "nohop1" in exp:
        i0 = E.L.index("L_hint:"); i1 = E.L.index("L_c2:")
        E.L[i0:i1+1] = []
    if "noap" in exp:
        E.L = [l for l in E.L if not (l.startswith(f"global_store_dwordx4 v{APA},") or l.startswith(f"global_store_dwordx4 v{APB},") or l.startswith(f"global_store_dwordx4 v{APM},"))]
    if "noq" in exp:
        i0 = E.L.index("L_qgo:"); i1 = E.L.index("L_pok0:")
        E.L[i0+1:i1+1] = []
    if "q1" in exp:
        E.L = [l for l in E.L if not (l.startswith("global_load_dwordx4") and ", v4, s[26:27] offset:" in l and "offset:0 " not in l)]
        i0 = E.L.index("L_chk0:"); i1 = E.L.index("L_pok0:")
        E.L[i0+2:i1] = []
    if "nogp" in exp:
        E.L = [l for l in E.L if not l.startswith("global_store_dwordx4 v5, v[160:163]")]
        i0 = E.L.index("L_gt:"); i1 = E.L.index("L_pok1:")
        E.L[i0:i1+1] = []
    text = hdr + E.finish()
    if warm:
        import pads
        text, cnt = pads.place(text, [(KN, "L_e0", "PS", False), ("L_loop", "L_e1", "PL", True), ("L_aux", "L_e2", "PA", True), ("L_noffn", None, "PT", False)])
        names = lambda p: [f"{p}{i}" for i in range(cnt[p])]
        PS, PL, PA, PT = names("PS"), names("PL"), names("PA"), names("PT")
        early = PA[:2] + PS[:2]
        rest = PA[2:] + PL + PS[2:]
        chains = {"W1": [[x] for x in early] + [[]] * (4 - len(early)), "W2": [rest[i::4] for i in range(4)], "W3": [PT]}
        for ph, ret in (("W1", "L_ret1"), ("W2", "L_ret2"), ("W3", "L_ret3")):
            for w, ch in enumerate(chains[ph]):
                seq = ch + [ret]
                text = re.sub(rf"{ret} ;;{ph}_{w}\b", seq[0], text)
                for a_, b_ in zip(seq, seq[1:]): text = text.replace(f"@{a_}@", b_)
        assert "@P" not in text
    return text

if __name__ == "__main__":
    import json
    kw = json.loads(sys.argv[2]) if len(sys.argv) > 2 else {}
    open(sys.argv[1], "w").write(gen(**kw))
```

```python
import sys, struct, re
from asmlib import Asm
KN = "recurrent_scan__gqa_block_cached__glu_gated_geglu__decode_kernel"

def f2u(x): return struct.unpack("<I", struct.pack("<f", x))[0]

CNT, QP, NF, FP, AP, GP, STAMPS = 0x300000, 0x10000, 0x40000, 0x80000, 0x100000, 0x280000, 0x400000
PART = 131072
MLL  = PART + 4096
QL   = MLL + 512
SCR  = QL + 2048
OS   = SCR + 8192
HS   = OS + 1024 + 32
FLG  = HS + 128
LDS_TOTAL = FLG + 64
LOG2E = 1.4426950408889634
DPP = "row_mask:0xf bank_mask:0xf"

def gen(pk="nt", pw="nt", stamps=False, diag=None, warm=True, Y=4, YW=4, wl=2, Li=2, tk=12, nret=464, tlate=True, hoff=72, hx=8,
        ltok=9, gy=4, gw=7, latewo=0, relth=32, np2=False, esc=1, nesc=None, gtok=40, sleep=1, hsleep=1, hintsleep=1, tsl=1, ssleep=0, c1thr=5, cstr=256, um=3, fast1=True, swap=True, earr=False, S=6, TB=10, tke=False, even=False, ml1=False, prio=0, wfin=0, exp=()):
    MLB = 0x50000
    CS = 256 if ml1 else 384
    TM = (1 << TB) - 1
    TMASK = hex(0xffffffff ^ TM)
    NK = S // 2
    NV0 = (S + 1) // 2
    E = Asm()
    def stamp(i):
        if stamps: E(f"s_memrealtime s[{64+2*i}:{65+2*i}]\ns_waitcnt lgkmcnt(0)")
    nls = [0]
    def lstamp(i, t):
        if stamps:
            nls[0] += 1
            E(f"s_cmp_eq_u32 s33, {t}\ns_cbranch_scc0 L_ls{nls[0]}"); stamp(i); E(f"L_ls{nls[0]}:")
    def dump_stamps(role, n):
        E(f"s_mov_b64 exec, 1\ns_lshl_b32 s58, s2, 8\ns_add_u32 s58, s58, {STAMPS + role*128}\nv_mov_b32 v1, s58")
        for i in range(n):
            E(f"v_mov_b32 v2, s{64+2*i}\nglobal_store_dword v1, v2, s[26:27] offset:{4*i}")
    def row_allreduce(regs, op, rs=(8, 4, 2, 1)):
        for r in rs:
            for v in regs: E(f"{op}_dpp v{v}, v{v}, v{v} row_ror:{r} {DPP}")
    def cross_rows(v, t, op):
        E(f"v_mov_b32 v{t}, v{v}\nv_permlane32_swap_b32 v{t}, v{v}\n{op} v{v}, v{v}, v{t}")
        E(f"v_mov_b32 v{t}, v{v}\nv_permlane16_swap_b32 v{t}, v{v}\n{op} v{v}, v{v}, v{t}")
    def wave_allreduce(v, t, op):
        row_allreduce([v], op); cross_rows(v, t, op)
    def fold4(*aa):
        for a in aa: E(f"v_permlane32_swap_b32 v{a}, v{a+2}\nv_permlane32_swap_b32 v{a+1}, v{a+3}")
        for a in aa: E(f"v_add_f32 v{a}, v{a}, v{a+2}\nv_add_f32 v{a+1}, v{a+1}, v{a+3}")
        for a in aa: E(f"v_permlane16_swap_b32 v{a}, v{a+1}")
        for a in aa: E(f"v_add_f32 v{a}, v{a}, v{a+1}")
    def rnd_bf16(v):
        E(f"v_cvt_pk_bf16_f32 v{v}, v{v}, v{v}\nv_and_b32 v{v}, 0xffff0000, v{v}")
    def unpack(dst, src, n):
        for i in range(n): E(f"v_lshlrev_b32 v{dst+2*i}, 16, v{src+i}\nv_and_b32 v{dst+2*i+1}, 0xffff0000, v{src+i}")
    def pack(dst, src, n):
        for i in range(n): E(f"v_cvt_pk_bf16_f32 v{dst+i}, v{src+2*i}, v{src+2*i+1}")
    def make_sel(SEL, t):
        E(f"""
v_and_b32 v{t}, 1, v0
v_cmp_eq_u32 vcc, 1, v{t}
v_mov_b32 v{t+1}, 0x0c0c0100
v_mov_b32 v{t+2}, 0x01000c0c
v_cndmask_b32 v{t+1}, v{t+1}, v{t+2}, vcc
v_mov_b32 v{t+2}, 0x0c0c0302
v_mov_b32 v{t+3}, 0x03020c0c
v_cndmask_b32 v{t+2}, v{t+2}, v{t+3}, vcc
v_bfe_u32 v{t}, v0, 1, 2
v_mov_b32 v{t+3}, 0x0c0c0c0c
""")
        for k in range(4):
            E(f"v_cmp_eq_u32 vcc, {k}, v{t}\nv_cndmask_b32 v{SEL+2*k}, v{t+3}, v{t+1}, vcc\nv_cndmask_b32 v{SEL+2*k+1}, v{t+3}, v{t+2}, vcc")
    def build_A1(dst, pk_, SEL, i):
        for k in range(4):
            E(f"v_perm_b32 v{dst+4*i+k}, v{pk_+i//2}, v{pk_+i//2}, v{SEL+2*k+(i&1)}")
    def build_A(dst, pk_, SEL):
        for i in range(8): build_A1(dst, pk_, SEL, i)
    def mm1(d, a, b, i):
        c = "0" if i == 0 else f"v[{d}:{d+3}]"
        E(f"v_mfma_f32_16x16x32_bf16 v[{d}:{d+3}], v[{a+4*i}:{a+4*i+3}], v[{b+4*i}:{b+4*i+3}], {c}")
    def mm(d, a, b, wait=None):
        for i in range(8):
            if wait: E(wait(i))
            mm1(d, a, b, i)
    def calc_cl():
        if even:
            E("s_and_b32 s58, s2, 7\ns_lshr_b32 s59, s2, 5\ns_lshl3_add_u32 s31, s58, s59")
            return
        E("""
s_and_b32 s59, s2, 7
s_lshl3_add_u32 s31, s28, s59
s_sub_u32 s59, s59, s28
s_sub_u32 s59, s59, s28
s_sub_u32 s59, s59, 2
s_and_b32 s59, s59, 7
s_mul_i32 s58, s28, 6
s_add_u32 s58, s58, s59
s_add_u32 s58, s58, 32
s_cmp_lt_u32 s59, 6
s_cselect_b32 s58, s58, 63
s_bitcmp1_b32 s2, 5
s_cselect_b32 s31, s58, s31
""")

    E(f'.amdgcn_target "amdgcn-amd-amdhsa--gfx950"\n.text\n.p2align 12\n.globl {KN}\n.p2align 8\n.type {KN},@function\n{KN}:')
    E(f"""
s_load_dwordx16 s[4:19], s[0:1], 0
s_load_dwordx8 s[20:27], s[0:1], 64
s_cmp_ge_u32 s2, 256
s_cbranch_scc1 L_end0
v_and_b32 v2, 60, v0
v_add_u32 v2, {FLG}, v2
v_mov_b32 v5, 0
ds_write_b32 v2, v5
v_lshrrev_b32 v1, 6, v0
v_and_b32 v0, 63, v0
""")
    if stamps: E("s_memrealtime s[64:65]")
    E("""
v_readfirstlane_b32 s3, v1
s_bfe_u32 s29, s2, 0x20003
s_lshr_b32 s28, s2, 6
s_bfe_u32 s58, s2, 0x10005
s_and_b32 s59, s2, 7
s_lshl3_add_u32 s30, s58, s59
s_and_b32 s32, s2, 63
""")
    if swap: E("s_bitcmp1_b32 s3, 2\ns_cbranch_scc1 L_str")
    else: E("s_cmp_lt_u32 s3, 4\ns_cbranch_scc1 L_str")
    XF, XR, WF, AX, WG_, WU_, SELA, TG, G = 8, 16, 20, 52, 84, 116, 148, 156, 160
    E(f"""
s_setprio 3
s_and_b32 s3, s3, 3
v_lshlrev_b32 v1, 5, v0
v_lshrrev_b32 v2, 3, v0
v_and_b32 v4, 7, v0
v_lshlrev_b32 v4, 4, v4
v_lshl_add_u32 v4, v2, 16, v4
s_lshl2_add_u32 s58, s29, s3
s_lshl_b32 s59, s58, 7
v_lshl_add_u32 v3, v2, 4, s59
s_lshl_b32 s58, s58, 19
s_lshl4_add_u32 s59, s28, s30
s_lshl_b32 s59, s59, 7
s_add_u32 s58, s58, s59
s_waitcnt lgkmcnt(0)
global_load_dwordx4 v[{XF}:{XF+3}], v1, s[4:5]
global_load_dwordx4 v[{XF+4}:{XF+7}], v1, s[4:5] offset:16
global_load_dwordx4 v[{XR}:{XR+3}], v3, s[4:5]
s_add_u32 s10, s10, s58
s_addc_u32 s11, s11, 0
""")
    for i in range(8):
        E(f"global_load_dwordx4 v[{WF+4*i}:{WF+4*i+3}], v4, s[10:11] {pw}")
        if i < 7: E("v_add_u32 v4, 0x2000, v4")
    E("s_load_dword s36, s[26:27], 0")
    E("s_barrier")
    E("s_branch L_aux\nL_end0:\ns_endpgm")

    LDA, LDB, LDA2, LDB2, VW, LL = 2, 3, 4, 5, 6, 7
    KA, VA = 8, 12
    VM, VL, T0, T1 = 20, 21, 22, 23
    QF, KF, VF, S_, F, P, O, WD, WO, SELS = 24, 40, 72, 104, 112, 120, 124, 156, 188, 220
    FAS, FAD, OSA, APA, APM, FLA, ONE, MSK, ORD, HSA, APB, NFA, MLW, AR2, TWO = 228, 229, 230, 231, 232, 233, 234, 235, 236, 237, 238, 239, 240, 241, 242
    SS = WD
    E("L_str:\ns_and_b32 s3, s3, 3")
    if prio: E("s_setprio 1")
    if warm:
        E("s_mov_b64 exec, 0")
        for w in range(3): E(f"s_cmp_eq_u32 s3, {w}\ns_cbranch_scc1 L_ret1 ;;W1_{w}")
        E("s_branch L_ret1 ;;W1_3\nL_ret1:\ns_mov_b64 exec, -1")
    E(f"""
s_waitcnt lgkmcnt(0)
s_barrier
s_load_dword s36, s[26:27], 0
v_mov_b32 v{FLA}, {FLG}
v_mov_b32 v{ONE}, 1
v_mov_b32 v{TWO}, 2
s_cmp_lg_u32 s3, 0
s_cbranch_scc1 L_noini2
s_cmp_lg_u32 s32, 0
s_cbranch_scc1 L_noinit
s_mul_i32 s59, s28, {8*cstr}
s_add_u32 s59, s59, {CNT}
v_mul_u32_u24 v{T0}, {cstr}, v0
v_add_u32 v{T0}, s59, v{T0}
v_mov_b32 v{T1}, 0
s_mov_b64 exec, 15
v_mov_b32 v{T1}, {64*S}
s_mov_b64 exec, 31
global_store_dword v{T0}, v{T1}, s[26:27] sc1
s_waitcnt vmcnt(0)
L_noinit:
s_mov_b64 exec, 1
ds_add_u32 v{FLA}, v{ONE} offset:20
s_mov_b64 exec, -1
L_noini2:
""")
    if warm:
        E("s_mov_b64 exec, 0")
        for w in range(3): E(f"s_cmp_eq_u32 s3, {w}\ns_cbranch_scc1 L_ret2 ;;W2_{w}")
        E("s_branch L_ret2 ;;W2_3\nL_ret2:\ns_mov_b64 exec, -1")
    E(f"""
v_lshrrev_b32 v1, 4, v0
v_and_b32 v{LDA}, 15, v0
v_lshlrev_b32 v{LDB}, 1, v1
v_xor_b32 v{LDA}, v{LDA}, v{LDB}
v_lshlrev_b32 v{LDA}, 4, v{LDA}
v_lshl_add_u32 v{LDA}, v1, 8, v{LDA}
v_xor_b32 v{LDB}, 0x80, v{LDA}
v_add_u32 v{LDA2}, 0x1000, v{LDA}
v_add_u32 v{LDB2}, 0x1000, v{LDB}
s_mul_i32 s38, s28, {hoff}
s_add_u32 s38, s38, s3
s_lshl2_add_u32 s35, s32, s38
s_lshl_b32 s59, s28, 24
s_lshl_b32 s34, s3, 15
s_add_u32 s54, s6, s59
s_addc_u32 s55, s7, 0
s_add_u32 s56, s8, s59
s_addc_u32 s57, s9, 0
s_lshr_b32 s39, s2, 3
s_add_u32 s39, s39, s3
s_and_b32 s39, s39, 3
""")
    if um == 3: E("s_lshr_b32 s58, s32, 3\ns_xor_b32 s35, s32, s58\ns_lshl_b32 s58, s39, 6\ns_add_u32 s35, s35, s58\ns_add_u32 s35, s35, s38\ns_sub_u32 s35, s35, s3")
    E(f"s_lshl_b32 s39, s39, 1\ns_add_u32 s39, s39, {4 - Li}")
    def ld_w(srd, dst):
        for i in range(8):
            so = "0" if i < 2 else f"s{50 + i//2}"
            if "wlin" in exp:
                so = "0" if i < 4 else "s51"
                E(f"buffer_load_dwordx4 v[{dst+4*i}:{dst+4*i+3}], v{VW}, s[{srd}:{srd+3}], {so} offen offset:{(i&3)*1024} {pw}")
                continue
            E(f"buffer_load_dwordx4 v[{dst+4*i}:{dst+4*i+3}], v{VW}, s[{srd}:{srd+3}], {so} offen offset:{(i&1)*2048} {pw}")
    def tok_wait(lbl, kv=False):
        if kv and esc:
            E(f"""
s_branch {lbl}_c
{lbl}:
s_sleep {tsl}
{lbl}_c:
ds_read_b64 v[{S_+4}:{S_+5}], v{FLA}
s_waitcnt lgkmcnt(0)
v_cmp_gt_i32 vcc, s39, v{S_+4}
v_cmp_gt_u32 s[58:59], {esc}, v{S_+5}
s_and_b64 vcc, vcc, s[58:59]
s_cbranch_scc1 {lbl}
""")
            return
        E(f"""
s_branch {lbl}_c
{lbl}:
s_sleep {tsl}
{lbl}_c:
ds_read_b32 v{S_+4}, v{FLA}
s_waitcnt lgkmcnt(0)
v_cmp_gt_i32 vcc, s39, v{S_+4}
s_cbranch_vccnz {lbl}
""")
    def take_turn():
        E(f"s_mov_b64 exec, 1\nds_add_rtn_u32 v{S_+4}, v{FLA}, v{TWO} offset:28\ns_mov_b64 exec, -1\ns_waitcnt lgkmcnt(0)\nv_readfirstlane_b32 s39, v{S_+4}\ns_add_u32 s39, s39, {8 + 4 - Li}")
    def tok_pass(fla, one):
        E(f"s_mov_b64 exec, 1\nds_add_u32 v{fla}, v{one}\ns_mov_b64 exec, -1")
    if even: calc_cl()
    else: E("s_lshl4_add_u32 s31, s28, s30")
    E(f"""
s_mov_b32 s42, {56*2048}
s_lshl2_add_u32 s59, s29, s3
s_lshl_b32 s59, s59, 7
s_mul_i32 s58, s31, {56*2048}
s_add_u32 s58, s58, s59
s_add_u32 s40, s20, s58
s_addc_u32 s41, s21, 0
s_mov_b32 s43, 0x20000
s_lshl4_add_u32 s58, s28, s30
s_lshl_b32 s58, s58, 17
s_add_u32 s58, s58, s59
s_add_u32 s44, s12, s58
s_addc_u32 s45, s13, 0
s_mov_b32 s46, {64*2048}
s_mov_b32 s47, 0x20000
s_movk_i32 s51, 0x1000
s_movk_i32 s52, 0x2000
s_movk_i32 s53, 0x3000
v_lshrrev_b32 v{T0}, 3, v0
v_and_b32 v{T1}, 7, v0
v_lshlrev_b32 v{T1}, 4, v{T1}
v_lshl_add_u32 v{VW}, v{T0}, 14, v{T1}
v_lshlrev_b32 v{OSA}, 5, v{T0}
v_add_u32 v{OSA}, {OS}, v{OSA}
v_lshlrev_b32 v{HSA}, 4, v{T0}
v_add_u32 v{HSA}, {HS}, v{HSA}
s_lshl_b32 s58, s3, 15
v_and_b32 v{T0}, 15, v0
v_and_b32 v{T1}, 7, v0
v_lshlrev_b32 v{T1}, 1, v{T1}
v_xor_b32 v{T1}, v{T1}, v1
v_lshlrev_b32 v{T1}, 4, v{T1}
v_lshl_add_u32 v{KA}, v{T0}, 8, v{T1}
v_add_u32 v{KA}, s58, v{KA}
v_xor_b32 v{KA+1}, 64, v{KA}
v_xor_b32 v{KA+2}, 0x80, v{KA}
v_xor_b32 v{KA+3}, 0xc0, v{KA}
s_add_u32 s58, s58, 0x4000
v_lshrrev_b32 v{T0}, 2, v0
v_and_b32 v{T1}, 7, v{T0}
v_lshlrev_b32 v{T1}, 5, v{T1}
v_lshl_add_u32 v{VA}, v{T0}, 8, v{T1}
v_and_b32 v{T1}, 3, v0
v_lshl_add_u32 v{VA}, v{T1}, 3, v{VA}
v_add_u32 v{VA}, s58, v{VA}
""")
    for db in range(1, 8): E(f"v_xor_b32 v{VA+db}, {db*32}, v{VA}")
    E(f"v_mov_b32 v{VM}, 0xff7f0000\nv_mov_b32 v{VL}, 0")
    for i in range(32): E(f"v_mov_b32 v{O+i}, 0")
    E("s_waitcnt lgkmcnt(0)")
    make_sel(SELS, F)
    E(f"""
v_lshlrev_b32 v{LL}, 4, v0
v_add_u32 v{LL}, {PART}, v{LL}
v_lshlrev_b32 v{MLW}, 3, v0
v_add_u32 v{MLW}, {MLL}, v{MLW}
s_lshl_b32 s58, s28, 10
s_add_u32 s58, s58, s32
s_mul_i32 s58, s58, {CS}
s_add_u32 s58, s58, {AP}
v_and_b32 v{T0}, 7, v0
v_bfe_u32 v{T1}, v0, 3, 1
v_mul_u32_u24 v{APA}, {2*64*CS}, v{T0}
v_add_u32 v{APA}, s58, v{APA}
v_mul_u32_u24 v{APM}, {64*CS}, v{T1}
v_add_u32 v{APM}, v{APM}, v{APA}
v_lshl_add_u32 v{APA}, v{T1}, 6, v{APA}
v_lshl_add_u32 v{APA}, v1, 4, v{APA}
v_add_u32 v{APB}, {64*CS}, v{APA}
""")
    if ml1: E(f"s_lshl_b32 s58, s2, 7\ns_add_u32 s58, s58, {MLB - 256}\nv_lshl_add_u32 v{APM}, v0, 4, s58")
    E(f"""
s_lshl_b32 s58, s28, 13
s_add_u32 s58, s58, {NF}
v_lshl_add_u32 v{NFA}, v0, 7, s58
s_mul_i32 s58, s28, {8*cstr}
s_add_u32 s58, s58, {CNT + 4*cstr}
s_add_u32 s14, s26, s58
s_addc_u32 s15, s27, 0
v_mov_b32 v{MSK}, {TMASK}
s_lshl3_add_u32 s58, s28, s3
s_mul_i32 s58, s58, {cstr}
s_add_u32 s58, s58, {CNT}
s_add_u32 s48, s26, s58
s_addc_u32 s49, s27, 0
s_lshl2_add_u32 s58, s29, s3
s_lshl_b32 s58, s58, 15
s_add_u32 s58, s58, {FP}
v_bfe_u32 v{T0}, v0, 2, 1
v_lshl_add_u32 v{FAS}, v{T0}, 14, s58
v_and_b32 v{T0}, 3, v0
v_lshl_add_u32 v{FAS}, v{T0}, 5, v{FAS}
v_bfe_u32 v{T0}, v0, 4, 1
v_lshl_add_u32 v{FAS}, v{T0}, 4, v{FAS}
s_add_u32 s59, s31, 64
s_lshl_b32 s59, s59, 7
v_add_u32 v{FAD}, s59, v{FAS}
s_lshl4_add_u32 s58, s28, s30
s_lshl_b32 s58, s58, 7
v_add_u32 v{FAS}, s58, v{FAS}
s_add_u32 s36, s36, 0x01010101
s_lshr_b32 s16, s36, 8
s_lshr_b32 s17, s36, 16
s_lshr_b32 s18, s36, 24
s_mov_b32 s33, 0
s_mov_b32 s60, {f2u(128 ** -0.5):#x}
s_mov_b32 s61, {f2u(LOG2E):#x}
s_mov_b32 s10, 0
s_mov_b32 s20, 0xff00ff00
s_mov_b32 s21, 0xff00ff00
""")
    E(f"""
v_and_b32 v{T0}, 7, v0
v_lshlrev_b32 v{T0}, 8, v{T0}
v_lshl_add_u32 v{T0}, v1, 4, v{T0}
v_add_u32 v{T0}, {QL}, v{T0}
s_mov_b32 s13, 0
s_mov_b32 s62, 0
s_mov_b32 s11, 0
s_mov_b32 s19, -1
s_branch L_loop
L_pro:
s_waitcnt vmcnt({Y})
""")
    tok_pass(FLA, ONE)
    E(f"""
s_cmp_eq_u32 s13, 1
s_cbranch_scc1 L_loop
L_qw:
s_sleep 1
ds_read_b32 v{T1}, v{FLA} offset:8
s_waitcnt lgkmcnt(0)
v_cmp_ne_u32 vcc, 4, v{T1}
s_cbranch_vccnz L_qw
s_branch L_qr
L_t1:
s_sleep 1
ds_read_b96 v[{S_+4}:{S_+6}], v{FLA}
ds_read_b32 v{S_+7}, v{FLA} offset:28
s_waitcnt lgkmcnt(0)
v_cmp_eq_u32 vcc, 4, v{S_+6}
s_cbranch_vccnz L_qr
v_sub_u32 v{S_+4}, v{S_+4}, v{S_+7}
v_cmp_gt_i32 vcc, {8 + 4 - Li}, v{S_+4}
s_cbranch_vccnz L_t1
s_branch L_tk
L_qr:
""")
    stamp(3)
    for j in range(4): E(f"ds_read_b128 v[{QF+4*j}:{QF+4*j+3}], v{T0} offset:{64*j}")
    E("s_mov_b32 s10, 1\ns_mov_b32 s12, s13\ns_branch L_kjob\nL_e0:\n.p2align 12")

    def k_reads(regs, slot):
        for s in range(2):
            for j in range(4):
                r = regs + (s*4+j)*4
                E(f"ds_read_b128 v[{r}:{r+3}], v{KA+j} offset:{slot*8192 + s*4096}")
        E(f"ds_read_b32 v{ORD}, v{FLA}")
        for s in range(2):
            for j in range(4):
                r = regs + (s*4+j)*4
                E(f"s_waitcnt lgkmcnt({8-(s*4+j)})")
                c = "0" if j == 0 else f"v[{S_+4*s}:{S_+4*s+3}]"
                E(f"v_mfma_f32_16x16x32_bf16 v[{S_+4*s}:{S_+4*s+3}], v[{r}:{r+3}], v[{QF+4*j}:{QF+4*j+3}], {c}")
    def round_scores(dst):
        pack(P, S_, 4); unpack(F, P, 4)
        for i in range(8): E(f"v_mul_f32 v{F+i}, s60, v{F+i}")
        pack(dst, F, 4); unpack(F, dst, 4)
    def exps(m):
        for i in range(8): E(f"v_sub_f32 v{F+i}, v{F+i}, v{m}")
        for i in range(8): E(f"v_mul_f32 v{F+i}, s61, v{F+i}")
        for i in range(8): E(f"v_exp_f32 v{F+i}, v{F+i}")
    def sum8():
        E(f"""
v_add_f32 v{F}, v{F}, v{F+1}
v_add_f32 v{F+2}, v{F+2}, v{F+3}
v_add_f32 v{F+4}, v{F+4}, v{F+5}
v_add_f32 v{F+6}, v{F+6}, v{F+7}
v_add_f32 v{F}, v{F}, v{F+2}
v_add_f32 v{F+4}, v{F+4}, v{F+6}
v_add_f32 v{F}, v{F}, v{F+4}
""")
    def pv(regs, slot, p, dummy, toggle, after0=None, pre=None):
        for db in range(8):
            for s in range(2):
                r = regs + db*4 + s*2
                E(f"ds_read_b64_tr_b16 v[{r}:{r+1}], v{VA+db} offset:{slot*8192 + s*4096}")
        E(f"ds_read_b32 v{dummy}, v{FLA}")
        if pre: pre()
        for db in range(8):
            r = regs + db*4
            E(f"s_waitcnt lgkmcnt({min(14, 15-2*db)})")
            E(f"v_mfma_f32_16x16x32_bf16 v[{O+4*db}:{O+4*db+3}], v[{r}:{r+3}], v[{p}:{p+3}], v[{O+4*db}:{O+4*db+3}]")
            if toggle: E(f"v_xor_b32 v{VA+db}, 0x4000, v{VA+db}")
            if db == 0 and after0: E(after0)
    R = KF
    def rd_part():
        E(f"ds_read_b32 v{S_+4}, v{FLA} offset:12\nds_read_b64 v[{F}:{F+1}], v{MLW}")
        for d in range(4): E(f"ds_read_b128 v[{R+4*d}:{R+4*d+3}], v{LL} offset:{1024*d}")
    ARR = f"""
v_readfirstlane_b32 s63, v{AR2 if earr else ORD}
s_cmp_lg_u32 s63, 3
s_cbranch_scc1 LBL
s_mov_b32 s19, 1
s_atomic_add s19, s[14:15], 0 glc
"""
    E(f"""
L_loop:
s_cmp_ge_u32 s13, {S}
s_cbranch_scc1 L_dynp
s_lshl_b32 s58, s13, 9
s_add_u32 s58, s58, s35
s_cmp_lt_u32 s13, {NK}
s_cselect_b64 s[8:9], s[54:55], s[56:57]
s_cselect_b32 s59, 0, {-256*S}
s_add_u32 s59, s59, s58
s_add_u32 s59, s59, 256
s_cmp_lt_u32 s13, {NV0}
s_cselect_b64 s[6:7], s[54:55], s[56:57]
s_cselect_b32 s63, 0, {-256*S}
s_add_u32 s58, s58, s63
s_and_b32 s58, s58, 2047
s_lshl_b32 s58, s58, 13
s_and_b32 s59, s59, 2047
s_lshl_b32 s59, s59, 13
s_add_u32 s8, s8, s59
s_addc_u32 s9, s9, 0
s_add_u32 s6, s6, s58
s_addc_u32 s7, s7, 0
s_lshl1_add_u32 s58, s10, s13
s_cmp_eq_u32 s58, 1
s_cbranch_scc1 L_t1
s_cmp_eq_u32 s13, 0
s_cbranch_scc1 L_tw_c
s_cmp_lt_u32 s13, {NV0}
s_cbranch_scc1 L_tk
""")
    for h, p in ((0, P), (1, S_)):
        unpack(F, SS + 4*h, 4); exps(VM); pack(p, F, 4); sum8()
        E(f"v_add_f32 v{VL}, v{VL}, v{F}")
    for i in range(16): E(f"v_mov_b32 v{SS+i}, v{SS+8+i}")
    E(f"""
s_branch L_tk
L_dynp:
s_lshl2_add_u32 s63, s62, s38
s_and_b32 s63, s63, 2047
s_lshl_b32 s63, s63, 13
s_add_u32 s6, s54, s63
s_addc_u32 s7, s55, 0
s_add_u32 s8, s56, s63
s_addc_u32 s9, s57, 0
""")
    E("L_tk:")
    take_turn()
    if nesc: E(f"s_cmp_ge_u32 s62, {nesc}\ns_cselect_b32 s39, 0, s39")
    tok_wait("L_tw", True)
    if stamps: E("s_memrealtime s[90:91]\ns_waitcnt lgkmcnt(0)\ns_mov_b32 m0, s13\nv_writelane_b32 v244, s90, m0")
    for j in range(16):
        if j == 8:
            E("s_add_u32 s39, s39, 1")
            tok_wait("L_tb", True)
        if j % 4 == 0: E(f"s_mov_b32 m0, s34" if j == 0 else f"s_add_u32 m0, s34, {hex(1024*j)}")
        v = [[LDA, LDB], [LDA2, LDB2]][(j >> 2) & 1][j & 1]
        base = 6 if j < 8 else 8
        E(f"global_load_lds_dwordx4 v{v}, s[{base}:{base+1}] offset:{(j&3)*1024} {pk}")
    E(f"""
s_xor_b32 s34, s34, 0x4000
s_add_u32 s13, s13, 1
""")
    if tke:
        E(f"""
s_cmp_lt_u32 s33, {S-1}
s_cbranch_scc1 L_nodraw
s_add_u32 s62, s62, 64
s_cmp_ge_u32 s62, {nret + 64}
s_cselect_b32 s11, 1, 0
s_cbranch_scc1 L_nodraw
s_mov_b32 s62, 1
s_atomic_add s62, s[48:49], 0 glc
L_nodraw:
""")
    E(f"s_waitcnt vmcnt({8 + Y})")
    tok_pass(FLA, ONE)
    E(f"""
s_cmp_ge_u32 s33, {S}
s_cbranch_scc1 L_mix
s_cmp_eq_u32 s10, 0
s_cbranch_scc1 L_pro
s_cmp_ge_u32 s33, {NV0}
s_cbranch_scc1 L_vjob
s_waitcnt vmcnt(8)
""")
    if S & 1: E(f"s_cmp_eq_u32 s33, {NK}\ns_cbranch_scc1 L_hyb")
    E("L_kjob:")
    k_reads(KF, 0)
    E(f"s_cmp_lt_u32 s33, s12\ns_cbranch_scc1 L_nopass\ns_waitcnt vmcnt({Y})"); tok_pass(FLA, ONE); E("L_nopass:")
    for i in range(16): E(f"v_mov_b32 v{SS+i}, v{SS+8+i}")
    def accmax():
        E(f"v_max3_f32 v{VM}, v{VM}, v{F}, v{F+1}\nv_max3_f32 v{T1}, v{F+2}, v{F+3}, v{F+4}\nv_max3_f32 v{VM}, v{VM}, v{F+5}, v{F+6}\nv_max3_f32 v{VM}, v{VM}, v{F+7}, v{T1}")
    round_scores(SS+16); accmax()
    E("s_waitcnt vmcnt(0)")
    k_reads(VF, 1)
    for i in range(4): E(f"v_xor_b32 v{KA+i}, 0x4000, v{KA+i}")
    round_scores(SS+20); accmax()
    E(f"""
s_add_u32 s33, s33, 1
s_cmp_lt_u32 s33, s13
s_cbranch_scc1 L_kjob
""")
    if S & 1:
        E("s_branch L_loop\nL_hyb:")
        k_reads(KF, 0)
        E(f"s_waitcnt vmcnt({Y})"); tok_pass(FLA, ONE)
        round_scores(SS+24); accmax()
        cross_rows(VM, T1, "v_max_f32")
        unpack(F, SS, 4); exps(VM); pack(P, F, 4); sum8()
        E(f"v_add_f32 v{VL}, v{VL}, v{F}\ns_waitcnt vmcnt(0)")
        def sh():
            for i in range(24): E(f"v_mov_b32 v{SS+i}, v{SS+4+i}")
        pv(VF, 1, P, ORD, True, pre=sh)
        E("s_add_u32 s33, s33, 1\ns_branch L_loop")
    else:
        E(f"s_cmp_lt_u32 s33, {NK}\ns_cbranch_scc1 L_loop")
        cross_rows(VM, T1, "v_max_f32")
        for i in range(4): E(f"v_xor_b32 v{KA+i}, 0x4000, v{KA+i}")
        E("s_branch L_loop")
    E("L_vjob:")
    if not tke: E(f"""
s_cmp_lg_u32 s33, {S-1}
s_cbranch_scc1 L_notk
s_waitcnt vmcnt({tk})
s_mov_b32 s62, 1
s_atomic_add s62, s[48:49], 0 glc
L_notk:
""")
    E("s_waitcnt vmcnt(8)")
    pv(KF, 0, P, ORD, False)
    E(f"s_waitcnt vmcnt({Y})"); tok_pass(FLA, ONE)
    E("s_waitcnt vmcnt(0)")
    pv(VF, 1, S_, ORD, True)
    E(f"""
s_add_u32 s33, s33, 1
L_vend:
s_waitcnt lgkmcnt(0)
s_cmp_lt_u32 s62, 512
s_cbranch_scc1 L_loop
s_mov_b64 exec, 1
ds_add_rtn_u32 v{ORD}, v{FLA}, v{ONE} offset:4
ds_add_rtn_u32 v{AR2}, v{FLA}, v{ONE} offset:32
s_mov_b64 exec, -1
""")
    if stamps: E("s_memrealtime s[80:81]\ns_memrealtime s[94:95]\ns_waitcnt lgkmcnt(0)\ns_mov_b32 s72, s80")
    rd_part()
    E("s_waitcnt lgkmcnt(0)")
    E(ARR.replace("LBL", "L_stail"))
    E("s_branch L_stail")
    E("L_mix:")
    if not tke: E(f"""
s_waitcnt vmcnt({tk})
s_add_u32 s62, s62, 64
s_cmp_ge_u32 s62, {nret + 64}
s_cselect_b32 s11, 1, 0
s_cbranch_scc1 {"L_ret" if earr else "L_static"}
s_mov_b32 s62, 1
s_atomic_add s62, s[48:49], 0 glc
""")
    if earr:
        E(f"s_branch L_static\nL_ret:\ns_mov_b32 s11, 1\ns_mov_b64 exec, 1\nds_add_rtn_u32 v{AR2}, v{FLA}, v{ONE} offset:32\ns_mov_b64 exec, -1\ns_waitcnt lgkmcnt(0)")
        E(ARR.replace("LBL", "L_static"))
    E("L_static:\ns_waitcnt vmcnt(8)")
    k_reads(KF, 0)
    E(f"s_waitcnt vmcnt({Y})"); tok_pass(FLA, ONE)
    for i in range(4): E(f"v_xor_b32 v{KA+i}, 0x4000, v{KA+i}")
    round_scores(P)
    E(f"""
v_max3_f32 v{T0}, v{F}, v{F+1}, v{F+2}
v_max3_f32 v{T1}, v{F+3}, v{F+4}, v{F+5}
v_max3_f32 v{T0}, v{T0}, v{F+6}, v{F+7}
v_max_f32 v{T0}, v{T0}, v{T1}
""")
    cross_rows(T0, T1, "v_max_f32")
    E(f"""
v_max_f32 v{T1}, v{T0}, v{VM}
v_sub_f32 v{T0}, v{VM}, v{T1}
v_mul_f32 v{T0}, s61, v{T0}
v_exp_f32 v{T0}, v{T0}
v_mov_b32 v{VM}, v{T1}
""")
    exps(T1)
    pack(P, F, 4); sum8()
    E(f"v_fma_f32 v{VL}, v{VL}, v{T0}, v{F}")
    if stamps: E("s_memrealtime s[94:95]")
    if tlate:
        E("s_cmp_eq_u32 s11, 0\ns_cbranch_scc1 L_pv")
    else:
        if earr: E("s_cmp_eq_u32 s11, 1\ns_cbranch_scc1 L_lt")
        E("s_waitcnt lgkmcnt(0)\ns_cmp_lt_u32 s62, 512\ns_cbranch_scc1 L_pv")
        if earr: E(f"s_mov_b64 exec, 1\nds_add_rtn_u32 v{AR2}, v{FLA}, v{ONE} offset:32\nL_lt:")
    if stamps: E("s_mov_b32 s80, s90\ns_mov_b32 s72, s90")
    E(f"s_mov_b64 exec, 1\nds_add_rtn_u32 v{ORD}, v{FLA}, v{ONE} offset:4\ns_mov_b64 exec, -1")
    rd_part()
    E("L_pv:\ns_waitcnt vmcnt(0)")
    def resc():
        for i in range(0, 32, 2): E(f"v_pk_mul_f32 v[{O+i}:{O+i+1}], v[{O+i}:{O+i+1}], v[{T0}:{T0+1}] op_sel_hi:[1,0]")
    if tlate:
        a0 = None if earr else "s_cmp_eq_u32 s11, 0\ns_cbranch_scc1 L_noat" + ARR.replace("LBL", "L_noat") + "L_noat:"
        pv(VF, 1, P, S_+5, True, after0=a0, pre=resc)
        E("s_add_u32 s33, s33, 1\ns_cmp_eq_u32 s11, 0\ns_cbranch_scc1 L_vend\ns_branch L_stail")
    else:
        pv(VF, 1, P, S_+5, True, after0="s_cmp_lt_u32 s62, 512\ns_cbranch_scc1 L_noat" + ("\ns_cmp_eq_u32 s11, 1\ns_cbranch_scc1 L_noat" if earr else "") + ARR.replace("LBL", "L_noat") + "L_noat:", pre=resc)
        E("s_add_u32 s33, s33, 1\ns_cmp_lt_u32 s62, 512\ns_cbranch_scc1 L_loop\ns_branch L_stail")

    def embed(r, n=4):
        for i in range(n): E(f"v_bfi_b32 v{r+i}, s37, v{r+i}, v{TG+i%4}")
    def strip(r, n=4):
        for i in range(n): E(f"v_and_b32 v{r+i}, s37, v{r+i}")
    npoll = [0]
    def poll(loads, grs, t, slp):
        n = npoll[0]; npoll[0] += 1
        MK = 40
        E("s_mov_b32 s62, 0")
        def tagw(r):
            E(f"v_xor_b32 v{t+1}, v{r}, v{TG}")
            for i in range(1, 4): E(f"v_bitop3_b32 v{t+1}, v{r+i}, v{TG+i}, v{t+1} bitop3:0xbe")
            E(f"v_and_b32 v{t+1}, s38, v{t+1}")
        if len(loads) == 1:
            E(f"L_poll{n}:\n{loads[0]}\ns_waitcnt vmcnt(0)")
            tagw(grs[0])
            E(f"v_cmp_ne_u32 vcc, 0, v{t+1}\ns_cbranch_vccz L_pok{n}\ns_mov_b64 exec, vcc")
        else:
            for l in loads: E(l)
            E(f"s_branch L_chk{n}\nL_poll{n}:")
            for k, l in enumerate(loads):
                E(f"s_mov_b64 exec, s[{MK+2*k}:{MK+2*k+1}] ;nopad\ns_cbranch_execz L_pl{n}_{k} ;nopad\n{l} ;nopad\nL_pl{n}_{k}:")
            E(f"s_mov_b64 exec, -1 ;nopad\nL_chk{n}:\ns_waitcnt vmcnt(0)")
            for k, r in enumerate(grs):
                tagw(r)
                E(f"v_cmp_ne_u32 s[{MK+2*k}:{MK+2*k+1}], 0, v{t+1}")
            E(f"s_or_b64 vcc, s[{MK}:{MK+1}], s[{MK+2}:{MK+3}]")
            for k in range(2, len(loads)): E(f"s_or_b64 vcc, vcc, s[{MK+2*k}:{MK+2*k+1}]")
            E(f"s_cbranch_scc0 L_pok{n}")
        E("s_add_u32 s62, s62, 1\ns_cmp_ge_u32 s62, 0x200000")
        if slp: E(f"s_sleep {slp}")
        E(f"s_cbranch_scc0 L_poll{n}\nL_pok{n}:")
        if len(loads) == 1: E("s_mov_b64 exec, -1")

    E("L_e1:\n.p2align 12\nL_aux:")
    E(f"s_mov_b32 s37, 0xffffff00\ns_movk_i32 s38, 0xff")
    make_sel(SELA, 4)
    calc_cl()
    E(f"""
s_lshl_b32 s58, s3, 10
s_add_u32 s58, s58, {SCR}
v_lshl_add_u32 v2, v0, 4, s58
v_bfe_u32 v3, v0, 1, 3
v_and_b32 v1, 1, v0
v_lshl_add_u32 v3, v1, 4, v3
v_lshlrev_b32 v3, 4, v3
v_add_u32 v3, {SCR}, v3
""")
    GV = 200
    Q_ = [("g", i) for i in range(8)] + [("u", i) for i in range(8)]
    def gu_issue():
        m, i = Q_.pop(0)
        srd, dst = (40, WG_) if m == "g" else (44, WU_)
        if i == 0: E("s_mov_b32 s48, 0")
        E(f"buffer_load_dwordx4 v[{dst+4*i}:{dst+4*i+3}], v{GV}, s[{srd}:{srd+3}], s48 offen {pw}")
        if i < 7: E("s_add_u32 s48, s48, 7168")
    if True:
        E(f"""
s_lshl2_add_u32 s58, s29, s3
s_mul_i32 s59, s58, {64*7168}
s_mul_i32 s58, s31, {112 if even else 128}
s_add_u32 s59, s59, s58
s_add_u32 s40, s16, s59
s_addc_u32 s41, s17, 0
s_add_u32 s44, s18, s59
s_addc_u32 s45, s19, 0
s_cmp_lt_u32 s31, {64 if even else 56}
s_cselect_b32 s42, {64*7168}, 0
s_mov_b32 s46, s42
s_mov_b32 s43, 0x20000
s_mov_b32 s47, 0x20000
v_lshrrev_b32 v1, 3, v0
v_and_b32 v4, 7, v0
v_lshlrev_b32 v5, 4, v4
v_mul_u32_u24 v{GV}, {8*7168}, v1
v_add_u32 v{GV}, v{GV}, v5
""")
        if even: E(f"v_cmp_eq_u32 vcc, 7, v4\nv_mov_b32 v5, 0x1000000\nv_cndmask_b32 v{GV}, v{GV}, v5, vcc")
    E("s_waitcnt vmcnt(9)")
    unpack(G, XF, 8)
    E(f"v_add_f32 v1, v{G}, v{G+1}\nv_add_f32 v5, v{G+2}, v{G+3}")
    for i in range(4, 16, 2): E(f"v_add_f32 v1, v1, v{G+i}\nv_add_f32 v5, v5, v{G+i+1}")
    E("v_add_f32 v1, v1, v5")
    wave_allreduce(1, 5, "v_add_f32")
    E(f"v_mul_f32 v1, {f2u(1/1024):#x}, v1")
    for i in range(16): E(f"v_sub_f32 v{G+i}, v{G+i}, v1")
    E(f"v_mul_f32 v6, v{G}, v{G}\nv_mul_f32 v5, v{G+1}, v{G+1}")
    for i in range(2, 16, 2): E(f"v_fmac_f32 v6, v{G+i}, v{G+i}\nv_fmac_f32 v5, v{G+i+1}, v{G+i+1}")
    E("v_add_f32 v6, v6, v5")
    wave_allreduce(6, 5, "v_add_f32")
    E(f"v_mul_f32 v6, {f2u(1/1024):#x}, v6")
    rnd_bf16(1); rnd_bf16(6)
    E(f"v_add_f32 v6, {f2u(1e-5):#x}, v6")
    rnd_bf16(6)
    E("v_sqrt_f32 v6, v6")
    rnd_bf16(6)
    E("v_rcp_f32 v6, v6\ns_waitcnt vmcnt(8)")
    unpack(G, XR, 4)
    for i in range(8): E(f"v_sub_f32 v{G+i}, v{G+i}, v1")
    pack(XR, G, 4); unpack(G, XR, 4)
    for i in range(8): E(f"v_mul_f32 v{G+i}, v{G+i}, v6")
    pack(XR, G, 4)
    build_A(AX, XR, SELA)
    stamp(1)
    if not even: E("s_cmp_lt_u32 s31, 56\ns_cbranch_scc1 L_gd1\ns_waitcnt vmcnt(0)\nL_gd1:")
    nis = 0
    for i in range(8):
        E(f"s_waitcnt vmcnt({7 - i + nis})")
        if 7 - i + nis < gw:
            gu_issue(); nis += 1
        mm1(G, AX, WF, i)
    E(f"""
s_waitcnt lgkmcnt(0)
s_add_u32 s36, s36, 0x01010101
v_mov_b32 v{TG}, s36
s_lshr_b32 s58, s36, 8
v_mov_b32 v{TG+1}, s58
s_lshr_b32 s58, s36, 16
v_mov_b32 v{TG+2}, s58
s_lshr_b32 s58, s36, 24
v_mov_b32 v{TG+3}, s58
v_mov_b32 v5, {FLG}
v_mov_b32 v6, 1
ds_write_b128 v2, v[{G}:{G+3}]
s_mov_b64 exec, 1
ds_add_u32 v5, v6 offset:20
s_mov_b64 exec, -1
""")
    stamp(2)
    E(f"""
s_cmp_lg_u32 s3, 0
s_cbranch_scc1 L_qpub
L_xw:
ds_read_b32 v6, v5 offset:20
s_waitcnt lgkmcnt(0)
v_cmp_ne_u32 vcc, 5, v6
s_cbranch_vccnz L_xw
""")
    for k in range(8):
        E(f"ds_read_b128 v[{G+4*k}:{G+4*k+3}], v3 offset:{(k // 2) * 1024 + (k % 2) * 640}")
    E(f"""
s_lshl4_add_u32 s58, s28, s30
s_lshl2_add_u32 s58, s58, s29
s_lshl_b32 s58, s58, 8
s_add_u32 s58, s58, {QP}
v_lshl_add_u32 v1, v0, 4, s58
s_waitcnt lgkmcnt(0)
""")
    for st in (16, 8, 4):
        for i in range(st): E(f"v_add_f32 v{G+i}, v{G+i}, v{G+st+i}")
    embed(G)
    E(f"s_mov_b64 exec, 0xffff\nglobal_store_dwordx4 v1, v[{G}:{G+3}], s[26:27] sc1\ns_mov_b64 exec, -1\nL_qpub:")
    stamp(3)
    E(f"""
s_lshl2_add_u32 s58, s28, s3
s_lshl_b32 s58, s58, 12
s_add_u32 s58, s58, {QP}
v_lshrrev_b32 v1, 4, v0
v_and_b32 v4, 15, v0
v_lshl_add_u32 v4, v4, 4, s58
v_lshl_add_u32 v4, v1, 10, v4
v_mov_b32 v19, {FLG}
v_mov_b32 v20, 1
""")
    PASS = "s_mov_b64 exec, 1\nds_add_u32 v19, v20\ns_mov_b64 exec, -1"
    while Q_:
        E(f"s_waitcnt vmcnt({gw - 1})"); gu_issue()
    if even: E(f"s_waitcnt vmcnt({gy})\n{PASS}\ns_waitcnt vmcnt(0)")
    else: E(f"s_waitcnt vmcnt({gy})\n{PASS}\ns_waitcnt vmcnt(0)\ns_cmp_lt_u32 s31, 56\ns_cbranch_scc1 L_qgo\nL_lw:\ns_sleep 4\nds_read_b32 v6, v19\ns_waitcnt lgkmcnt(0)\nv_cmp_gt_u32 vcc, {ltok}, v6\ns_cbranch_vccnz L_lw\nL_qgo:")
    poll([f"global_load_dwordx4 v[{G+4*k}:{G+4*k+3}], v4, s[26:27] offset:{256*k} sc1" for k in range(4)],
         [G+4*k for k in range(4)], 5, 4)
    strip(G, 16)
    for st in (8, 4):
        for i in range(st): E(f"v_add_f32 v{G+i}, v{G+i}, v{G+st+i}")
    pack(G, G, 2)
    E(f"""
s_lshl_b32 s58, s3, 9
s_add_u32 s58, s58, {QL}
v_lshl_add_u32 v1, v0, 3, s58
ds_write_b64 v1, v[{G}:{G+1}]
v_mov_b32 v5, {FLG}
v_mov_b32 v6, 1
s_mov_b64 exec, 1
ds_add_u32 v5, v6 offset:8
s_mov_b64 exec, -1
""")
    stamp(4)
    if not even: E("s_cmp_ge_u32 s31, 56\ns_cbranch_scc1 L_gpd")
    E("v_and_b32 v4, 7, v0")
    E(f"""
s_lshl2_add_u32 s58, s31, s29
s_lshl_b32 s58, s58, 9
s_add_u32 s58, s58, {GP}
v_lshl_add_u32 v5, v4, 5, s58
v_bfe_u32 v4, v0, 4, 1
v_lshl_add_u32 v5, v4, 4, v5
v_lshrrev_b32 v4, 5, v0
v_lshl_add_u32 v5, v4, 8, v5
s_waitcnt vmcnt(0)
""")
    mm(G, AX, WG_); mm(G+4, AX, WU_)
    for i in range(4): E(f"v_permlane32_swap_b32 v{G+i}, v{G+4+i}")
    for i in range(4): E(f"v_add_f32_dpp v{G+i}, v{G+4+i}, v{G+i} row_ror:8 {DPP}")
    E(f"""
ds_write_b128 v2, v[{G}:{G+3}] offset:4096
s_mov_b64 exec, 1
ds_add_rtn_u32 v6, v19, v20 offset:16
s_mov_b64 exec, -1
v_lshlrev_b32 v7, 4, v0
v_add_u32 v7, {SCR + 4096}, v7
s_waitcnt lgkmcnt(0)
v_readfirstlane_b32 s58, v6
s_cmp_lg_u32 s58, 3
s_cbranch_scc1 L_gpd
""")
    for k in range(4): E(f"ds_read_b128 v[{G+4*k}:{G+4*k+3}], v7 offset:{1024*k}")
    E("s_waitcnt lgkmcnt(0)")
    for st in (8, 4):
        for i in range(st): E(f"v_add_f32 v{G+i}, v{G+i}, v{G+st+i}")
    embed(G)
    E(f"""
s_mov_b32 exec_lo, 0x00ff00ff
s_mov_b32 exec_hi, 0x00ff00ff
global_store_dwordx4 v5, v[{G}:{G+3}], s[26:27] sc1
s_mov_b64 exec, -1
L_gpd:
s_cmp_lg_u32 s3, 0
s_cbranch_scc1 L_noffn
""")
    if even: E(f"""
s_lshl_b32 s58, s31, 11
s_add_u32 s58, s58, {GP}
v_and_b32 v4, 15, v0
v_lshl_add_u32 v5, v4, 4, s58
v_lshrrev_b32 v1, 4, v0
v_lshl_add_u32 v5, v1, 9, v5
""")
    else: E(f"""
s_lshl4_add_u32 s58, s28, s30
s_mul_i32 s58, s58, 14
v_and_b32 v4, 15, v0
v_min_u32 v5, 13, v4
v_add_u32 v5, s58, v5
v_lshrrev_b32 v6, 4, v5
v_and_b32 v5, 15, v5
v_lshlrev_b32 v5, 4, v5
v_lshl_add_u32 v5, v6, 11, v5
v_lshrrev_b32 v1, 4, v0
v_lshl_add_u32 v5, v1, 9, v5
v_add_u32 v5, {GP}, v5
""")
    E(f"""
L_gt:
s_sleep 20
ds_read_b64 v[22:23], v19
s_waitcnt lgkmcnt(0)
v_cmp_gt_u32 vcc, {gtok}, v22
v_cmp_eq_u32 s[58:59], 0, v23
s_and_b64 vcc, vcc, s[58:59]
s_cbranch_scc1 L_gt
""")
    poll([f"global_load_dwordx4 v[{G+4*u}:{G+4*u+3}], v5, s[26:27] offset:{256*u} sc1" for u in range(2)],
         [G, G+4], G+32, 10)
    strip(G, 8)
    fold4(G, G+4)
    rnd_bf16(G); rnd_bf16(G+4)
    c1 = -2 * 0.7978845608028654 * LOG2E
    E(f"""
v_mul_f32 v{G+1}, v{G}, v{G}
v_mov_b32 v{G+2}, {f2u(c1):#x}
v_mul_f32 v{G+1}, {f2u(c1*0.044715):#x}, v{G+1}
v_add_f32 v{G+1}, v{G+1}, v{G+2}
v_mul_f32 v{G+1}, v{G+1}, v{G}
v_exp_f32 v{G+1}, v{G+1}
v_add_f32 v{G+1}, 1.0, v{G+1}
v_rcp_f32 v{G+1}, v{G+1}
v_mul_f32 v{G}, v{G}, v{G+1}
""")
    rnd_bf16(G)
    E(f"""
v_mul_f32 v{G}, v{G}, v{G+4}
v_cvt_pk_bf16_f32 v{G}, v{G}, v{G}
v_lshl_add_u32 v4, v4, 2, v1
v_lshlrev_b32 v4, 1, v4
v_add_u32 v4, {HS}, v4
ds_write_b16 v4, v{G}
v_mov_b32 v4, {FLG}
v_mov_b32 v5, 1
ds_write_b32 v4, v5 offset:24
s_branch L_noffn
""")
    E("L_e2:\n.p2align 12\nL_noffn:")
    if warm: E("s_mov_b64 exec, 0\ns_branch L_ret3 ;;W3_0\nL_ret3:\ns_mov_b64 exec, -1")
    CA, CB, CM, OW, FS, FD, XO, OA, SA, PI, PM = 8, 9, 10, 11, 12, 13, 14, 15, 16, 17, 18
    E(f"""
s_lshl4_add_u32 s58, s28, s30
s_lshl2_add_u32 s58, s58, s3
s_mul_i32 s58, s58, {16*CS}
s_add_u32 s58, s58, {AP + 8*CS}
v_lshrrev_b32 v1, 4, v0
v_and_b32 v4, 15, v0
v_mul_u32_u24 v5, {CS}, v1
v_add_u32 v5, s58, v5
v_lshl_add_u32 v{CA}, v4, 4, v5
v_and_b32 v6, 3, v0
""")
    if ml1:
        E(f"v_lshl_add_u32 v6, v6, 2, v1\ns_lshl2_add_u32 s58, s28, s3\ns_lshl_b32 s58, s58, 11\ns_lshr_b32 s59, s30, 1\ns_lshl4_add_u32 s58, s59, s58\ns_add_u32 s58, s58, {MLB}\nv_lshl_add_u32 v{CM}, v6, 7, s58")
    else:
        E(f"v_mul_u32_u24 v6, 1536, v6\nv_add_u32 v{CM}, v5, v6")
    E(f"""
s_lshl_b32 s58, s3, 3
s_add_u32 s58, s58, {OS + 1024}
v_mov_b32 v{CB}, s58
v_lshl_add_u32 v5, v4, 2, v1
s_lshl_b32 s58, s3, 8
s_add_u32 s58, s58, {OS}
v_lshl_add_u32 v{OW}, v5, 2, s58
s_and_b32 s58, s2, 7
s_lshl_b32 s58, s58, 5
s_lshr_b32 s59, s2, 3
s_add_u32 s63, s58, s59
s_lshr_b32 s58, s63, 3
s_lshl_b32 s58, s58, 14
s_and_b32 s59, s63, 7
s_lshl4_add_u32 s58, s59, s58
s_add_u32 s58, s58, {FP}
v_lshl_add_u32 v{FS}, v0, 7, s58
s_add_u32 s58, s58, {64*128}
v_lshl_add_u32 v{FD}, v0, 7, s58
s_lshl_b32 s63, s63, 3
v_lshl_add_u32 v{OA}, v1, 1, s63
global_load_ushort v{XO}, v{OA}, s[4:5]
s_lshl_b32 s58, s2, 7
s_add_u32 s58, s58, {NF}
s_add_u32 s34, s26, s58
s_addc_u32 s35, s27, 0
s_mov_b32 s61, {f2u(LOG2E):#x}
s_mov_b32 s37, {TMASK}
s_movk_i32 s38, {TM}
v_lshlrev_b32 v{SA}, 2, v0
v_add_u32 v{SA}, {SCR}, v{SA}
""")
    stamp(5)
    if prio: E("s_setprio 0")
    E(f"""
v_mov_b32 v5, {FLG}
L_aw:
s_sleep 30
ds_read_b32 v6, v5 offset:4
s_waitcnt lgkmcnt(0)
v_cmp_eq_u32 vcc, 0, v6
s_cbranch_vccnz L_aw
""")
    E(f"""
L_aw2:
s_sleep 2
ds_read_b32 v6, v5 offset:4
s_waitcnt lgkmcnt(0)
v_cmp_gt_u32 vcc, {c1thr}, v6
s_cbranch_vccnz L_aw2
""")
    stamp(6)
    E(f"""
s_mov_b32 s62, 0
L_hint:
s_load_dword s58, s[34:35], 0 glc
s_waitcnt lgkmcnt(0)
s_cmp_eq_u32 s58, s36
s_cbranch_scc1 L_hinted
s_sleep {hintsleep}
s_add_u32 s62, s62, 1
s_cmp_ge_u32 s62, 0x100
s_cbranch_scc0 L_hint
L_hinted:
""")
    if prio: E("s_setprio 3")
    stamp(7)
    M_ = G + 16
    loads = [f"global_load_dwordx4 v[{M_}:{M_+3}], v{CM}, s[26:27] offset:{0 if ml1 else 256-3072} sc1"] + \
            [f"global_load_dwordx4 v[{G+4*k}:{G+4*k+3}], v{CA}, s[26:27] offset:{4*CS*k-8*CS} sc1" for k in range(4)]
    ST = 32
    def stp(k): return '\n'.join(f'v_and_b32 v{ST+4*k+i}, s37, v{G+4*k+i}' for i in range(4))
    AC, TW = G + 20, 24
    def tagw(k, r):
        b3 = lambda i: f"v_bitop3_b32 v{TW+k}, v{r+i}, v{TG+i}, v{TW+k} bitop3:0xbe"
        return [f"v_xor_b32 v{TW+k}, v{r}, v{TG}", b3(1), b3(2) + "\n" + b3(3)]
    E("s_mov_b32 s62, 0")
    for l in loads: E(l)
    E("s_branch L_c1\nL_rp:")
    for k in range(5): E(f"v_and_b32 v{TW+k}, s38, v{TW+k}\nv_cmp_ne_u32 s[{40+2*k}:{41+2*k}], 0, v{TW+k}")
    E(f"s_add_u32 s62, s62, 1\ns_cmp_ge_u32 s62, 0x200000\ns_cbranch_scc1 L_c2")
    if hsleep: E(f"s_sleep {hsleep}")
    for k, l in enumerate(loads):
        E(f"s_mov_b64 exec, s[{40+2*k}:{41+2*k}] ;nopad\ns_cbranch_execz L_rp{k} ;nopad\n{l} ;nopad\nL_rp{k}:")
    E("s_mov_b64 exec, -1 ;nopad\ns_waitcnt vmcnt(0)\nL_c1:\ns_waitcnt vmcnt(4)")
    t0 = tagw(0, M_)
    E(f"""
v_and_b32 v22, s37, v{M_}
{t0[0]}
{t0[1]}
v_max_f32_dpp v6, v22, v22 quad_perm:[1,0,3,2] {DPP}
{t0[2]}
s_waitcnt vmcnt(3)
v_max_f32_dpp v6, v6, v6 quad_perm:[2,3,0,1] {DPP}
v_mov_b32 v7, v6
""")
    t1 = tagw(1, G)
    E(f"{t1[0]}\n{t1[1]}\nv_permlane32_swap_b32 v7, v6\nv_max_f32 v6, v6, v7\nv_mov_b32 v7, v6\n{t1[2]}\ns_waitcnt vmcnt(2)")
    t2 = tagw(2, G+4)
    E(f"v_permlane16_swap_b32 v7, v6\nv_max_f32 v6, v6, v7\nv_sub_f32 v5, v22, v6\nv_mul_f32 v5, s61, v5\nv_exp_f32 v5, v5\nv_and_b32 v23, s37, v{M_+1}\n{stp(0)}\n{t2[0]}\n{t2[1]}\n{t2[2]}")
    E(f"v_mul_f32 v7, v5, v23")
    for i in range(4): E(f"v_mul_f32_dpp v{AC+i}, v5, v{ST+i} quad_perm:[0,0,0,0] {DPP}")
    E(stp(1))
    E(f"v_add_f32_dpp v7, v7, v7 quad_perm:[1,0,3,2] {DPP}\ns_waitcnt vmcnt(1)")
    for l in tagw(3, G+8): E(l)
    E(stp(2))
    E(f"v_add_f32_dpp v7, v7, v7 quad_perm:[2,3,0,1] {DPP}\ns_waitcnt vmcnt(0)")
    for l in tagw(4, G+12): E(l)
    E(f"v_mov_b32 v21, v7\nv_or3_b32 v{TW+5}, v{TW}, v{TW+1}, v{TW+2}\nv_or3_b32 v{TW+5}, v{TW+5}, v{TW+3}, v{TW+4}\nv_and_b32 v{TW+5}, s38, v{TW+5}\nv_cmp_ne_u32 vcc, 0, v{TW+5}\ns_cbranch_vccnz L_rp\nL_c2:")
    stamp(8)
    E("v_permlane32_swap_b32 v21, v7")
    E(stp(3))
    for i in range(4): E(f"v_fmac_f32_dpp v{AC+i}, v5, v{ST+4+i} quad_perm:[1,1,1,1] {DPP}")
    E("v_add_f32 v7, v7, v21\nv_mov_b32 v21, v7")
    for i in range(4): E(f"v_fmac_f32_dpp v{AC+i}, v5, v{ST+8+i} quad_perm:[2,2,2,2] {DPP}")
    E("v_permlane16_swap_b32 v21, v7")
    for i in range(4): E(f"v_fmac_f32_dpp v{AC+i}, v5, v{ST+12+i} quad_perm:[3,3,3,3] {DPP}")
    E(f"""
v_add_f32 v7, v7, v21
ds_write_b64 v{CB}, v[6:7]
v_permlane32_swap_b32 v{AC}, v{AC+2}
v_permlane32_swap_b32 v{AC+1}, v{AC+3}
v_add_f32 v{AC}, v{AC}, v{AC+2}
v_add_f32 v{AC+1}, v{AC+1}, v{AC+3}
v_permlane16_swap_b32 v{AC}, v{AC+1}
v_add_f32 v{AC}, v{AC}, v{AC+1}
ds_write_b32 v{OW}, v{AC}
s_waitcnt lgkmcnt(0)
s_barrier
{"s_setprio 0" if prio else ""}
s_cmp_eq_u32 s3, 0
s_cbranch_scc1 L_sred
s_cmp_lg_u32 s3, 1
s_cbranch_scc1 L_end
""")
    poll([f"global_load_dwordx4 v[{G+4}:{G+7}], v{FD}, s[26:27] sc1"], [G+4], 5, sleep)
    strip(G+4, 4)
    fold4(G+4)
    row_allreduce([G+4], "v_add_f32")
    rnd_bf16(G+4)
    E(f"""
v_mul_f32 v21, {f2u(-LOG2E):#x}, v{G+4}
v_exp_f32 v21, v21
v_add_f32 v21, 1.0, v21
v_rcp_f32 v21, v21
v_mul_f32 v21, v21, v{G+4}
""")
    rnd_bf16(21)
    E(f"ds_write_b32 v{SA}, v21\ns_waitcnt lgkmcnt(0)\ns_barrier\ns_endpgm\nL_sred:")
    stamp(9)
    E(f"v_lshlrev_b32 v{XO}, 16, v{XO}")
    if ssleep: E(f"s_sleep {ssleep}")
    poll([f"global_load_dwordx4 v[{G}:{G+3}], v{FS}, s[26:27] sc1"], [G], 5, sleep)
    stamp(10)
    E(f"s_barrier\nds_read_b32 v21, v{SA}")
    stamp(11)
    strip(G, 4)
    fold4(G)
    row_allreduce([G], "v_add_f32")
    rnd_bf16(G)
    E(f"s_waitcnt lgkmcnt(0)\nv_mul_f32 v5, v21, v{G}")
    rnd_bf16(5)
    E(f"""
v_add_f32 v5, v5, v{XO}
v_cvt_pk_bf16_f32 v5, v5, v5
s_mov_b32 exec_lo, 0x00010001
s_mov_b32 exec_hi, 0x00010001
global_store_short v{OA}, v5, s[22:23]
s_cmp_lg_u32 s2, 0
s_cbranch_scc1 L_fin
s_mov_b64 exec, 1
v_mov_b32 v5, 0
v_mov_b32 v6, s36
global_store_dword v5, v6, s[26:27] sc1
L_fin:
""")
    if stamps:
        stamp(12); dump_stamps(1, 13)
    if diag is not None:
        k, cond = diag
        E(f"s_sub_u32 s58, s{64+2*k}, s64\ns_lshl_b32 s58, s58, 2")
        if cond is not None: E(cond + "\ns_cselect_b32 s58, s58, 0")
        E("s_add_u32 s58, s58, 6000\nL_spin:\ns_memrealtime s[60:61]\ns_waitcnt lgkmcnt(0)\ns_sub_u32 s59, s60, s64\ns_cmp_lt_u32 s59, s58\ns_cbranch_scc1 L_spin")
    E("L_end:\ns_endpgm")

    E("L_stail:")
    if stamps: E("s_mul_i32 s84, s33, 100\ns_add_u32 s84, s84, s64")
    R = KF
    E(f"v_readfirstlane_b32 s33, v{ORD}")
    cross_rows(VL, T1, "v_add_f32")
    E(f"""
s_cmp_eq_u32 s33, 0
s_cbranch_scc1 L_first
v_cmp_ne_u32 vcc, s33, v{S_+4}
s_cbranch_vccz L_pw2
L_pw:
""")
    rd_part()
    E(f"""
ds_read_b32 v{S_+5}, v{FLA}
s_waitcnt lgkmcnt(1)
v_cmp_ne_u32 vcc, s33, v{S_+4}
s_cbranch_vccnz L_pw
L_pw2:
v_max_f32 v{S_}, v{F}, v{VM}
v_sub_f32 v{VM}, v{VM}, v{S_}
v_sub_f32 v{F}, v{F}, v{S_}
v_mul_f32 v{VM}, s61, v{VM}
v_mul_f32 v{F}, s61, v{F}
v_exp_f32 v{VM}, v{VM}
v_exp_f32 v{F}, v{F}
""")
    for d in range(4):
        for e in range(4): E(f"v_cndmask_b32 v{O+8*d+e}, v{O+8*d+e}, v{O+8*d+4+e}, s[20:21]")
    E(f"v_mul_f32 v{S_+1}, v{VM}, v{VL}\nv_fmac_f32 v{S_+1}, v{F}, v{F+1}")
    for d in range(4):
        for e in (0, 2): E(f"v_pk_mul_f32 v[{R+4*d+e}:{R+4*d+e+1}], v[{R+4*d+e}:{R+4*d+e+1}], v[{F}:{F+1}] op_sel_hi:[1,0]")
    E("s_cmp_eq_u32 s33, 3\ns_cbranch_scc1 L_last")
    for d in range(4):
        for e in (0, 2): E(f"v_pk_fma_f32 v[{O+8*d+e}:{O+8*d+e+1}], v[{O+8*d+e}:{O+8*d+e+1}], v[{VM}:{VM+1}], v[{R+4*d+e}:{R+4*d+e+1}] op_sel_hi:[1,0,1]")
    E("s_branch L_wr\nL_first:")
    for d in range(4):
        for e in range(4): E(f"v_cndmask_b32 v{O+8*d+e}, v{O+8*d+e}, v{O+8*d+4+e}, s[20:21]")
    E(f"v_mov_b32 v{S_}, v{VM}\nv_mov_b32 v{S_+1}, v{VL}\nL_wr:")
    for d in range(4): E(f"ds_write_b128 v{LL}, v[{O+8*d}:{O+8*d+3}] offset:{1024*d}")
    E(f"ds_write_b64 v{MLW}, v[{S_}:{S_+1}]\ns_mov_b64 exec, 1\nds_add_u32 v{FLA}, v{ONE} offset:12\ns_mov_b64 exec, -1")
    E("s_branch L_nt\nL_last:")
    tagS = ["s36", "s16", "s17", "s18"]
    for d in range(4):
        for e in (0, 2): E(f"v_pk_fma_f32 v[{O+8*d+e}:{O+8*d+e+1}], v[{O+8*d+e}:{O+8*d+e+1}], v[{VM}:{VM+1}], v[{R+4*d+e}:{R+4*d+e+1}] op_sel_hi:[1,0,1]")
        for e in range(4): E(f"v_bfi_b32 v{O+8*d+e}, v{MSK}, v{O+8*d+e}, {tagS[e]}")
        E(f"global_store_dwordx4 v{APA if d < 2 else APB}, v[{O+8*d}:{O+8*d+3}], s[26:27] offset:{128*(d&1)} sc1")
    E(f"""
v_bfi_b32 v{S_}, v{MSK}, v{S_}, s36
v_bfi_b32 v{S_+1}, v{MSK}, v{S_+1}, s16
v_mov_b32 v{S_+2}, s17
v_mov_b32 v{S_+3}, s18
s_mov_b64 exec, {"0xff" if ml1 else "0xffff"}
global_store_dwordx4 v{APM}, v[{S_}:{S_+3}], s[26:27] offset:256 sc1
s_mov_b64 exec, 1
ds_add_u32 v{FLA}, v{ONE} offset:4
s_mov_b64 exec, -1
""")
    if stamps: E("s_memrealtime s[74:75]")
    E(f"""
L_nt:
s_waitcnt lgkmcnt(0)
s_cmp_lg_u32 s19, {63 - hx}
s_cbranch_scc1 L_wj
v_mov_b32 v{T0}, s36
global_store_dword v{NFA}, v{T0}, s[26:27] sc1
L_wj:
""")
    if relth is not None:
        E(f"s_cmp_lt_i32 s19, {relth}\ns_cbranch_scc1 L_nr\nv_mov_b32 v{T0}, 8\ns_mov_b64 exec, 1\nds_add_u32 v{FLA}, v{T0}\ns_mov_b64 exec, -1\nL_nr:")
    WP = f"s_mov_b64 exec, 1\nds_add_u32 v{FLA}, v{ONE}\ns_mov_b64 exec, -1"
    if wfin: E(f"L_wf:\nds_read_b32 v{S_+4}, v{FLA} offset:4\ns_waitcnt lgkmcnt(0)\nv_cmp_gt_u32 vcc, {wfin}, v{S_+4}\ns_sleep 1\ns_cbranch_vccnz L_wf")
    take_turn()
    if wl != 2: E(f"s_sub_u32 s39, s39, {wl - 2}")
    tok_wait("L_wa")
    if stamps: E("s_memrealtime s[96:97]")
    ld_w(40, WD)
    E("s_add_u32 s39, s39, 1")
    tok_wait("L_wb")
    ld_w(44, WO)
    E(f"s_waitcnt vmcnt({8 + YW})\n{WP}")
    E(f"""
L_hw:
ds_read_b32 v{T1}, v{FLA} offset:24
ds_read_b128 v[{P}:{P+3}], v{HSA}
s_waitcnt lgkmcnt(0)
v_cmp_eq_u32 vcc, 0, v{T1}
s_cbranch_vccnz L_hw
""")
    build_A(KF, P, SELS)
    E("s_waitcnt vmcnt(8)")
    def g2_fin(S_=S_):
        E(f"v_permlane32_swap_b32 v{S_}, v{S_+2}\nv_permlane32_swap_b32 v{S_+1}, v{S_+3}")
        for i in range(2): E(f"v_add_f32_dpp v{S_+i}, v{S_+2+i}, v{S_+i} row_ror:8 {DPP}")
        E(f"v_permlane32_swap_b32 v{S_}, v{S_+2}\nv_permlane32_swap_b32 v{S_+1}, v{S_+3}")
        for e in range(4): E(f"v_bfi_b32 v{S_+e}, v{MSK}, v{S_+e}, {tagS[e]}")
    mm(S_, KF, WD)
    if latewo:
        g2_fin()
        E(f"s_cmp_ge_u32 s33, {latewo}\ns_cbranch_scc1 L_dst\ns_waitcnt vmcnt({YW})\n{WP}")
    else:
        E(f"s_waitcnt vmcnt({YW})\n{WP}")
        g2_fin()
    E(f"s_waitcnt vmcnt(0)\nL_dst:\ns_mov_b64 exec, 0x00ff00ff\nglobal_store_dwordx4 v{FAD}, v[{S_}:{S_+3}], s[26:27] sc1\ns_mov_b64 exec, -1")
    E(f"v_mov_b32 v{LL}, {OS + 1024}")
    stamp(6)
    E("s_barrier")
    stamp(7)
    E(f"ds_read_b128 v[{F}:{F+3}], v{LL}\nds_read_b128 v[{F+4}:{F+7}], v{LL} offset:16")
    for k in range(4):
        for h in range(2):
            E(f"ds_read_b128 v[{VF+8*k+4*h}:{VF+8*k+4*h+3}], v{OSA} offset:{256*k + 16*h}")
    E("s_waitcnt lgkmcnt(8)")
    E(f"v_max3_f32 v{T0}, v{F}, v{F+2}, v{F+4}\nv_max_f32 v{T0}, v{T0}, v{F+6}")
    for k in range(4): E(f"v_sub_f32 v{F+2*k}, v{F+2*k}, v{T0}")
    for k in range(4): E(f"v_mul_f32 v{F+2*k}, s61, v{F+2*k}")
    for k in range(4): E(f"v_exp_f32 v{F+2*k}, v{F+2*k}")
    E(f"v_mul_f32 v{T0}, v{F}, v{F+1}")
    for k in range(1, 4): E(f"v_fmac_f32 v{T0}, v{F+2*k}, v{F+2*k+1}")
    E(f"v_rcp_f32 v{T0}, v{T0}\ns_waitcnt lgkmcnt(0)")
    for i in range(0, 8, 2): E(f"v_pk_mul_f32 v[{VF+i}:{VF+i+1}], v[{VF+i}:{VF+i+1}], v[{F}:{F+1}] op_sel_hi:[1,0]")
    for k in range(1, 4):
        for i in range(0, 8, 2): E(f"v_pk_fma_f32 v[{VF+i}:{VF+i+1}], v[{VF+8*k+i}:{VF+8*k+i+1}], v[{F+2*k}:{F+2*k+1}], v[{VF+i}:{VF+i+1}] op_sel_hi:[1,0,1]")
    for i in range(0, 8, 2): E(f"v_pk_mul_f32 v[{VF+i}:{VF+i+1}], v[{VF+i}:{VF+i+1}], v[{T0}:{T0+1}] op_sel_hi:[1,0]")
    pack(P, VF, 4)
    build_A1(KF, P, SELS, 0)
    for i in range(8):
        if i < 7: build_A1(KF, P, SELS, i + 1)
        if latewo: E(f"s_waitcnt vmcnt({8 - i})")
        mm1(S_+4 if latewo else S_, KF, WO, i)
    S2 = S_+4 if latewo else S_
    g2_fin(S2)
    E(f"s_mov_b64 exec, 0x00ff00ff\nglobal_store_dwordx4 v{FAS}, v[{S2}:{S2+3}], s[26:27] sc1")
    if stamps:
        stamp(9)
        E(f"s_mov_b64 exec, 1\ns_lshl2_add_u32 s58, s2, s3\ns_lshl_b32 s58, s58, 4\ns_add_u32 s58, s58, {STAMPS + 0x10000}\nv_mov_b32 v1, s58\nv_mov_b32 v4, s90\nv_mov_b32 v5, s72\ns_sub_u32 s59, s84, s64\nv_mov_b32 v6, s59\nv_mov_b32 v7, s10\nglobal_store_dwordx4 v1, v[4:7], s[26:27]\nv_mov_b32 v8, s96\nv_mov_b32 v9, s76\nv_mov_b32 v10, s33\nv_mov_b32 v11, s62\nv_add_u32 v1, 0x4000, v1\nglobal_store_dwordx4 v1, v[8:11], s[26:27]")
        E(f"s_mov_b64 exec, 0xffff\nv_writelane_b32 v244, s96, 14\nv_writelane_b32 v244, s13, 15\ns_lshl2_add_u32 s58, s2, s3\ns_lshl_b32 s58, s58, 6\ns_add_u32 s58, s58, {STAMPS + 0x20000}\nv_lshl_add_u32 v1, v0, 2, s58\nglobal_store_dword v1, v244, s[26:27]")
        E("s_cmp_lg_u32 s33, 3\ns_cbranch_scc1 L_end2")
        E('s_mov_b32 s86, s94\ns_mov_b32 s88, s90'); dump_stamps(0, 13)
        E("L_end2:")
    E("s_endpgm")
    NV = 248
    E(f'''.section .rodata,"a"
.p2align 6
.amdhsa_kernel {KN}
.amdhsa_next_free_vgpr {NV}
.amdhsa_next_free_sgpr 102
.amdhsa_accum_offset {NV}
.amdhsa_group_segment_fixed_size 0
.amdhsa_kernarg_size 96
.amdhsa_user_sgpr_count 2
.amdhsa_user_sgpr_kernarg_segment_ptr 1
.amdhsa_system_sgpr_workgroup_id_x 1
.amdhsa_float_denorm_mode_32 3
.end_amdhsa_kernel''')
    hdr = f"""; out = x + (attn(LN(x)) @ wo) * silu(GEGLU_FFN(LN(x)))   -- one persistent launch, 256 WGs (1 per CU) x 8 waves.
; @launch grid=(256,1,1) block=(512,1,1) lds={LDS_TOTAL}
"""
    if "wlin" in exp:
        i = E.L.index(f"v_lshl_add_u32 v{VW}, v{T0}, 14, v{T1}")
        E.L[i] = f"v_lshlrev_b32 v{VW}, 4, v0"
        i = E.L.index("s_cselect_b32 s42, 131072, 0")
        assert E.L[i+2] == "s_lshl_b32 s59, s59, 7"
        E.L[i+2] = "s_lshl_b32 s59, s59, 13"
    if "w512" in exp:
        i = E.L.index(f"v_lshl_add_u32 v{VW}, v{T0}, 14, v{T1}")
        E.L[i:i+1] = [f"v_lshrrev_b32 v{VW}, 5, v0", f"v_lshlrev_b32 v{VW}, 14, v{VW}", f"v_and_b32 v{T1}, 31, v0", f"v_lshl_add_u32 v{VW}, v{T1}, 4, v{VW}"]
        i = E.L.index("s_cselect_b32 s42, 131072, 0")
        E.L[i+1:i+3] = ["s_lshl_b32 s59, s29, 9", "s_lshl_b32 s58, s3, 15", "s_add_u32 s59, s59, s58"]
    if "nohop1" in exp:
        i0 = E.L.index("L_hint:"); i1 = E.L.index("L_c2:")
        E.L[i0:i1+1] = []
    if "noap" in exp:
        E.L = [l for l in E.L if not (l.startswith(f"global_store_dwordx4 v{APA},") or l.startswith(f"global_store_dwordx4 v{APB},") or l.startswith(f"global_store_dwordx4 v{APM},"))]
    if "noq" in exp:
        i0 = E.L.index("L_qgo:"); i1 = E.L.index("L_pok0:")
        E.L[i0+1:i1+1] = []
    if "q1" in exp:
        E.L = [l for l in E.L if not (l.startswith("global_load_dwordx4") and ", v4, s[26:27] offset:" in l and "offset:0 " not in l)]
        i0 = E.L.index("L_chk0:"); i1 = E.L.index("L_pok0:")
        E.L[i0+2:i1] = []
    if "nogp" in exp:
        E.L = [l for l in E.L if not l.startswith("global_store_dwordx4 v5, v[160:163]")]
        i0 = E.L.index("L_gt:"); i1 = E.L.index("L_pok1:")
        E.L[i0:i1+1] = []
    text = hdr + E.finish()
    if warm:
        import pads
        text, cnt = pads.place(text, [(KN, "L_e0", "PS", False), ("L_loop", "L_e1", "PL", True), ("L_aux", "L_e2", "PA", True), ("L_noffn", None, "PT", False)])
        names = lambda p: [f"{p}{i}" for i in range(cnt[p])]
        PS, PL, PA, PT = names("PS"), names("PL"), names("PA"), names("PT")
        early = PA[:2] + PS[:2]
        rest = PA[2:] + PL + PS[2:]
        chains = {"W1": [[x] for x in early] + [[]] * (4 - len(early)), "W2": [rest[i::4] for i in range(4)], "W3": [PT]}
        for ph, ret in (("W1", "L_ret1"), ("W2", "L_ret2"), ("W3", "L_ret3")):
            for w, ch in enumerate(chains[ph]):
                seq = ch + [ret]
                text = re.sub(rf"{ret} ;;{ph}_{w}\b", seq[0], text)
                for a_, b_ in zip(seq, seq[1:]): text = text.replace(f"@{a_}@", b_)
        assert "@P" not in text
    return text

if __name__ == "__main__":
    import json
    kw = json.loads(sys.argv[2]) if len(sys.argv) > 2 else {}
    open(sys.argv[1], "w").write(gen(**kw))
```
